```python
import torch

def _softmax(x, axis=-1):
    return torch.softmax(x, dim=axis)
def _gelu(x):
    return torch.nn.functional.gelu(x, approximate="tanh")
def _silu(x):
    return torch.nn.functional.silu(x)
def _sigmoid(x):
    return torch.sigmoid(x)
def _layernorm(x, axis=-1, eps=1e-5):
    m = x.mean(dim=axis, keepdim=True)
    v = x.var(dim=axis, keepdim=True, unbiased=False)
    return (x - m) / torch.sqrt(v + eps)
def _scatter_add(tgt, idx, src, axis=0):
    return tgt.clone().index_add_(axis, idx, src)
def _segment_sum(src, seg, n):
    out = torch.zeros((n,) + src.shape[1:], dtype=src.dtype)
    return out.index_add_(0, seg, src)
def _pad(x, pw):
    flat = tuple(v for pair in reversed(pw) for v in pair)
    return torch.nn.functional.pad(x, flat)

kernel_name = 'sequential_preLN__ssm_conv_h3__dense_activation_silu__prompt'

def setup_inputs():

    _w = (lambda a: (lambda t: t.to(torch.bfloat16) if t.is_floating_point() else t)(torch.as_tensor(a)))
    def _A_setup():
        B, S, D = 1, 2048, 512
        ks = 4
        return {
            "q": _w((lambda *s: torch.randn(*s, dtype=torch.bfloat16) * 0.05)(B, S, D)),
            "k": _w((lambda *s: torch.randn(*s, dtype=torch.bfloat16) * 0.2)(B, S, D)),
            "v": _w((lambda *s: torch.randn(*s, dtype=torch.bfloat16) * 0.2)(B, S, D)),
            "shift_k": _w((lambda *s: torch.randn(*s, dtype=torch.bfloat16) * 0.2)(D, ks) * 0.5),
            "ssm_k": _w((lambda *s: torch.randn(*s, dtype=torch.bfloat16) * 0.4)(D, S) * (1.0 / S ** 0.5)),
            "ssm_D": _w((lambda *s: torch.randn(*s, dtype=torch.bfloat16) * 0.2)(D)),
        }
    _A_in = _A_setup()

    def _B_setup():
        B, S, D, F = 1, 2048, 512, 1792
        return {
            "x": _w((lambda *s: torch.randn(*s, dtype=torch.bfloat16) * 0.05)(B, S, D)),
            "w1": _w((lambda *s: torch.randn(*s, dtype=torch.bfloat16) * 0.8)(D, F) * (D ** -0.5)),
            "w2": _w((lambda *s: torch.randn(*s, dtype=torch.bfloat16) * 0.1)(F, D) * (F ** -0.5)),
        }
    _B_in = _B_setup()

    return {
        "A_q": _A_in["q"],
        "A_k": _A_in["k"],
        "A_v": _A_in["v"],
        "A_shift_k": _A_in["shift_k"],
        "A_ssm_k": _A_in["ssm_k"],
        "A_ssm_D": _A_in["ssm_D"],
        "B_x": _B_in["x"],
        "B_w1": _B_in["w1"],
        "B_w2": _B_in["w2"],
    }

def reference(A_q, A_k, A_v, A_shift_k, A_ssm_k, A_ssm_D, B_x, B_w1, B_w2):
    def _A_ref(q, k, v, shift_k, ssm_k, ssm_D):
        B, S, D = q.shape
        ks = shift_k.shape[-1]
        k_pad = _pad(k, ((0, 0), (ks - 1, 0), (0, 0)))
        k_shift = torch.zeros_like(k)
        for t in range(ks):
            k_shift = k_shift + k_pad[:, t:t + S, :] * shift_k[:, ks - 1 - t][None, None, :]
        kv = k_shift * v
        L = 2 * S
        kv_pad = _pad(kv, ((0, 0), (0, S), (0, 0)))
        kf_pad = _pad(ssm_k, ((0, 0), (0, S)))
        kv_f = (lambda x, axes=(-2,-1): torch.fft.rfft2(x.float(), dim=axes))(kv_pad[:, None, :, :], axes=(1, 2))
        kf_f = (lambda x, axes=(-2,-1): torch.fft.rfft2(x.float(), dim=axes))(kf_pad[:, None, :], axes=(1, 2))
        kf_f = (lambda x, *d: x.permute(*d))(kf_f, 1, 2, 0)
        y_f = kv_f * kf_f[None, :, :, :]
        y = (lambda x, s, axes=(-2,-1): torch.fft.irfft2(x, s=s, dim=axes).to(torch.bfloat16))(y_f, (1, L), axes=(1, 2))[:, 0, :S, :]
        y = y + kv * ssm_D[None, None, :]
        return q * y

    def _B_ref(x, w1, w2):
        h = torch.einsum("bsd,df->bsf", x, w1)
        h = _silu(h)
        out = torch.einsum("bsf,fd->bsd", h, w2)
        return out

    x = A_q
    h = x + _A_ref(_layernorm(x, axis=-1), A_k, A_v, A_shift_k, A_ssm_k, A_ssm_D)
    h2 = h + _B_ref(_layernorm(h, axis=-1), B_w1, B_w2)
    return h2
```

```python
import sys
STAMP = (len(sys.argv) > 1 and "stamp" in sys.argv[1:])

WS_KVT = 0
WS_XD  = 2 << 20
WS_ST  = 4 << 20
WS_CS  = (4 << 20) + 65536
WS_HD  = 6 << 20
WS_W1P = 8 << 20
WS_W2P = 10 << 20
WS_HP  = 12 << 20
WS_STAMP = 0x4000000
WS_BYTES = 268435456
OOB = 0x7FF00000

class A:
    def __init__(s): s.l = []
    def __call__(s, txt):
        for ln in txt.strip("\n").split("\n"):
            s.l.append("    " + ln.strip())
    def label(s, n): s.l.append(n + ":")
    def raw(s, t): s.l.append(t)
    def text(s): return "\n".join(s.l) + "\n"

def srd(a, d, b, n):
    a(f"s_mov_b32 s{d}, s{b}\ns_mov_b32 s{d+1}, s{b+1}\ns_mov_b32 s{d+2}, {n}\ns_mov_b32 s{d+3}, 0x00020000")

def head(a, name, nwg):
    a.raw(f".globl {name}\n.p2align 8\n.type {name},@function\n{name}:")
    if STAMP: a("s_memrealtime s[96:97]")
    a(f"s_cmp_ge_u32 s2, {nwg}\ns_cbranch_scc1 L_end_{name}")

def tail(a, name, idx, wsrd, vgpr, acc, sgpr=102):
    if STAMP:
        a(f"""s_mov_b64 exec, -1
        s_waitcnt vmcnt(0) lgkmcnt(0)
        s_memrealtime s[98:99]
        s_waitcnt lgkmcnt(0)
        v_mov_b32 v4, s96
        v_mov_b32 v5, s97
        v_mov_b32 v6, s98
        v_mov_b32 v7, s99
        v_lshrrev_b32 v3, 6, v0
        v_lshlrev_b32 v3, 4, v3
        s_lshl_b32 s95, s2, 8
        s_add_u32 s95, s95, {WS_STAMP + idx * 0x10000}
        v_and_b32 v2, 63, v0
        v_cmp_eq_u32 vcc, 0, v2
        s_and_saveexec_b64 s[92:93], vcc
        buffer_store_dwordx4 v[4:7], v3, {wsrd}, s95 offen""")
    a.label(f"L_end_{name}")
    a("s_endpgm")
    a.raw(f""".section .rodata,"a"
.p2align 6
.amdhsa_kernel {name}
  .amdhsa_next_free_vgpr {vgpr}
  .amdhsa_next_free_sgpr {sgpr}
  .amdhsa_accum_offset {acc}
  .amdhsa_group_segment_fixed_size 0
  .amdhsa_kernarg_size 96
  .amdhsa_user_sgpr_count 2
  .amdhsa_user_sgpr_kernarg_segment_ptr 1
  .amdhsa_system_sgpr_workgroup_id_x 1
.end_amdhsa_kernel
.text""")

def allreduce_row16(a, v):
    for r in (8, 4, 2, 1):
        a(f"s_nop 1\nv_add_f32_dpp v{v}, v{v}, v{v} row_ror:{r} row_mask:0xf bank_mask:0xf")

def xreduce(a, v, tmp, which):
    a(f"v_mov_b32 v{tmp}, v{v}\ns_nop 1\nv_permlane{which}_swap_b32 v{v}, v{tmp}\ns_nop 1\nv_add_f32 v{v}, v{v}, v{tmp}")

def ln_scalars(a, vmean, vvar, t0, t1, out_r, out_m):
    a(f"""v_cvt_pk_bf16_f32 v{t0}, v{vmean}, v{vvar}
    v_lshlrev_b32 v{out_m}, 16, v{t0}
    v_and_b32 v{t1}, 0xffff0000, v{t0}
    v_add_f32 v{t1}, 0x3727c5ac, v{t1}
    v_cvt_pk_bf16_f32 v{t1}, v{t1}, v{t1}
    v_and_b32 v{t1}, 0xffff0000, v{t1}
    v_sqrt_f32 v{t1}, v{t1}
    s_nop 0
    v_cvt_pk_bf16_f32 v{t1}, v{t1}, v{t1}
    v_and_b32 v{t1}, 0xffff0000, v{t1}
    v_rcp_f32 v{out_r}, v{t1}
    s_nop 0""")

def k0():
    a = A(); name = "k0_prep_kernel"
    head(a, name, 256)
    a("""s_load_dwordx4 s[4:7], s[0:1], 0
    s_load_dwordx4 s[8:11], s[0:1], 16
    s_load_dwordx2 s[12:13], s[0:1], 32
    s_load_dwordx2 s[14:15], s[0:1], 88
    v_and_b32 v1, 31, v0
    v_lshrrev_b32 v2, 5, v0
    s_lshr_b32 s16, s2, 3
    s_and_b32 s17, s2, 7
    s_lshl_b32 s18, s16, 16
    s_lshl_b32 s19, s17, 7
    s_add_u32 s18, s18, s19
    v_lshlrev_b32 v3, 13, v2
    v_lshl_add_u32 v3, v1, 2, v3
    v_add_u32 v3, s18, v3
    v_subrev_u32 v4, 3072, v3
    v_mov_b32 v5, %d
    v_cmp_gt_i32 vcc, 0, v4
    s_mov_b32 s44, 4096
    v_lshrrev_b32 v6, 5, v0
    v_cndmask_b32 v4, v4, v5, vcc
    s_lshl_b32 s45, s2, 13
    v_lshlrev_b32 v6, 10, v6
    v_lshl_add_u32 v6, v1, 5, v6
    s_lshl_b32 s46, s17, 9
    v_lshlrev_b32 v7, 4, v1
    s_lshl_b32 s47, s17, 5
    s_add_u32 s47, s47, s16
    s_lshl_b32 s47, s47, 13
    v_lshlrev_b32 v8, 4, v0
    s_add_u32 s48, s47, 4096
    s_mov_b32 s50, 0x3f803f80
    s_waitcnt lgkmcnt(0)""" % OOB)
    srd(a, 20, 4, 2097152); srd(a, 24, 6, 2097152); srd(a, 28, 8, 2097152); srd(a, 32, 10, 4096); srd(a, 36, 12, 2097152); srd(a, 40, 14, WS_BYTES)
    a("buffer_load_dwordx4 v[80:83], v6, s[20:23], s45 offen\nbuffer_load_dwordx4 v[84:87], v6, s[20:23], s45 offen offset:16")
    a("buffer_load_dwordx4 v[12:15], v7, s[32:35], s46 offen")
    KR = 16
    for r in range(3): a(f"buffer_load_dword v{KR+r}, v4, s[24:27], 0 offen offset:{1024*r}")
    for r in range(8): a(f"buffer_load_dword v{KR+3+r}, v3, s[24:27], {'0' if r<4 else 's44'} offen offset:{1024*(r%4)}")
    VR = 28
    for r in range(8): a(f"buffer_load_dword v{VR+r}, v3, s[28:31], {'0' if r<4 else 's44'} offen offset:{1024*(r%4)}")
    XR = 36
    for r in range(8): a(f"buffer_load_dword v{XR+r}, v3, s[20:23], {'0' if r<4 else 's44'} offen offset:{1024*(r%4)}")
    a("buffer_load_dwordx4 v[100:103], v8, s[36:39], s47 offen\nbuffer_load_dwordx4 v[104:107], v8, s[36:39], s48 offen")
    a("v_mov_b32 v90, 0\nv_mov_b32 v91, 0\ns_waitcnt vmcnt(30)")
    for i in range(8): a(f"v_dot2_f32_bf16 v{90+(i&1)}, v{80+i}, s50, v{90+(i&1)}")
    a("s_nop 2\nv_add_f32 v90, v90, v91")
    allreduce_row16(a, 90); xreduce(a, 90, 91, 16)
    a("v_mul_f32 v90, 0x3b000000, v90\nv_mov_b32 v92, 0\nv_mov_b32 v93, 0")
    for i in range(8):
        a(f"v_lshlrev_b32 v94, 16, v{80+i}\nv_and_b32 v95, 0xffff0000, v{80+i}")
        a("v_pk_add_f32 v[94:95], v[94:95], v[90:91] op_sel_hi:[1,0] neg_lo:[0,1] neg_hi:[0,1]")
        a("v_pk_fma_f32 v[92:93], v[94:95], v[94:95], v[92:93]")
    a("v_add_f32 v92, v92, v93")
    allreduce_row16(a, 92); xreduce(a, 92, 93, 16)
    a("v_mul_f32 v92, 0x3b000000, v92")
    ln_scalars(a, 90, 92, 94, 95, 96, 97)
    a(f"""v_mul_f32_e64 v97, v97, -v96
    v_lshrrev_b32 v98, 5, v0
    v_lshlrev_b32 v98, 3, v98
    s_lshl_b32 s51, s2, 6
    s_add_u32 s51, s51, {WS_ST}
    v_cmp_eq_u32 vcc, 0, v1
    s_and_saveexec_b64 s[52:53], vcc
    buffer_store_dwordx2 v[96:97], v98, s[40:43], s51 offen
    s_mov_b64 exec, s[52:53]""")
    a("s_waitcnt vmcnt(19)")
    for j in range(4):
        src0 = 12 + (j >> 1); src1 = 14 + (j >> 1)
        if j & 1: a(f"v_and_b32 v{44+2*j}, 0xffff0000, v{src0}\nv_and_b32 v{45+2*j}, 0xffff0000, v{src1}")
        else:     a(f"v_lshlrev_b32 v{44+2*j}, 16, v{src0}\nv_lshlrev_b32 v{45+2*j}, 16, v{src1}")
    KU = 52
    for r in range(11):
        a(f"v_lshlrev_b32 v{KU+2*r}, 16, v{KR+r}\nv_and_b32 v{KU+2*r+1}, 0xffff0000, v{KR+r}")
    OUT = 108
    for r in range(8):
        o = OUT + 2*r
        a(f"v_pk_mul_f32 v[{o}:{o+1}], v[{KU+2*r}:{KU+2*r+1}], v[50:51]")
        a(f"v_pk_fma_f32 v[{o}:{o+1}], v[{KU+2*r+2}:{KU+2*r+3}], v[48:49], v[{o}:{o+1}]")
        a(f"v_pk_fma_f32 v[{o}:{o+1}], v[{KU+2*r+4}:{KU+2*r+5}], v[46:47], v[{o}:{o+1}]")
        a(f"v_pk_fma_f32 v[{o}:{o+1}], v[{KU+2*r+6}:{KU+2*r+7}], v[44:45], v[{o}:{o+1}]")
    a("s_waitcnt vmcnt(11)")
    for r in range(8):
        o = OUT + 2*r
        a(f"v_lshlrev_b32 v74, 16, v{VR+r}\nv_and_b32 v75, 0xffff0000, v{VR+r}")
        a(f"v_pk_mul_f32 v[{o}:{o+1}], v[{o}:{o+1}], v[74:75]")
    for c in range(2):
        for q in range(4):
            a(f"v_cvt_pk_bf16_f32 v{76+4*c+q - (0)}, v{OUT+2*(7-2*q)+c}, v{OUT+2*(6-2*q)+c}")
    a(f"""v_lshlrev_b32 v9, 13, v1
    v_lshl_add_u32 v9, v2, 4, v9
    s_lshl_b32 s54, s17, 18
    s_lshl_b32 s55, s16, 7
    s_add_u32 s54, s54, s55
    s_add_u32 s54, s54, {WS_KVT}
    s_add_u32 s55, s54, 4096
    buffer_store_dwordx4 v[76:79], v9, s[40:43], s54 offen
    buffer_store_dwordx4 v[80:83], v9, s[40:43], s55 offen
    v_lshlrev_b32 v10, 13, v1
    v_lshl_add_u32 v10, v2, 5, v10
    s_lshl_b32 s56, s17, 18
    s_lshl_b32 s57, s16, 8
    s_add_u32 s56, s56, s57
    s_add_u32 s56, s56, {WS_XD}
    s_waitcnt vmcnt(5)
    buffer_store_dwordx4 v[36:39], v10, s[40:43], s56 offen
    buffer_store_dwordx4 v[40:43], v10, s[40:43], s56 offen offset:16""")
    tail(a, name, 0, "s[40:43]", 128, 128)
    return a.text()

L_U = [0, 4608]
L_KC = [9216, 9216 + 16640]
KC_STRIDE = 4160
L_RED = 9216 + 2 * 16640
L_CS = L_RED + 65536
K1_LDS = L_CS + 1024

def k1():
    a = A(); name = "k1_conv_kernel"
    head(a, name, 256)
    a("""s_load_dwordx4 s[4:7], s[0:1], 32
    s_load_dwordx4 s[8:11], s[0:1], 56
    s_load_dwordx2 s[12:13], s[0:1], 88
    v_lshrrev_b32 v4, 6, v0
    v_and_b32 v1, 63, v0
    v_readfirstlane_b32 s20, v4
    v_and_b32 v2, 15, v0
    v_bfe_u32 v3, v0, 4, 2
    s_and_b32 s16, s2, 7
    s_lshl_b32 s16, s16, 5
    s_lshr_b32 s17, s2, 3
    s_add_u32 s16, s16, s17
    s_lshr_b32 s21, s20, 2
    s_and_b32 s22, s20, 3
    s_lshl_b32 s17, s16, 1
    s_add_u32 s17, s17, s21
    s_lshl_b32 s17, s17, 12
    s_lshl_b32 s18, s22, 10
    s_add_u32 s17, s17, s18
    v_lshlrev_b32 v5, 4, v1
    s_lshl_b32 s19, s16, 2
    s_waitcnt lgkmcnt(0)""")
    srd(a, 24, 4, 2097152); srd(a, 28, 12, WS_BYTES)
    a("s_add_u32 s6, s6, s19\ns_addc_u32 s7, s7, 0\ns_load_dword s23, s[6:7], 0")
    a("buffer_load_dwordx4 v[8:11], v5, s[24:27], s17 offen\nbuffer_load_dwordx2 v[12:13], v5, s[24:27], s17 offen offset:16")
    a(f"""s_mul_i32 s44, s21, {L_U[1]}
    s_add_u32 s44, s44, s18
    s_add_u32 m0, s44, 512
    s_add_u32 s45, s17, {WS_KVT}
    buffer_load_dwordx4 v5, s[28:31], s45 offen lds""")
    a(f"""v_lshlrev_b32 v6, 4, v2
    v_lshl_add_u32 v6, v3, 2, v6
    v_lshlrev_b32 v7, 2, v6
    s_lshl_b32 s46, s16, 13
    s_lshl_b32 s47, s20, 10
    s_add_u32 s46, s46, s47
    s_add_u32 s46, s46, {WS_XD}
    buffer_load_dwordx4 v[16:19], v7, s[28:31], s46 offen
    v_lshlrev_b32 v7, 3, v6
    s_lshl_b32 s47, s20, 11
    s_add_u32 s47, s47, {WS_ST}
    buffer_load_dwordx4 v[20:23], v7, s[28:31], s47 offen
    buffer_load_dwordx4 v[24:27], v7, s[28:31], s47 offen offset:16""")
    a(f"""s_cmp_lt_u32 s2, 56
    s_cbranch_scc1 L_k1_pw1
    s_cmp_lt_u32 s2, 168
    s_cbranch_scc1 L_k1_pw2""")
    srd(a, 40, 8, 1835008)
    a(f"v_mov_b32 v28, {OOB}\nv_mov_b32 v29, {OOB}\nv_mov_b32 v30, {OOB}")
    for i in range(10): a(f"s_mov_b32 s{48+i}, 0")
    a("s_branch L_k1_pgo")
    a.label("L_k1_pw1")
    srd(a, 40, 8, 1835008)
    korder = [0, 1, 4, 5, 2, 3, 6, 7]
    for i in range(8): a(f"s_mov_b32 s{48+i}, {korder[i]*3584}")
    a(f"""s_mul_i32 s58, s20, {64*3584}
    s_lshl_b32 s59, s2, 6
    s_add_u32 s58, s58, s59
    v_mul_u32_u24 v28, {8*3584}, v3
    v_lshl_add_u32 v28, v2, 2, v28
    v_add_u32 v28, s58, v28
    v_add_u32 v29, {32*3584}, v28""")
    a(f"""s_lshl_b32 s58, s2, 1
    s_mul_i32 s59, s58, 9363
    s_lshr_b32 s59, s59, 16
    s_mul_i32 s60, s59, 105
    s_add_u32 s60, s60, s58
    s_add_u32 s58, s58, 1
    s_mul_i32 s59, s58, 9363
    s_lshr_b32 s59, s59, 16
    s_mul_i32 s61, s59, 105
    s_add_u32 s61, s61, s58
    s_lshl_b32 s60, s60, 10
    s_lshl_b32 s61, s61, 10
    v_mov_b32 v30, s60
    v_mov_b32 v31, s61
    v_cmp_lt_u32 vcc, 7, v2
    v_and_b32 v32, 7, v2
    v_lshlrev_b32 v32, 5, v32
    v_cndmask_b32 v30, v30, v31, vcc
    v_lshl_add_u32 v32, v3, 8, v32
    v_add_u32 v30, v30, v32
    s_mul_i32 s56, s20, {14*1024}
    s_add_u32 s56, s56, {WS_W1P}
    s_add_u32 s57, s56, {7*1024}
    s_branch L_k1_pgo""")
    a.label("L_k1_pw2")
    srd(a, 40, 10, 1835008)
    for i in range(8): a(f"s_mov_b32 s{48+i}, {(16*(i>>2) + (i&3))*1024}")
    a(f"""s_sub_u32 s58, s2, 56
    s_mul_i32 s59, s58, 4682
    s_lshr_b32 s59, s59, 16
    s_mul_i32 s60, s59, 14
    s_sub_u32 s60, s58, s60
    s_lshl_b32 s60, s60, 2
    s_lshr_b32 s61, s20, 1
    s_add_u32 s60, s60, s61
    s_and_b32 s61, s20, 1
    v_lshrrev_b32 v31, 5, v1
    v_lshl_add_u32 v31, s61, 1, v31
    v_and_b32 v32, 31, v1
    s_lshl_b32 s62, s60, 15
    s_lshl_b32 s63, s59, 7
    s_add_u32 s62, s62, s63
    v_lshlrev_b32 v28, 12, v31
    v_lshl_add_u32 v28, v32, 2, v28
    v_add_u32 v28, s62, v28
    v_mov_b32 v29, {OOB}
    v_bfe_u32 v33, v32, 1, 2
    v_lshlrev_b32 v30, 10, v33
    v_lshl_add_u32 v30, v31, 8, v30
    v_lshrrev_b32 v33, 3, v32
    v_lshl_add_u32 v30, v33, 6, v30
    v_and_b32 v33, 1, v32
    v_lshl_add_u32 v30, v33, 5, v30
    s_mul_i32 s56, s59, 56
    s_add_u32 s56, s56, s60
    s_lshl_b32 s56, s56, 12
    s_add_u32 s56, s56, {WS_W2P}
    s_mov_b32 s57, {OOB}""")
    a.label("L_k1_pgo")
    PK = 200
    for i in range(16):
        a(f"buffer_load_dword v{PK+i}, v{28 + (i>>3)}, s[40:43], s{48+(i&7)} offen")
    a(f"""v_mov_b32 v36, 0
    v_mov_b32 v37, 0
    v_mov_b32 v38, 0
    v_mov_b32 v39, 0
    s_mul_i32 s64, s21, {L_KC[1]-L_KC[0]}
    s_add_u32 s64, s64, {L_KC[0]}
    s_cmp_lg_u32 s22, 0
    s_cbranch_scc1 L_k1_nozero
    v_cmp_gt_u32 vcc, 32, v1
    s_and_saveexec_b64 s[66:67], vcc
    v_add_u32 v40, s44, v5
    ds_write_b128 v40, v[36:39]
    v_cmp_gt_u32 vcc, 8, v1
    s_and_b64 exec, exec, vcc
    v_lshrrev_b32 v40, 1, v1
    v_mul_u32_u24 v40, {KC_STRIDE}, v40
    v_and_b32 v41, 1, v1
    v_lshl_add_u32 v40, v41, 4, v40
    v_add_u32 v40, s64, v40
    ds_write_b128 v40, v[36:39]
    s_mov_b64 exec, s[66:67]""")
    a.label("L_k1_nozero")
    a(f"""s_add_u32 s65, s64, s18
    v_add_u32 v40, s65, v5
    s_waitcnt vmcnt(20)
    ds_write_b128 v40, v[8:11] offset:32
    v_alignbit_b32 v44, v9, v8, 16
    v_alignbit_b32 v45, v10, v9, 16
    v_alignbit_b32 v46, v11, v10, 16
    v_alignbit_b32 v47, v12, v11, 16
    v_mov_b32 v48, v9
    v_mov_b32 v49, v10
    v_mov_b32 v50, v11
    v_mov_b32 v51, v12
    ds_write_b128 v40, v[44:47] offset:{32+KC_STRIDE}
    v_mov_b32 v52, v45
    v_mov_b32 v53, v46
    v_mov_b32 v54, v47
    v_alignbit_b32 v55, v13, v12, 16
    ds_write_b128 v40, v[48:51] offset:{32+2*KC_STRIDE}
    ds_write_b128 v40, v[52:55] offset:{32+3*KC_STRIDE}
    s_cmp_lg_u32 s22, 0
    s_cbranch_scc1 L_k1_nofix
    v_cmp_eq_u32 vcc, 0, v1
    s_and_saveexec_b64 s[66:67], vcc
    v_lshlrev_b32 v57, 16, v8
    v_mov_b32 v56, 0
    v_mov_b32 v58, 0
    v_mov_b32 v59, v8
    v_mov_b32 v60, v57
    v_mov_b32 v61, v44
    ds_write_b64 v40, v[56:57] offset:{24+KC_STRIDE}
    ds_write_b64 v40, v[58:59] offset:{24+2*KC_STRIDE}
    ds_write_b64 v40, v[60:61] offset:{24+3*KC_STRIDE}
    s_mov_b64 exec, s[66:67]""")
    a.label("L_k1_nofix")
    a(f"""v_add_u32 v41, 1, v2
    v_and_b32 v42, 3, v41
    v_mul_u32_u24 v42, {KC_STRIDE}, v42
    v_lshrrev_b32 v41, 2, v41
    v_lshl_add_u32 v41, v41, 3, v42
    v_lshlrev_b32 v42, 4, v3
    v_sub_u32 v41, v41, v42
    s_lshl_b32 s65, s22, 7
    s_add_u32 s68, s64, s65
    s_add_u32 s68, s68, 48
    v_add_u32 v41, s68, v41
    v_lshl_add_u32 v42, v2, 5, v42
    s_mul_i32 s68, s21, {L_U[1]}
    s_add_u32 s68, s68, {480-64}
    s_sub_u32 s68, s68, s65
    v_add_u32 v42, s68, v42""")
    ACC = 64
    for i in range(32): a(f"v_mov_b32 v{ACC+i}, 0")
    a("s_waitcnt vmcnt(19) lgkmcnt(0)\ns_barrier")
    AF = [96, 160]; BF = [128, 216]
    def reads(ph, T):
        return [f"ds_read_b64 v[{AF[ph]+4*T}:{AF[ph]+4*T+1}], v41 offset:{512*T+64*ph}",
                f"ds_read_b64 v[{AF[ph]+4*T+2}:{AF[ph]+4*T+3}], v41 offset:{512*T+64*ph+8}",
                f"ds_read_b128 v[{BF[ph]+4*T}:{BF[ph]+4*T+3}], v42 offset:{512*T+64*(1-ph)}"]
    allreads = [r for ph in range(2) for T in range(8) for r in reads(ph, T)]
    issued = 0
    def issue(k):
        nonlocal issued
        for _ in range(k):
            if issued < len(allreads):
                a(allreads[issued]); issued += 1
    issue(15)
    for ph in range(2):
        for T in range(8):
            need = (ph * 8 + T + 1) * 3
            out = issued - need
            a(f"s_waitcnt lgkmcnt({out})")
            for i in range(T + 1):
                a(f"v_mfma_f32_16x16x32_bf16 v[{ACC+4*T}:{ACC+4*T+3}], v[{AF[ph]+4*i}:{AF[ph]+4*i+3}], v[{BF[ph]+4*(T-i)}:{BF[ph]+4*(T-i)+3}], v[{ACC+4*T}:{ACC+4*T+3}]")
                if i < 3 and issued - need < 15: issue(1)
    a(f"""s_lshl_b32 s65, s20, 13
    s_add_u32 s65, s65, {L_RED}
    v_add_u32 v40, s65, v5""")
    for T in range(8):
        if T == 7: a("s_nop 7")
        a(f"ds_write_b128 v40, v[{ACC+4*T}:{ACC+4*T+3}] offset:{1024*T}")
    a(f"""s_lshl_b32 s65, s20, 10
    s_add_u32 s65, s65, {L_RED}
    v_add_u32 v40, s65, v5
    v_lshlrev_b32 v43, 5, v2
    v_lshrrev_b32 v44, 1, v3
    v_lshl_add_u32 v43, v44, 4, v43
    v_and_b32 v44, 1, v3
    v_lshlrev_b32 v44, 3, v44
    v_sub_u32 v43, v43, v44
    s_lshl_b32 s65, s20, 9
    s_add_u32 s65, s65, {512+8}
    v_add_u32 v43, s65, v43
    ds_read_b64 v[44:45], v43 offset:{L_U[0]}
    ds_read_b64 v[46:47], v43 offset:{L_U[1]}
    s_waitcnt lgkmcnt(2)
    s_barrier""")
    P = 96
    for w in range(8): a(f"ds_read_b128 v[{P+4*w}:{P+4*w+3}], v40 offset:{8192*w}")
    a("s_lshl_b32 s68, s23, 16\ns_and_b32 s69, s23, 0xffff0000")
    a("s_waitcnt vmcnt(16) lgkmcnt(8)")
    for c in range(2):
        d0, d1 = 44 + 2*c, 45 + 2*c
        a(f"v_lshlrev_b32 v{128+2*3+c}, 16, v{d0}\nv_and_b32 v{128+2*2+c}, 0xffff0000, v{d0}\nv_lshlrev_b32 v{128+2*1+c}, 16, v{d1}\nv_and_b32 v{128+0+c}, 0xffff0000, v{d1}")
    for r in range(4):
        a(f"v_lshlrev_b32 v{136+2*r}, 16, v{16+r}\nv_and_b32 v{137+2*r}, 0xffff0000, v{16+r}")
        a(f"v_pk_fma_f32 v[{144+2*r}:{145+2*r}], v[{136+2*r}:{137+2*r}], v[{20+2*r}:{21+2*r}], v[{20+2*r}:{21+2*r}] op_sel:[0,0,1] op_sel_hi:[1,0,1]")
    a("s_waitcnt lgkmcnt(0)")
    for c in range(2):
        b = P + 16*c
        for h in range(2):
            a(f"v_pk_add_f32 v[{b+2*h}:{b+2*h+1}], v[{b+2*h}:{b+2*h+1}], v[{b+4+2*h}:{b+5+2*h}]")
            a(f"v_pk_add_f32 v[{b+8+2*h}:{b+9+2*h}], v[{b+8+2*h}:{b+9+2*h}], v[{b+12+2*h}:{b+13+2*h}]")
        for r in range(4):
            a(f"v_add_f32 v{152+2*r+c}, v{b+r}, v{b+8+r}")
    for r in range(4):
        a(f"v_pk_fma_f32 v[{152+2*r}:{153+2*r}], v[{128+2*r}:{129+2*r}], s[68:69], v[{152+2*r}:{153+2*r}]")
        a(f"v_pk_fma_f32 v[{152+2*r}:{153+2*r}], v[{144+2*r}:{145+2*r}], v[{152+2*r}:{153+2*r}], v[{136+2*r}:{137+2*r}]")
        a(f"v_cvt_pk_bf16_f32 v{160+r}, v{152+2*r}, v{153+2*r}")
    a(f"""v_lshrrev_b32 v43, 1, v2
    v_lshlrev_b32 v43, 15, v43
    v_and_b32 v44, 1, v2
    v_lshl_add_u32 v43, v44, 6, v43
    v_lshl_add_u32 v43, v3, 4, v43
    s_lshl_b32 s65, s20, 18
    s_lshl_b32 s70, s16, 7
    s_add_u32 s65, s65, s70
    s_add_u32 s65, s65, {WS_HD}
    buffer_store_dwordx4 v[160:163], v43, s[28:31], s65 offen""")
    a("s_cmp_ge_u32 s2, 168\ns_cbranch_scc1 L_k1_done")
    a("s_mov_b32 s70, 0x05040100\ns_mov_b32 s71, 0x07060302\ns_waitcnt vmcnt(1)")
    for st in range(2):
        for c in range(2):
            for q in range(4):
                a(f"v_perm_b32 v{96+st*8+c*4+q}, v{PK+st*8+2*q+1}, v{PK+st*8+2*q}, s{70+c}")
    for st in range(2):
        a(f"buffer_store_dwordx4 v[{96+st*8}:{99+st*8}], v30, s[28:31], s{56+st} offen")
        a(f"buffer_store_dwordx4 v[{100+st*8}:{103+st*8}], v30, s[28:31], s{56+st} offen offset:16")
    a("s_cmp_ge_u32 s2, 56\ns_cbranch_scc1 L_k1_done")
    a("s_mov_b32 s72, 0x3f803f80\nv_mov_b32 v120, 0\nv_mov_b32 v121, 0")
    for st in range(2):
        for q in range(4):
            for c in range(2):
                a(f"v_dot2_f32_bf16 v{120+c}, v{96+st*8+c*4+q}, s72, v{120+c}")
    a("s_nop 2")
    for c in range(2):
        xreduce(a, 120+c, 122, 16); xreduce(a, 120+c, 122, 32)
    a(f"""s_lshl_b32 s65, s20, 7
    s_add_u32 s65, s65, {L_CS}
    v_lshlrev_b32 v43, 3, v2
    v_add_u32 v43, s65, v43
    ds_write_b64 v43, v[120:121]
    s_waitcnt lgkmcnt(0)
    s_barrier
    s_cmp_lg_u32 s20, 0
    s_cbranch_scc1 L_k1_done
    v_and_b32 v43, 31, v1
    v_lshlrev_b32 v43, 2, v43
    v_add_u32 v44, {L_CS}, v43""")
    for w in range(8): a(f"ds_read_b32 v{120+w}, v44 offset:{128*w}")
    a("s_waitcnt lgkmcnt(0)")
    for w in range(1, 8): a(f"v_add_f32 v120, v120, v{120+w}")
    a(f"""s_lshl_b32 s65, s2, 7
    s_add_u32 s65, s65, {WS_CS}
    buffer_store_dword v120, v43, s[28:31], s65 offen""")
    a.label("L_k1_done")
    tail(a, name, 1, "s[28:31]", 248, 248)
    return a.text()

K2_LDS = 112 * 1024
def k2():
    a = A(); name = "k2_gemm1_kernel"
    head(a, name, 256)
    a(f"""s_load_dwordx2 s[4:5], s[0:1], 88
    v_lshrrev_b32 v4, 6, v0
    v_and_b32 v1, 63, v0
    v_readfirstlane_b32 s20, v4
    v_and_b32 v2, 15, v0
    v_bfe_u32 v3, v0, 4, 2
    s_and_b32 s16, s2, 7
    s_lshr_b32 s17, s2, 3
    s_lshr_b32 s18, s16, 1
    s_lshl_b32 s18, s18, 2
    s_lshr_b32 s19, s17, 3
    s_add_u32 s18, s18, s19
    s_and_b32 s19, s16, 1
    s_lshl_b32 s19, s19, 3
    s_and_b32 s21, s17, 7
    s_add_u32 s19, s19, s21
    v_lshlrev_b32 v5, 4, v1
    v_lshlrev_b32 v6, 9, v3
    v_lshl_add_u32 v6, v2, 3, v6
    s_lshl_b32 s21, s18, 2
    s_add_u32 s21, s21, s20
    s_lshl_b32 s22, s21, 15
    s_add_u32 s22, s22, {WS_HD}
    s_mul_i32 s23, s19, {112*1024}
    s_add_u32 s23, s23, {WS_W1P}
    s_mul_i32 s24, s20, 7168
    s_add_u32 s23, s23, s24
    s_mul_i32 s25, s19, 448
    s_add_u32 s25, s25, {WS_CS}
    v_lshlrev_b32 v7, 4, v3
    s_mov_b32 s50, 0x3f803f80
    s_waitcnt lgkmcnt(0)""")
    srd(a, 28, 4, WS_BYTES)
    CSR = 8
    ACC = 40
    ST = 96
    HR = 128
    for ft in range(7): a(f"buffer_load_dwordx4 v[{CSR+4*ft}:{CSR+4*ft+3}], v7, s[28:31], s25 offen offset:{64*ft}")
    def group_loads(G):
        L = []
        L.append(f"s_add_u32 m0, s24, {G*28672}\ns_add_u32 s26, s23, {G*28672}")
        for ft in range(4): L.append(f"buffer_load_dwordx4 v5, s[28:31], s26 offen offset:{1024*ft} lds")
        L.append(f"s_add_u32 m0, s24, {G*28672+4096}\ns_add_u32 s26, s23, {G*28672+4096}")
        for ft in range(3): L.append(f"buffer_load_dwordx4 v5, s[28:31], s26 offen offset:{1024*ft} lds")
        for ks in range(4*G, 4*G+4):
            if ks % 2 == 0: L.append(f"s_add_u32 s27, s22, {(ks>>1)*4096}")
            for j in range(4):
                r = HR + 8*ks + 2*j
                L.append(f"buffer_load_dwordx2 v[{r}:{r+1}], v6, s[28:31], s27 offen offset:{(ks&1)*2048 + j*128}")
        return L
    for G in range(2):
        for x in group_loads(G): a(x)
    for i in range(56): a(f"v_mov_b32 v{ACC+i}, 0")
    for i in range(4): a(f"v_mov_b32 v{ST+i}, 0")
    def rd(ks): return [f"ds_read_b128 a[{(ks&1)*28+4*ft}:{(ks&1)*28+4*ft+3}], v5 offset:{(ks*7+ft)*1024 - (0 if ks < 9 else 0)}" for ft in range(7)]
    a("v_add_u32 v100, 57344, v5")
    def rd(ks):
        o = []
        for ft in range(7):
            off = (ks*7+ft)*1024
            base = "v5"
            if off >= 57344: off -= 57344; base = "v100"
            o.append(f"ds_read_b128 a[{(ks&1)*28+4*ft}:{(ks&1)*28+4*ft+3}], {base} offset:{off}")
        return o
    def swaps(ks):
        h = HR + 8*ks
        return [f"v_swap_b32 v{h+1}, v{h+4}", f"v_swap_b32 v{h+3}, v{h+6}"]
    a("s_waitcnt vmcnt(23)\ns_barrier")
    for x in rd(0): a(x)
    for x in swaps(0): a(x)
    a("s_nop 1")
    for ks in range(16):
        fill = []
        G = ks // 4
        pre = []
        if ks % 4 == 3 and ks < 15:
            pre.append(f"s_waitcnt vmcnt({23 if G < 2 else 0})\ns_barrier")
        if ks < 15:
            fill += rd(ks+1) + swaps(ks+1)
        if ks % 4 == 0 and G < 2:
            fill += group_loads(G + 2)
        h = HR + 8*ks
        dots = []
        for q in range(4):
            for t in range(2):
                dots.append(f"v_dot2_f32_bf16 v{ST+t}, v{h+4*t+q}, s50, v{ST+t}")
                dots.append(f"v_dot2_f32_bf16 v{ST+2+t}, v{h+4*t+q}, v{h+4*t+q}, v{ST+2+t}")
        fill = fill + dots
        a("s_waitcnt lgkmcnt(0)")
        for x in pre: a(x)
        nf = len(fill); k = 0
        for m in range(14):
            ft, t = m // 2, m % 2
            ac = ACC + (ft*2+t)*4
            a(f"v_mfma_f32_16x16x32_bf16 v[{ac}:{ac+3}], a[{(ks&1)*28+4*ft}:{(ks&1)*28+4*ft+3}], v[{h+4*t}:{h+4*t+3}], v[{ac}:{ac+3}]")
            tgt = (nf * (m + 1) + 13) // 14
            while k < tgt: a(fill[k]); k += 1
    a("s_nop 3")
    for i in range(4):
        xreduce(a, ST+i, 101, 16); xreduce(a, ST+i, 101, 32)
    for t in range(2):
        b = 104 + 4*t
        a(f"""v_mul_f32 v{ST+t}, 0x3b000000, v{ST+t}
        v_mul_f32 v{ST+2+t}, 0x3b000000, v{ST+2+t}
        v_fma_f32 v{ST+2+t}, -v{ST+t}, v{ST+t}, v{ST+2+t}
        v_max_f32 v{ST+2+t}, 0, v{ST+2+t}""")
        ln_scalars(a, ST+t, ST+2+t, 101, 102, b, b+1)
        a(f"v_mul_f32 v{b+2}, 0xbfb8aa3b, v{b}")
    a(f"""s_mul_i32 s32, s21, {2*57344}
    s_add_u32 s32, s32, {WS_HP}
    s_mul_i32 s33, s19, 7""")
    for ft in range(7):
        a(f"""s_add_u32 s34, s33, {ft}
        s_lshr_b32 s35, s34, 1
        s_lshl_b32 s35, s35, 10
        s_and_b32 s34, s34, 1
        s_lshl_b32 s34, s34, 3
        s_add_u32 s34, s34, s35
        s_add_u32 s{36+ft}, s34, s32""")
    a("v_add_u32 v100, 57344, v5")
    T0 = 112
    for ft in range(7):
        for t in range(2):
            ac = ACC + (ft*2+t)*4; b = 104 + 4*t
            tt = T0 + ((ft*2+t) % 2) * 8
            for h in range(2):
                a(f"v_pk_fma_f32 v[{ac+2*h}:{ac+2*h+1}], v[{CSR+4*ft+2*h}:{CSR+4*ft+2*h+1}], v[{b}:{b+1}], v[{ac+2*h}:{ac+2*h+1}] op_sel:[0,1,0] op_sel_hi:[1,1,1] neg_lo:[0,1,0] neg_hi:[0,1,0]")
            for h in range(2):
                a(f"v_pk_mul_f32 v[{tt+2*h}:{tt+2*h+1}], v[{ac+2*h}:{ac+2*h+1}], v[{b+2}:{b+3}] op_sel_hi:[1,0]")
            for r in range(4): a(f"v_exp_f32 v{tt+r}, v{tt+r}")
            for h in range(2):
                a(f"v_pk_mul_f32 v[{ac+2*h}:{ac+2*h+1}], v[{ac+2*h}:{ac+2*h+1}], v[{b}:{b+1}] op_sel_hi:[1,0]")
            for h in range(2):
                a(f"v_pk_add_f32 v[{tt+2*h}:{tt+2*h+1}], v[{tt+2*h}:{tt+2*h+1}], 1.0 op_sel_hi:[1,0]")
            for r in range(4): a(f"v_rcp_f32 v{tt+r}, v{tt+r}")
            a("s_nop 0")
            for h in range(2):
                a(f"v_pk_mul_f32 v[{ac+2*h}:{ac+2*h+1}], v[{ac+2*h}:{ac+2*h+1}], v[{tt+2*h}:{tt+2*h+1}]")
            a(f"v_cvt_pk_bf16_f32 v{tt+4}, v{ac}, v{ac+1}\nv_cvt_pk_bf16_f32 v{tt+5}, v{ac+2}, v{ac+3}")
            a(f"buffer_store_dwordx2 v[{tt+4}:{tt+5}], {'v5' if t == 0 else 'v100'}, s[28:31], s{36+ft} offen")
    tail(a, name, 2, "s[28:31]", 256+56, 256)
    return a.text()

K3_LDS = 48 * 1024
def k3():
    a = A(); name = "k3_gemm2_kernel"
    head(a, name, 256)
    a(f"""s_load_dwordx2 s[4:5], s[0:1], 88
    s_load_dwordx2 s[6:7], s[0:1], 72
    v_lshrrev_b32 v4, 6, v0
    v_and_b32 v1, 63, v0
    v_readfirstlane_b32 s20, v4
    v_and_b32 v2, 15, v0
    v_bfe_u32 v3, v0, 4, 2
    s_and_b32 s16, s2, 7
    s_lshr_b32 s17, s2, 3
    s_lshr_b32 s18, s16, 1
    s_lshl_b32 s18, s18, 3
    s_lshr_b32 s19, s17, 2
    s_add_u32 s18, s18, s19
    s_and_b32 s19, s16, 1
    s_lshl_b32 s19, s19, 2
    s_and_b32 s21, s17, 3
    s_add_u32 s19, s19, s21
    v_lshlrev_b32 v5, 4, v1
    s_mul_i32 s22, s20, {14*1024}
    s_add_u32 s22, s22, {WS_HP}
    s_lshl_b32 s23, s18, 2""")
    for u in range(4):
        a(f"""s_add_u32 s24, s20, {u}
        s_and_b32 s24, s24, 3
        s_add_u32 s24, s24, s23
        s_mul_i32 s24, s24, 57344
        s_add_u32 s{40+u}, s24, s22""")
    a(f"""s_mul_i32 s44, s19, 56
    s_mul_i32 s24, s20, 14
    s_add_u32 s44, s44, s24
    s_lshl_b32 s44, s44, 12
    s_add_u32 s44, s44, {WS_W2P}
    s_add_u32 s25, s23, s20
    s_lshr_b32 s26, s25, 1
    s_and_b32 s27, s25, 1
    s_lshl_b32 s45, s26, 15
    s_lshl_b32 s24, s19, 12
    s_add_u32 s45, s45, s24
    s_lshl_b32 s24, s27, 2
    s_add_u32 s45, s45, s24
    s_add_u32 s45, s45, {WS_HD}
    v_lshlrev_b32 v6, 10, v3
    v_lshl_add_u32 v6, v2, 3, v6
    s_waitcnt lgkmcnt(0)""")
    srd(a, 28, 4, WS_BYTES); srd(a, 32, 6, 2097152)
    HRES = 8
    for i in range(8): a(f"buffer_load_dword v{HRES+i}, v6, s[28:31], s45 offen offset:{128*i}")
    ACC = 16
    HF = 96
    D = 7
    def loads(k):
        L = []
        sl = k % D
        if k % 4 == 0 and k > 0:
            for u in range(4): L.append(f"s_add_u32 s{40+u}, s{40+u}, 4096")
        for u in range(4):
            L.append(f"buffer_load_dwordx4 a[{sl*16+4*u}:{sl*16+4*u+3}], v5, s[28:31], s44 offen offset:{1024*u}")
            L.append(f"buffer_load_dwordx4 v[{HF+sl*16+4*u}:{HF+sl*16+4*u+3}], v5, s[28:31], s{40+u} offen offset:{1024*(k%4)}")
        L.append("s_add_u32 s44, s44, 4096")
        return L
    for k in range(D):
        for x in loads(k): a(x)
    for i in range(64): a(f"v_mov_b32 v{ACC+i}, 0")
    for k in range(14):
        sl = k % D
        rem = min(D - 1, 13 - k)
        a(f"s_waitcnt vmcnt({8*rem})")
        for t in range(4):
            for u in range(4):
                ac = ACC + (t*4+u)*4
                a(f"v_mfma_f32_16x16x32_bf16 v[{ac}:{ac+3}], a[{sl*16+4*t}:{sl*16+4*t+3}], v[{HF+sl*16+4*u}:{HF+sl*16+4*u+3}], v[{ac}:{ac+3}]")
        if k + D < 14:
            for x in loads(k + D): a(x)
    for u in range(1, 4):
        a(f"""s_add_u32 s24, s20, {u}
        s_and_b32 s24, s24, 3
        s_mul_i32 s24, s24, 12288
        s_add_u32 s24, s24, {(u-1)*4096}
        v_add_u32 v{80+u}, s24, v5""")
    a("s_mul_i32 s24, s20, 12288\nv_add_u32 v80, s24, v5\ns_nop 4")
    for u in range(1, 4):
        for t in range(4):
            ac = ACC + (t*4+u)*4
            a(f"ds_write_b128 v{80+u}, v[{ac}:{ac+3}] offset:{1024*t}")
    a("s_waitcnt lgkmcnt(0)\ns_barrier")
    for j in range(12): a(f"ds_read_b128 v[{96+4*j}:{99+4*j}], v80 offset:{1024*j}")
    a("""s_lshl_b32 s24, s26, 15
    s_lshl_b32 s25, s27, 10
    s_add_u32 s24, s24, s25
    s_lshl_b32 s25, s19, 7
    s_add_u32 s24, s24, s25
    v_lshlrev_b32 v7, 11, v2
    v_lshl_add_u32 v7, v3, 5, v7""")
    for t in range(4):
        a(f"s_waitcnt lgkmcnt({3-t})" if True else "")
        ac = ACC + (t*4)*4
        for h in range(2):
            a(f"v_lshlrev_b32 v{84+2*h}, 16, v{HRES+2*t+h}\nv_and_b32 v{85+2*h}, 0xffff0000, v{HRES+2*t+h}")
            a(f"v_pk_add_f32 v[{ac+2*h}:{ac+2*h+1}], v[{ac+2*h}:{ac+2*h+1}], v[{96+4*t+2*h}:{97+4*t+2*h}]")
            a(f"v_pk_add_f32 v[{112+4*t+2*h}:{113+4*t+2*h}], v[{112+4*t+2*h}:{113+4*t+2*h}], v[{128+4*t+2*h}:{129+4*t+2*h}]")
            a(f"v_pk_add_f32 v[{ac+2*h}:{ac+2*h+1}], v[{ac+2*h}:{ac+2*h+1}], v[{112+4*t+2*h}:{113+4*t+2*h}]")
            a(f"v_pk_add_f32 v[{ac+2*h}:{ac+2*h+1}], v[{ac+2*h}:{ac+2*h+1}], v[{84+2*h}:{85+2*h}]")
            a(f"v_cvt_pk_bf16_f32 v{88+2*t+h}, v{ac+2*h}, v{ac+2*h+1}")
    a("buffer_store_dwordx4 v[88:91], v7, s[32:35], s24 offen\nbuffer_store_dwordx4 v[92:95], v7, s[32:35], s24 offen offset:16")
    tail(a, name, 3, "s[28:31]", 208+112, 208)
    return a.text()

HEADER = open("sequential_preLN__ssm_conv_h3__dense_activation_silu__prompt.s.ref").read().split("; Override launch")[0]
def main():
    o = HEADER
    o += f"; @launch kernel=k0_prep_kernel grid=(256,1,1) block=(256,1,1) lds=0\n"
    o += f"; @launch kernel=k1_conv_kernel grid=(256,1,1) block=(512,1,1) lds={K1_LDS}\n"
    o += f"; @launch kernel=k2_gemm1_kernel grid=(256,1,1) block=(256,1,1) lds={K2_LDS}\n"
    o += f"; @launch kernel=k3_gemm2_kernel grid=(256,1,1) block=(256,1,1) lds={K3_LDS}\n"
    o += '.amdgcn_target "amdgcn-amd-amdhsa--gfx950"\n.text\n'
    o += k0() + k1() + k2() + k3()
    print(o)
main()
```

```python
import sys
STAMP = "stamp" in sys.argv[1:]
STOP = 99
OPT = {"nt": 1, "fast": 0}
for x in sys.argv[1:]:
    if x.startswith("stop="): STOP = int(x[5:])
    elif "=" in x: k, v = x.split("="); OPT[k] = int(v)
NT = " nt" if OPT["nt"] else ""

WS_KVT = 0
WS_XD  = 2 << 20
WS_ST  = 4 << 20
WS_HT  = 6 << 20
WS_W2P = 10 << 20
WS_HP  = 12 << 20
WS_F1  = 20 << 20
WS_FX  = WS_F1 + 0x20000
WS_FC  = WS_F1 + 0x30000
WS_F2  = WS_F1 + 0x40000
WS_F3  = WS_F1 + 0x80000
WS_STAMP = 0x4000000
WS_BYTES = 268435456
OOB = 0x7FF00000
SPIN = 40000

W1_EARLY = 0
L_RED = 28672
L_XS = L_RED + 65536
L_ST = L_XS + 8192
L_U = [114688, 114688 + 4608]
L_KC = [123904, 123904 + 16640]
KC_STRIDE = 4160
L_CNT = 157184
L_MODE = 157188
L_HR = 114688
L_CS = 0
L_SX = 1024
LDS_BYTES = 163840
NAME = "sequential_preLN__ssm_conv_h3__dense_activation_silu__prompt_kernel"

class A:
    def __init__(s): s.l = []; s.uid = 0
    def __call__(s, txt):
        for ln in txt.strip("\n").split("\n"):
            if ln.strip(): s.l.append(("    " + ln.strip()) if not ln.strip().endswith(":") else ln.strip())
    def label(s, n): s.l.append(n + ":")
    def raw(s, t): s.l.append(t)
    def new(s, p="L"): s.uid += 1; return f"{p}_{s.uid}"
    def text(s): return "\n".join(s.l) + "\n"
a = A()
def srd(d, b, n):
    a(f"s_mov_b32 s{d}, s{b}\ns_mov_b32 s{d+1}, s{b+1}\ns_mov_b32 s{d+2}, {n}\ns_mov_b32 s{d+3}, 0x00020000")
def mark(i):
    if STAMP: a(f"s_memrealtime s[98:99]\ns_waitcnt lgkmcnt(0)\nv_writelane_b32 v15, s98, {i}")
X, K, V, SK, SSM, W1, W2, OUT, DBG, WS = [f"s[{32+4*i}:{35+4*i}]" for i in range(10)]

def tag_load():
    a(f"v_mov_b32 v4, 0\nbuffer_load_dwordx2 v[6:7], v4, {DBG}, 0 offen sc1")
def tag_check():
    l0, l1 = a.new("Ltag"), a.new("Ltagd")
    a(f"s_mov_b32 s72, {SPIN}")
    a.label(l0)
    a(f"""v_readfirstlane_b32 s73, v6
    s_cmp_lg_u32 s73, 0
    s_cbranch_scc1 {l1}
    s_sub_u32 s72, s72, 1
    s_cmp_eq_u32 s72, 0
    s_cbranch_scc1 {l1}
    v_mov_b32 v4, 0
    buffer_load_dwordx2 v[6:7], v4, {DBG}, 0 offen sc1
    s_waitcnt vmcnt(0)
    s_branch {l0}""")
    a.label(l1)
def flag_store(soff):
    a(f"""v_mov_b32 v4, 0
    s_mov_b64 exec, 1
    buffer_store_dwordx2 v[6:7], v4, {WS}, {soff} offen sc1
    s_mov_b64 exec, -1""")
def polln(sbase, n, vt=184, preissued=False):
    M = ["s[4:5]", "s[6:7]", "s[8:9]", "s[16:17]"]
    l0, l1, l2 = a.new("Lpn"), a.new("Lpnd"), a.new("Lpnc")
    for i in range(n): a(f"s_mov_b64 {M[i]}, -1")
    a(f"s_mov_b32 s72, {SPIN}")
    if preissued: a(f"s_branch {l2}")
    a.label(l0)
    for i in range(n):
        sk = a.new("Lsk")
        a(f"s_mov_b64 exec, {M[i]}\ns_add_u32 s77, {sbase}, {8192*i}\ns_cbranch_execz {sk}\nbuffer_load_dwordx2 v[{vt+2*i}:{vt+2*i+1}], v14, {WS}, s77 offen sc1")
        a.label(sk)
    a("s_mov_b64 exec, -1")
    a.label(l2)
    a("s_waitcnt vmcnt(0)")
    for i in range(n):
        a(f"v_cmp_ne_u64 vcc, v[{vt+2*i}:{vt+2*i+1}], v[6:7]\ns_and_b64 {M[i]}, {M[i]}, vcc")
    a(f"s_mov_b64 s[10:11], {M[0]}")
    for i in range(1, n): a(f"s_or_b64 s[10:11], s[10:11], {M[i]}")
    a(f"""s_sub_u32 s72, s72, 1
    s_cmp_eq_u32 s72, 0
    s_cbranch_scc1 {l1}
    s_cmp_lg_u64 s[10:11], 0
    s_cbranch_scc1 {l0}""")
    a.label(l1)
def polln_pre(sbase, n, vt=184):
    for i in range(n): a(f"s_add_u32 s77, {sbase}, {8192*i}\nbuffer_load_dwordx2 v[{vt+2*i}:{vt+2*i+1}], v14, {WS}, s77 offen sc1")

def mode_read(vt):
    a(f"v_mov_b32 v{vt}, {L_MODE}\nds_read_b32 v{vt}, v{vt}")
def mode_get(vt):
    a(f"s_waitcnt lgkmcnt(0)\nv_readfirstlane_b32 s3, v{vt}")
def dual(stores):
    lf, ld = a.new("Lfast"), a.new("Ldual")
    a(f"s_cmp_eq_u32 s3, 1\ns_cbranch_scc1 {lf}")
    for x in stores: a(x + (" sc1" if x.startswith("buffer_store") else ""))
    a(f"s_branch {ld}")
    a.label(lf)
    for x in stores: a(x)
    a.label(ld)
W2A, W2B = 192, 136
def w2reg(kk): return W2A + 8*kk if kk < 8 else W2B + 8*(kk-8)
def w2_loads(k0, k1):
    L = []
    for kk in range(k0, k1):
        b = w2reg(kk)
        for t in range(2):
            L.append(f"s_add_u32 s74, s31, {(kk>>1)*4096}\nbuffer_load_dwordx4 v[{b+4*t}:{b+4*t+3}], v5, {WS}, s74 offen offset:{(kk&1)*2048 + t*1024}" + ("" if OPT.get("plain", 1) else " sc1"))
    return L
def w1_pattern(vd, sp):
    a(f"s_lshl_b32 s77, {sp}, 6\nv_add_u32 v{vd}, s77, v1\nv_mul_u32_u24 v4, 4682, v{vd}\nv_lshrrev_b32 v4, 16, v4\nv_lshlrev_b32 v{vd}, 4, v{vd}\ns_movk_i32 s77, 3360\nv_mad_u32_u24 v{vd}, v4, s77, v{vd}")

def kc_build():
    lnf = a.new("Lnofix")
    a(f"""s_lshl_b32 s72, s79, 10
    s_add_u32 s72, s72, s80
    v_add_u32 v40, s72, v5
    ds_write_b128 v40, v[16:19] offset:32
    v_alignbit_b32 v24, v17, v16, 16
    v_alignbit_b32 v25, v18, v17, 16
    v_alignbit_b32 v26, v19, v18, 16
    v_alignbit_b32 v27, v20, v19, 16
    v_mov_b32 v28, v17
    v_mov_b32 v29, v18
    v_mov_b32 v30, v19
    v_mov_b32 v31, v20
    ds_write_b128 v40, v[24:27] offset:{32+KC_STRIDE}
    v_mov_b32 v32, v25
    v_mov_b32 v33, v26
    v_mov_b32 v34, v27
    v_alignbit_b32 v35, v21, v20, 16
    ds_write_b128 v40, v[28:31] offset:{32+2*KC_STRIDE}
    ds_write_b128 v40, v[32:35] offset:{32+3*KC_STRIDE}
    s_cmp_lg_u32 s79, 0
    s_cbranch_scc1 {lnf}
    s_mov_b64 exec, 1
    v_lshlrev_b32 v37, 16, v16
    v_mov_b32 v36, 0
    v_mov_b32 v38, 0
    v_mov_b32 v39, v16
    v_mov_b32 v42, v37
    v_mov_b32 v43, v24
    ds_write_b64 v40, v[36:37] offset:{24+KC_STRIDE}
    ds_write_b64 v40, v[38:39] offset:{24+2*KC_STRIDE}
    ds_write_b64 v40, v[42:43] offset:{24+3*KC_STRIDE}
    s_mov_b64 exec, -1""")
    a.label(lnf)
def ssm_load():
    a(f"buffer_load_dwordx4 v[16:19], v5, {SSM}, s81 offen{NT}\nbuffer_load_dwordx2 v[20:21], v5, {SSM}, s81 offen offset:16{NT}")
def zero_pads():
    lnz = a.new("Lnz")
    a(f"""s_cmp_lg_u32 s79, 0
    s_cbranch_scc1 {lnz}
    v_mov_b32 v44, 0
    v_mov_b32 v45, 0
    v_mov_b32 v46, 0
    v_mov_b32 v47, 0
    s_mov_b32 exec_hi, 0
    v_add_u32 v43, s82, v5
    ds_write_b128 v43, v[44:47]
    s_mov_b64 exec, 0xff
    v_lshrrev_b32 v42, 1, v1
    v_mul_u32_u24 v42, {KC_STRIDE}, v42
    v_and_b32 v4, 1, v1
    v_lshl_add_u32 v42, v4, 4, v42
    v_add_u32 v42, s80, v42
    ds_write_b128 v42, v[44:47]
    v_mov_b32 v42, {L_CNT}
    ds_write_b64 v42, v[44:45]
    s_mov_b64 exec, -1""")
    a.label(lnz)

a.raw(f".globl {NAME}\n.p2align 8\n.type {NAME},@function\n{NAME}:")
a("""s_cmp_ge_u32 s2, 256
s_cbranch_scc1 L_end
s_load_dwordx16 s[4:19], s[0:1], 0
s_load_dwordx8 s[20:27], s[0:1], 64""")
if STAMP: a("v_mov_b32 v15, 0\ns_memrealtime s[96:97]")
a(f"""v_lshrrev_b32 v4, 6, v0
v_and_b32 v1, 63, v0
v_readfirstlane_b32 s28, v4
v_and_b32 v2, 15, v0
v_bfe_u32 v3, v0, 4, 2
v_lshlrev_b32 v5, 4, v1
v_lshlrev_b32 v14, 7, v1
s_and_b32 s29, s2, 7
s_lshr_b32 s30, s2, 3
v_and_b32 v10, 31, v0
v_bfe_u32 v11, v0, 5, 3
s_lshl_b32 s72, s30, 16
s_lshl_b32 s73, s29, 7
s_add_u32 s72, s72, s73
v_lshlrev_b32 v12, 13, v11
v_lshl_add_u32 v12, v10, 2, v12
v_add_u32 v12, s72, v12
s_movk_i32 s74, 4096
s_lshr_b32 s78, s28, 2
s_and_b32 s79, s28, 3
s_mul_i32 s80, s78, {L_KC[1]-L_KC[0]}
s_add_u32 s80, s80, {L_KC[0]}
s_mul_i32 s82, s78, {L_U[1]-L_U[0]}
s_add_u32 s82, s82, {L_U[0]}
s_lshl_b32 s83, s29, 5
s_add_u32 s83, s83, s30
s_lshl_b32 s81, s83, 1
s_add_u32 s81, s81, s78
s_lshl_b32 s81, s81, 12
s_lshl_b32 s72, s79, 10
s_add_u32 s81, s81, s72
s_cmp_ge_u32 s28, 4
s_cbranch_scc1 L_aux""")
LD = "" if OPT.get("plain", 1) else " sc1"
a(f"""v_subrev_u32 v13, 3072, v12
v_mov_b32 v4, {OOB}
v_cmp_gt_i32 vcc, 0, v13
s_lshl_b32 s75, s29, 9
v_lshlrev_b32 v24, 4, v10
v_cndmask_b32 v13, v13, v4, vcc
s_waitcnt lgkmcnt(0)""")
srd(36, 6, 2097152); srd(64, 24, 256)
lnt = a.new("Lnotag")
a(f"""s_or_b32 s72, s2, s28
s_cmp_lg_u32 s72, 0
s_cbranch_scc1 {lnt}
s_memrealtime s[72:73]
s_waitcnt lgkmcnt(0)
s_or_b32 s72, s72, 1
v_mov_b32 v6, s72
v_mov_b32 v7, s73
v_mov_b32 v4, 0
s_mov_b64 exec, 1
buffer_store_dwordx2 v[6:7], v4, {DBG}, 0 offen sc1
s_mov_b64 exec, -1""")
a.label(lnt)
KR, VR = 48, 60
for r in range(3): a(f"buffer_load_dword v{KR+r}, v13, {K}, 0 offen offset:{1024*r}{NT}")
for r in range(8): a(f"buffer_load_dword v{KR+3+r}, v12, {K}, {'0' if r<4 else 's74'} offen offset:{1024*(r%4)}{NT}")
srd(44, 10, 4096)
a(f"buffer_load_dwordx4 v[76:79], v24, {SK}, s75 offen")
srd(40, 8, 2097152)
for r in range(8): a(f"buffer_load_dword v{VR+r}, v12, {V}, {'0' if r<4 else 's74'} offen offset:{1024*(r%4)}{NT}")
srd(48, 12, 2097152); srd(68, 26, WS_BYTES)
ssm_load()
srd(52, 18, 1835008); srd(60, 22, 2097152); srd(56, 20, 1835008)
zero_pads()
a(f"""v_and_b32 v4, 7, v10
v_xor_b32 v4, v4, v11
v_lshlrev_b32 v22, 8, v10
v_lshl_add_u32 v22, v4, 4, v22
v_add_u32 v22, {L_RED}, v22
v_lshrrev_b32 v23, 3, v1
v_lshrrev_b32 v4, 4, v1
v_and_b32 v13, 7, v1
v_xor_b32 v4, v4, v13
v_lshlrev_b32 v4, 4, v4
v_lshl_add_u32 v4, v23, 7, v4
v_lshlrev_b32 v13, 4, v13
v_lshl_add_u32 v13, v23, 12, v13
s_lshl_b32 s72, s28, 11
s_add_u32 s72, s72, {L_RED}
v_add_u32 v23, s72, v4
v_xor_b32 v12, 64, v23
s_lshl_b32 s72, s29, 18
s_lshl_b32 s73, s30, 7
s_add_u32 s90, s72, s73
s_lshl_b32 s72, s28, 16
s_add_u32 s90, s90, s72
s_add_u32 s90, s90, {WS_KVT}
s_add_u32 s91, s90, 32768
s_getreg_b32 s95, hwreg(HW_REG_XCC_ID)
s_and_b32 s95, s95, 0xff""")
mark(1)
a("s_waitcnt vmcnt(10)")
tag_load()
WPp = 80
for j in range(4):
    s0, s1 = 76 + (j >> 1), 78 + (j >> 1)
    if j & 1: a(f"v_and_b32 v{WPp+2*j}, 0xffff0000, v{s0}\nv_and_b32 v{WPp+1+2*j}, 0xffff0000, v{s1}")
    else:     a(f"v_lshlrev_b32 v{WPp+2*j}, 16, v{s0}\nv_lshlrev_b32 v{WPp+1+2*j}, 16, v{s1}")
KU = 88
for r in range(11): a(f"v_lshlrev_b32 v{KU+2*r}, 16, v{KR+r}\nv_and_b32 v{KU+2*r+1}, 0xffff0000, v{KR+r}")
O = 112
for st in range(4):
    for r in range(8):
        o = O + 2*r; ku = KU + 2*(r + st); w = WPp + 2*(3 - st)
        if st == 0: a(f"v_pk_mul_f32 v[{o}:{o+1}], v[{ku}:{ku+1}], v[{w}:{w+1}]")
        else: a(f"v_pk_fma_f32 v[{o}:{o+1}], v[{ku}:{ku+1}], v[{w}:{w+1}], v[{o}:{o+1}]")
a("s_waitcnt vmcnt(3)")
for r in range(8):
    a(f"v_lshlrev_b32 v{KU+2*r}, 16, v{VR+r}\nv_and_b32 v{KU+2*r+1}, 0xffff0000, v{VR+r}")
for r in range(8):
    o = O + 2*r
    a(f"v_pk_mul_f32 v[{o}:{o+1}], v[{o}:{o+1}], v[{KU+2*r}:{KU+2*r+1}]")
for c in range(2):
    for q in range(4):
        a(f"v_cvt_pk_bf16_f32 v{128+4*c+q}, v{O+2*(7-2*q)+c}, v{O+2*(6-2*q)+c}")
a(f"""ds_write_b128 v22, v[128:131]
ds_write_b128 v22, v[132:135] offset:128
s_waitcnt lgkmcnt(0)
s_barrier
ds_read_b128 v[128:131], v23
ds_read_b128 v[132:135], v12 offset:1024
v_mov_b32 v8, s95
v_mov_b32 v9, 0
s_waitcnt lgkmcnt(1)
buffer_store_dwordx4 v[128:131], v13, {WS}, s90 offen sc1
s_waitcnt lgkmcnt(0)
buffer_store_dwordx4 v[132:135], v13, {WS}, s91 offen sc1
s_waitcnt vmcnt(3)""")
kc_build()
a(f"""s_lshl_b32 s73, s83, 2
s_add_u32 s73, s73, s28
s_lshl_b32 s89, s73, 7
s_add_u32 s89, s89, {WS_F1}
s_waitcnt vmcnt(0)""")
tag_check()
a(f"""v_mov_b32 v4, 0
s_mov_b64 exec, 1
buffer_store_dwordx4 v[6:9], v4, {WS}, s89 offen sc1
s_mov_b64 exec, -1""")
mark(2)
a(f"s_cmp_lg_u32 s28, 0\ns_cbranch_scc1 L_p0_join")
lp, lpd, lnm = a.new("Lf1"), a.new("Lf1d"), a.new("Lnm")
a(f"""s_lshl_b32 s73, s29, 14
s_add_u32 s73, s73, {WS_F1}
s_add_u32 s77, s73, 8192
s_mov_b32 s72, {SPIN}
{lp}:
buffer_load_dwordx4 v[184:187], v14, {WS}, s73 offen sc1
buffer_load_dwordx4 v[188:191], v14, {WS}, s77 offen sc1
s_waitcnt vmcnt(0)
v_cmp_ne_u64 s[4:5], v[184:185], v[6:7]
v_cmp_ne_u64 vcc, v[188:189], v[6:7]
s_sub_u32 s72, s72, 1
s_cmp_eq_u32 s72, 0
s_cbranch_scc1 {lpd}
s_or_b64 s[4:5], s[4:5], vcc
s_cbranch_scc1 {lp}
{lpd}:""")
mark(3)
a(f"s_lshl_b32 s73, s83, 13\ns_add_u32 s73, s73, {WS_KVT}")
for c in range(2):
    a(f"s_mov_b32 m0, {L_U[c]+512}\ns_nop 0")
    for q in range(4): a(f"buffer_load_dwordx4 v5, {WS}, s73 offen offset:{1024*q}{LD} lds")
    if c == 0: a("s_add_u32 s73, s73, 4096")
a(f"""v_cmp_ne_u32 s[4:5], s95, v186
v_cmp_ne_u32 vcc, s95, v190
s_cmp_eq_u32 s72, 0
s_cbranch_scc1 {lnm}
s_or_b64 s[4:5], s[4:5], vcc
s_cbranch_scc1 {lnm}
v_mov_b32 v4, {L_MODE}
v_mov_b32 v184, {OPT.get("fast", 1)}
ds_write_b32 v4, v184
{lnm}:
s_waitcnt vmcnt(0)
s_branch L_p0_join""")

a.label("L_aux")
a(f"""v_lshrrev_b32 v24, 3, v1
v_lshlrev_b32 v24, 10, v24
v_and_b32 v4, 7, v1
v_lshl_add_u32 v24, v4, 4, v24
s_lshl_b32 s72, s2, 13
s_waitcnt lgkmcnt(0)""")
srd(32, 4, 2097152)
XR, XS = 48, 64
for r in range(8): a(f"buffer_load_dword v{XR+r}, v12, {X}, {'0' if r<4 else 's74'} offen offset:{1024*(r%4)}{NT}")
srd(48, 12, 2097152)
ssm_load()
ls = a.new("Lnst")
a(f"s_cmp_lg_u32 s28, 4\ns_cbranch_scc1 {ls}")
for i in range(8): a(f"buffer_load_dwordx4 v[{XS+4*i}:{XS+4*i+3}], v24, {X}, s72 offen offset:{128*i}{NT}")
a.label(ls)
srd(56, 20, 1835008); srd(52, 18, 1835008); srd(64, 24, 256); srd(68, 26, WS_BYTES); srd(60, 22, 2097152)
zero_pads()
XSTG = L_RED + 8192
a(f"""v_and_b32 v4, 7, v10
v_lshlrev_b32 v13, 1, v11
v_xor_b32 v4, v4, v13
v_lshlrev_b32 v22, 8, v10
v_lshl_add_u32 v22, v4, 4, v22
v_add_u32 v22, {XSTG}, v22
v_xor_b32 v12, 16, v22
v_lshrrev_b32 v23, 4, v1
v_and_b32 v13, 15, v1
v_xor_b32 v4, v23, v13
v_lshlrev_b32 v4, 4, v4
v_lshl_add_u32 v4, v23, 8, v4
v_lshlrev_b32 v13, 4, v13
v_lshl_add_u32 v13, v23, 13, v13
s_lshl_b32 s72, s79, 11
s_add_u32 s72, s72, {XSTG}
v_add_u32 v23, s72, v4
v_xor_b32 v11, 64, v23
s_lshl_b32 s72, s29, 18
s_lshl_b32 s73, s30, 8
s_add_u32 s90, s72, s73
s_lshl_b32 s72, s79, 16
s_add_u32 s90, s90, s72
s_add_u32 s90, s90, {WS_XD}
s_add_u32 s91, s90, 32768
s_mov_b32 s75, 0x3f803f80""")
mark(1)
a(f"""s_cmp_eq_u32 s28, 4
s_cbranch_scc1 L_w4a
s_waitcnt vmcnt(2)
s_branch L_w4b
L_w4a:
s_waitcnt vmcnt(10)
L_w4b:""")
tag_load()
a(f"""ds_write_b128 v22, v[{XR}:{XR+3}]
ds_write_b128 v12, v[{XR+4}:{XR+7}]
s_waitcnt lgkmcnt(0)
s_barrier
ds_read_b128 v[128:131], v23
ds_read_b128 v[132:135], v11 offset:1024
s_waitcnt lgkmcnt(1)
buffer_store_dwordx4 v[128:131], v13, {WS}, s90 offen sc1
s_waitcnt lgkmcnt(0)
buffer_store_dwordx4 v[132:135], v13, {WS}, s91 offen sc1
s_waitcnt vmcnt(3)
s_cmp_lg_u32 s28, 4
s_cbranch_scc1 L_aux_pub""")
for i in range(4): a(f"v_mov_b32 v{100+i}, 0")
for i in range(32): a(f"v_dot2_f32_bf16 v{100+(i&3)}, v{XS+i}, s75, v{100+(i&3)}")
a("s_nop 2\nv_add_f32 v100, v100, v101\nv_add_f32 v102, v102, v103\nv_add_f32 v100, v100, v102")
def red8(v):
    for m in ("quad_perm:[1,0,3,2]", "quad_perm:[2,3,0,1]", "row_half_mirror"):
        a(f"s_nop 1\nv_add_f32_dpp v{v}, v{v}, v{v} {m} row_mask:0xf bank_mask:0xf")
red8(100)
a("v_mul_f32 v100, 0x3b000000, v100\nv_mov_b32 v101, v100")
for i in range(4): a(f"v_mov_b32 v{102+i}, 0")
for i in range(32):
    t = 106 + 2*(i & 3); ac = 102 + 2*(i & 1)
    a(f"v_lshlrev_b32 v{t}, 16, v{XS+i}\nv_and_b32 v{t+1}, 0xffff0000, v{XS+i}")
    a(f"v_pk_add_f32 v[{t}:{t+1}], v[{t}:{t+1}], v[100:101] neg_lo:[0,1] neg_hi:[0,1]")
    a(f"v_pk_fma_f32 v[{ac}:{ac+1}], v[{t}:{t+1}], v[{t}:{t+1}], v[{ac}:{ac+1}]")
a("v_add_f32 v102, v102, v103\nv_add_f32 v104, v104, v105\nv_add_f32 v102, v102, v104")
red8(102)
a(f"""v_mul_f32 v102, 0x3b000000, v102
v_cvt_pk_bf16_f32 v104, v100, v102
v_and_b32 v105, 0xffff0000, v104
v_add_f32 v105, 0x3727c5ac, v105
v_cvt_pk_bf16_f32 v105, v105, v105
v_and_b32 v105, 0xffff0000, v105
v_sqrt_f32 v105, v105
s_nop 0
v_cvt_pk_bf16_f32 v105, v104, v105
v_and_b32 v104, 0xffff, v104
v_and_b32 v105, 0xffff0000, v105
v_or_b32 v104, v104, v105
v_lshrrev_b32 v24, 3, v1
v_lshlrev_b32 v24, 2, v24
s_lshl_b32 s72, s2, 5
s_add_u32 s72, s72, {WS_ST}
s_mov_b32 exec_lo, 0x01010101
s_mov_b32 exec_hi, 0x01010101
buffer_store_dword v104, v24, {WS}, s72 offen sc1
s_mov_b64 exec, -1""")
a.label("L_aux_pub")
kc_build()
a("s_waitcnt vmcnt(0)")
tag_check()
lnf = a.new("Lnfx")
a(f"""v_mov_b32 v24, {L_CNT}
v_mov_b32 v25, 1
s_mov_b64 exec, 1
ds_add_rtn_u32 v25, v24, v25
s_mov_b64 exec, -1
s_waitcnt lgkmcnt(0)
v_readfirstlane_b32 s72, v25
s_cmp_lg_u32 s72, 3
s_cbranch_scc1 {lnf}
s_lshl_b32 s73, s2, 7
s_add_u32 s73, s73, {WS_FX}""")
flag_store("s73")
a.label(lnf)
mark(2)

a.label("L_p0_join")
ACC = 16; AF = [48, 112]; BF = [80, 144]
a(f"""s_lshr_b32 s84, s30, 4
s_lshl_b32 s72, s29, 1
s_add_u32 s84, s84, s72
s_and_b32 s85, s30, 15
s_mul_i32 s88, s85, 224
s_and_b32 s94, s85, 1
s_lshr_b32 s86, s28, 1
s_and_b32 s87, s28, 1
s_lshr_b32 s72, s85, 1
s_lshl_b32 s72, s72, 1
s_add_u32 s72, s72, s87
s_mul_i32 s31, s72, 56
s_mul_i32 s72, s86, 14
s_add_u32 s31, s31, s72
s_lshl_b32 s31, s31, 11
s_add_u32 s31, s31, {WS_W2P}
v_add_u32 v10, 1, v2
v_and_b32 v11, 3, v10
v_mul_u32_u24 v11, {KC_STRIDE}, v11
v_lshrrev_b32 v10, 2, v10
v_lshl_add_u32 v10, v10, 3, v11
v_lshlrev_b32 v11, 4, v3
v_sub_u32 v10, v10, v11
s_lshl_b32 s72, s79, 7
s_add_u32 s73, s80, s72
s_add_u32 s73, s73, 48
v_add_u32 v10, s73, v10
v_lshl_add_u32 v11, v2, 5, v11
s_add_u32 s73, s82, {480-64}
s_sub_u32 s73, s73, s72
v_add_u32 v11, s73, v11
v_lshlrev_b32 v13, 6, v2
v_lshl_add_u32 v13, v3, 4, v13
s_lshl_b32 s72, s28, 10
s_add_u32 s72, s72, {L_XS}
v_add_u32 v13, s72, v13
s_lshl_b32 s72, s83, 2
s_add_u32 s14, s14, s72
s_addc_u32 s15, s15, 0
s_load_dword s93, s[14:15], 0""")
PKL, PKO = 192, 216
a(f"""v_lshrrev_b32 v208, 5, v1
v_and_b32 v209, 31, v1
v_lshlrev_b32 v212, 12, v208
v_lshl_add_u32 v212, v209, 2, v212
v_lshrrev_b32 v213, 4, v209
v_mul_u32_u24 v213, {56*2048}, v213
v_and_b32 v209, 15, v209
v_lshl_add_u32 v213, v209, 4, v213
v_lshl_add_u32 v213, v208, 8, v213
v_mov_b32 v214, {OOB}
v_mov_b32 v215, {OOB}
s_mov_b32 s95, 0
s_waitcnt lgkmcnt(0)""")
for i in range(32): a(f"v_mov_b32 v{ACC+i}, 0")
if STOP <= 0: a("s_branch L_fin")
a("s_barrier")
mark(4)
a("s_cmp_gt_u32 s28, 3\ns_cbranch_scc1 L_conv_t\ns_cmp_eq_u32 s28, 3\ns_cbranch_scc1 L_conv_w3")
a("s_mul_i32 s89, s2, 3\ns_add_u32 s89, s89, s28")
lx = a.new("Lpkx")
for u in range(2):
    if u == 1:
        a(f"s_cmp_lg_u32 s28, 1\ns_cbranch_scc1 {lx}\ns_cmp_ge_u32 s2, 128\ns_cbranch_scc1 {lx}\ns_add_u32 s89, s2, 768\ns_mov_b32 s95, 1")
    a(f"""s_mul_i32 s73, s89, 2341
    s_lshr_b32 s73, s73, 18
    s_mul_i32 s72, s73, 112
    s_sub_u32 s72, s89, s72
    s_and_b32 s77, s72, 1
    s_lshr_b32 s72, s72, 1
    s_lshl_b32 s90, s72, 15
    s_lshl_b32 s91, s73, 7
    s_add_u32 s90, s90, s91
    s_lshl_b32 s91, s77, 13
    s_add_u32 s90, s90, s91""")
    for i in range(8):
        if i == 4: a("s_add_u32 s90, s90, 16384")
        a(f"buffer_load_dword v{PKL+8*u+i}, v212, {W2}, s90 offen offset:{(i&3)*1024}{NT}")
    a(f"""s_mul_i32 s73, s73, 112
    s_add_u32 s73, s73, s72
    s_lshl_b32 s73, s73, 11
    s_lshl_b32 s77, s77, 9
    s_add_u32 s73, s73, s77
    v_add_u32 v{214+u}, s73, v213""")
a.label(lx)
a("s_branch L_conv_go")
a.label("L_conv_t")
a(f"""s_mul_i32 s89, s30, 57344
s_lshl_b32 s72, s79, 14
s_add_u32 s89, s89, s72
s_branch L_conv_go""")
a.label("L_conv_w3")
a(f"s_mov_b32 s73, {WS_FX}")
polln_pre("s73", 4)
a.label("L_conv_go")
def reads(ph, T):
    return [f"ds_read_b64 v[{AF[ph]+4*T}:{AF[ph]+4*T+1}], v10 offset:{512*T+64*ph}",
            f"ds_read_b64 v[{AF[ph]+4*T+2}:{AF[ph]+4*T+3}], v10 offset:{512*T+64*ph+8}",
            f"ds_read_b128 v[{BF[ph]+4*T}:{BF[ph]+4*T+3}], v11 offset:{512*T+64*(1-ph)}"]
allreads = [r for ph in range(2) for T in range(8) for r in reads(ph, T)]
st = {"i": 0}
def issue(k):
    for _ in range(k):
        if st["i"] < len(allreads): a(allreads[st["i"]]); st["i"] += 1
issue(15)
for ph in range(2):
    for T in range(8):
        need = (ph * 8 + T + 1) * 3
        TP = {(0, 0): (4, 0), (0, 4): (5, 0), (0, 6): (6, 0), (1, 0): (7, 0), (1, 3): (4, 1), (1, 5): (5, 1), (1, 7): (6, 1)}
        if (ph, T) in TP:
            w_, r_ = TP[(ph, T)]; lk = a.new("Ltk")
            a(f"s_cmp_lg_u32 s28, {w_}\ns_cbranch_scc1 {lk}\ns_add_u32 s72, s89, {8192*r_}\nbuffer_load_dword v{232+r_}, v14, {W1}, s72 offen\n{lk}:")
        a(f"s_waitcnt lgkmcnt({st['i'] - need})")
        for i in range(T + 1):
            a(f"v_mfma_f32_16x16x32_bf16 v[{ACC+4*T}:{ACC+4*T+3}], v[{AF[ph]+4*i}:{AF[ph]+4*i+3}], v[{BF[ph]+4*(T-i)}:{BF[ph]+4*(T-i)+3}], v[{ACC+4*T}:{ACC+4*T+3}]")
            if i < 3 and st["i"] - need < 15: issue(1)
a("s_cmp_gt_u32 s28, 3\ns_cbranch_scc1 L_conv_red\ns_cmp_eq_u32 s28, 3\ns_cbranch_scc1 L_conv_fx")
a(f"""s_mov_b32 s75, 0x05040100
s_mov_b32 s76, 0x07060302
s_mov_b32 s90, {WS_W2P}
s_mov_b32 s91, {WS_W2P+1024}
s_waitcnt vmcnt(0)""")
for u in range(2):
    if u == 1: a(f"s_cmp_eq_u32 s95, 0\ns_cbranch_scc1 L_conv_red")
    for c in range(2):
        for q in range(4):
            a(f"v_perm_b32 v{PKO+8*u+4*c+q}, v{PKL+8*u+2*q+1}, v{PKL+8*u+2*q}, s{75+c}")
    a(f"buffer_store_dwordx4 v[{PKO+8*u}:{PKO+3+8*u}], v{214+u}, {WS}, s90 offen sc1")
    a(f"buffer_store_dwordx4 v[{PKO+4+8*u}:{PKO+7+8*u}], v{214+u}, {WS}, s91 offen sc1")
a("s_branch L_conv_red")
a.label("L_conv_fx")
polln("s73", 4, preissued=True)
a(f"s_lshl_b32 s73, s83, 13\ns_add_u32 s73, s73, {WS_XD}\ns_mov_b32 m0, {L_XS}\ns_nop 0")
for q in range(4): a(f"buffer_load_dwordx4 v5, {WS}, s73 offen offset:{1024*q}{LD} lds")
a(f"s_add_u32 s73, s73, 4096\ns_mov_b32 m0, {L_XS+4096}\ns_nop 0")
for q in range(4): a(f"buffer_load_dwordx4 v5, {WS}, s73 offen offset:{1024*q}{LD} lds")
a(f"s_mov_b32 s73, {WS_ST}\ns_mov_b32 m0, {L_ST}\ns_nop 0")
for q in range(4): a(f"buffer_load_dwordx4 v5, {WS}, s73 offen offset:{1024*q}{LD} lds")
a(f"s_mov_b32 s73, {WS_ST+4096}\ns_mov_b32 m0, {L_ST+4096}\ns_nop 0")
for q in range(4): a(f"buffer_load_dwordx4 v5, {WS}, s73 offen offset:{1024*q}{LD} lds")
a.label("L_conv_red")
mark(5)
mode_read(183); mode_get(183)
a(f"""s_lshl_b32 s72, s28, 13
s_add_u32 s72, s72, {L_RED}
v_add_u32 v184, s72, v5""")
for T in range(8):
    if T == 7: a("s_nop 5")
    a(f"ds_write_b128 v184, v[{ACC+4*T}:{ACC+4*T+3}] offset:{1024*T}")
a(f"""s_lshl_b32 s72, s28, 10
s_add_u32 s72, s72, {L_RED}
v_add_u32 v186, s72, v5
v_lshlrev_b32 v185, 5, v2
v_lshrrev_b32 v4, 1, v3
v_lshl_add_u32 v185, v4, 4, v185
v_and_b32 v4, 1, v3
v_lshlrev_b32 v4, 3, v4
v_sub_u32 v185, v185, v4
s_lshl_b32 s72, s28, 9
s_add_u32 s72, s72, {L_U[0]+512+8}
v_add_u32 v185, s72, v185
ds_read_b64 v[176:177], v185
ds_read_b64 v[178:179], v185 offset:{L_U[1]-L_U[0]}
s_lshl_b32 s76, s93, 16
s_and_b32 s77, s93, 0xffff0000
v_lshrrev_b32 v187, 1, v2
v_lshlrev_b32 v187, 15, v187
v_lshl_add_u32 v187, v4, 3, v187
v_lshrrev_b32 v4, 1, v3
v_lshl_add_u32 v187, v4, 4, v187
v_and_b32 v4, 1, v2
v_lshl_add_u32 v187, v4, 5, v187
s_lshl_b32 s90, s83, 7
s_lshl_b32 s73, s28, 18
s_add_u32 s90, s90, s73
s_add_u32 s90, s90, {WS_HT}
s_lshl_b32 s73, s28, 8
s_add_u32 s73, s73, s83
s_lshl_b32 s91, s73, 7
s_add_u32 s91, s91, {WS_F2}
s_cmp_gt_u32 s28, 3
s_cbranch_scc1 L_nvw
s_waitcnt vmcnt(0)
L_nvw:
s_waitcnt lgkmcnt(0)
s_barrier""")
mark(6)
P = 48; KV, XP, LN, Y, STT = 120, 128, 136, 144, 152
a(f"ds_read_b128 v[116:119], v13 offset:{L_ST-L_XS}\nds_read_b128 v[112:115], v13")
for w in range(8): a(f"ds_read_b128 v[{P+4*w}:{P+4*w+3}], v186 offset:{8192*w}")
for c in range(2):
    d0, d1 = 176 + 2*c, 177 + 2*c
    a(f"v_lshlrev_b32 v{KV+6+c}, 16, v{d0}\nv_and_b32 v{KV+4+c}, 0xffff0000, v{d0}\nv_lshlrev_b32 v{KV+2+c}, 16, v{d1}\nv_and_b32 v{KV+c}, 0xffff0000, v{d1}")
a("s_waitcnt lgkmcnt(8)")
for r in range(4): a(f"v_and_b32 v{STT+r}, 0xffff0000, v{116+r}")
for r in range(4): a(f"v_rcp_f32 v{STT+r}, v{STT+r}")
for r in range(4): a(f"v_lshlrev_b32 v{STT+4+r}, 16, v{116+r}\nv_lshlrev_b32 v{XP+2*r}, 16, v{112+r}\nv_and_b32 v{XP+1+2*r}, 0xffff0000, v{112+r}")
for r in range(4):
    for c in range(2): a(f"v_sub_f32 v{LN+2*r+c}, v{XP+2*r+c}, v{STT+4+r}")
for r in range(4):
    for c in range(2): a(f"v_mul_f32 v{LN+2*r+c}, v{LN+2*r+c}, v{STT+r}")
a("s_waitcnt lgkmcnt(0)")
for c in range(2):
    b = P + 16*c
    for h in range(2):
        a(f"v_pk_add_f32 v[{b+2*h}:{b+2*h+1}], v[{b+2*h}:{b+2*h+1}], v[{b+4+2*h}:{b+5+2*h}]")
        a(f"v_pk_add_f32 v[{b+8+2*h}:{b+9+2*h}], v[{b+8+2*h}:{b+9+2*h}], v[{b+12+2*h}:{b+13+2*h}]")
    for r in range(4): a(f"v_add_f32 v{Y+2*r+c}, v{b+r}, v{b+8+r}")
for r in range(4): a(f"v_pk_fma_f32 v[{Y+2*r}:{Y+1+2*r}], v[{KV+2*r}:{KV+1+2*r}], s[76:77], v[{Y+2*r}:{Y+1+2*r}]")
for r in range(4): a(f"v_pk_fma_f32 v[{Y+2*r}:{Y+1+2*r}], v[{LN+2*r}:{LN+1+2*r}], v[{Y+2*r}:{Y+1+2*r}], v[{XP+2*r}:{XP+1+2*r}]")
a(f"""v_cvt_pk_bf16_f32 v160, v{Y}, v{Y+2}
v_cvt_pk_bf16_f32 v161, v{Y+4}, v{Y+6}
v_cvt_pk_bf16_f32 v162, v{Y+1}, v{Y+3}
v_cvt_pk_bf16_f32 v163, v{Y+5}, v{Y+7}
s_nop 1
v_permlane16_swap_b32 v160, v162
v_permlane16_swap_b32 v161, v163
s_nop 1
buffer_store_dwordx4 v[160:163], v187, {WS}, s90 offen sc1
s_waitcnt vmcnt(0)""")
flag_store("s91")
mark(7)
if STOP <= 1: a("s_branch L_fin")
a("s_barrier")
lw7, lw7d = a.new("Lw7"), a.new("Lw7d")
a(f"s_cmp_eq_u32 s28, 7\ns_cbranch_scc1 {lw7}")
w1_pattern(24, "s28")
a("s_lshl_b32 s90, s28, 10")
for ks in range(W1_EARLY, 16):
    a(f"s_add_u32 m0, s90, {ks*7168}\ns_add_u32 s72, s88, {ks*114688}\nbuffer_load_dwordx4 v24, {W1}, s72 offen lds")
a(f"s_branch {lw7d}")
a.label(lw7)
a(f"s_lshr_b32 s73, s84, 1\ns_lshl_b32 s73, s73, 15\ns_add_u32 s73, s73, {WS_F2}")
polln("s73", 4)
a.label(lw7d)
GA, ONE, CSH = 16, 56, 60
HFR = [64, 72]
WF = [80, 96]
a(f"""v_lshrrev_b32 v8, 1, v3
v_lshlrev_b32 v8, 4, v8
v_and_b32 v4, 1, v3
v_lshl_add_u32 v8, v4, 2, v8
v_lshrrev_b32 v4, 2, v2
v_add_u32 v8, v8, v4
v_and_b32 v4, 3, v2
v_lshlrev_b32 v4, 3, v4
v_and_b32 v9, 7, v8
v_lshl_add_u32 v9, v9, 5, v4
v_lshrrev_b32 v190, 1, v3
v_lshl_add_u32 v9, v190, 10, v9
v_lshrrev_b32 v190, 5, v1
v_lshlrev_b32 v190, 9, v190
v_bfe_u32 v191, v1, 1, 3
v_lshl_add_u32 v190, v191, 6, v190
v_bfe_u32 v191, v1, 4, 1
v_lshl_add_u32 v190, v191, 5, v190
v_and_b32 v191, 1, v1
v_lshl_add_u32 v190, v191, 4, v190
v_mul_u32_u24 v8, 224, v8
v_add_u32 v8, v8, v4
s_mul_i32 s92, s79, 12288
s_add_u32 s92, s92, {L_HR}
v_add_u32 v9, s92, v9
s_lshl_b32 s72, s94, 5
s_lshl_b32 s73, s78, 7
s_add_u32 s72, s72, s73
v_add_u32 v10, s72, v8
v_add_u32 v11, 57344, v10
s_mul_i32 s73, s94, 192
s_sub_u32 s73, 192, s73
v_add_u32 v12, s73, v8
v_add_u32 v13, 57344, v12
s_add_u32 s72, s28, s94
s_lshl_b32 s72, s72, 5
s_cmp_eq_u32 s28, 6
s_cselect_b32 s72, s73, s72
v_add_u32 v188, s72, v8
v_add_u32 v189, 57344, v188
s_lshl_b32 s90, s84, 3
s_lshl_b32 s72, s79, 1
s_add_u32 s90, s90, s72
s_lshl_b32 s91, s90, 14
s_add_u32 s91, s91, {WS_HT}""")
for i in range(40): a(f"v_mov_b32 v{GA+i}, 0")
for i in range(4): a(f"v_mov_b32 v{ONE+i}, 0x3f803f80")
a("s_waitcnt vmcnt(0)")
mark(8)
a("s_barrier")
mark(9)
def hdma(ks): return f"s_add_u32 m0, s92, {(ks % 6)*2048}\ns_add_u32 s74, s91, {ks*2048}\nbuffer_load_dwordx4 v190, {WS}, s74 offen{LD} lds\nbuffer_load_dwordx4 v190, {WS}, s74 offen offset:1024{LD} lds"
a(f"""s_lshl_b32 s73, s84, 17
s_lshl_b32 s72, s85, 13
s_add_u32 s73, s73, s72
s_add_u32 s73, s73, {WS_HT}
s_cmp_lg_u32 s28, 7
s_cbranch_scc1 L_noht
buffer_load_dword v135, v14, {WS}, s73 offen
L_noht:
s_mul_i32 s89, s30, 57344
s_lshl_b32 s72, s79, 14
s_add_u32 s89, s89, s72
s_add_u32 s89, s89, {WS_W2P}""")
a("s_cmp_eq_u32 s78, 1\ns_cbranch_scc1 L_nohp")
for ks in range(6): a(hdma(ks))
a.label("L_nohp")
lcs = a.new("Lcs")
a(f"s_cmp_eq_u32 s28, 7\ns_cbranch_scc1 {lcs}")
CF = 80
def csrd(ks):
    for hq in range(2): a(f"ds_read_b64_tr_b16 v[{CF+4*(ks%7)+2*hq}:{CF+4*(ks%7)+2*hq+1}], v{188+(ks>>3)} offset:{(ks%8)*7168 + hq*1792}")
for ks in range(7): csrd(ks)
for ks in range(16):
    a(f"s_waitcnt lgkmcnt({2*min(6, 15-ks)})")
    a(f"v_mfma_f32_16x16x32_bf16 v[{CSH}:{CSH+3}], v[{CF+4*(ks%7)}:{CF+4*(ks%7)+3}], v[{ONE}:{ONE+3}], {'0' if ks == 0 else f'v[{CSH}:{CSH+3}]'}")
    if ks + 7 < 16: csrd(ks + 7)
a.label(lcs)
a("s_cmp_eq_u32 s78, 1\ns_cbranch_scc1 L_g1_b")
def gemm1(fh):
    ns = 4 if fh == 0 else 3
    def rdw(ks):
        o = []; hi = ks >= 8
        for sl in range(ns):
            for hq in range(2):
                six = (fh == 1 and sl == 2)
                base = (12 + hi) if six else (10 + hi)
                off = (ks - 8*hi)*7168 + hq*1792 + (0 if six else sl*32)
                r = WF[ks & 1] + 4*sl + 2*hq
                o.append(f"ds_read_b64_tr_b16 v[{r}:{r+1}], v{base} offset:{off}")
        return o
    def rdh(ks):
        o = []
        for t in range(2):
            for hq in range(2):
                r = HFR[ks & 1] + 4*t + 2*hq
                o.append(f"ds_read_b64_tr_b16 v[{r}:{r+1}], v9 offset:{(ks % 6)*2048 + t*256 + hq*512}")
        return o
    W2L = w2_loads(0, 14)
    vm = [x for k in range(6) for x in (("h0", k), ("h", k))]
    def vmw(tag): return len(vm) - 1 - vm.index(tag)
    for x in rdw(0): a(x)
    if fh == 0: a(f"s_waitcnt vmcnt({vmw(('h', 1))})")
    a("s_barrier")
    for x in rdh(0): a(x)
    wi = 0
    for ks in range(16):
        fill = []
        if ks % 2 == 1 and ks < 15:
            if fh == 0: fill.append(("wait", ("h", ks + 2), None))
            fill.append(("x", None, "s_barrier"))
            for k2 in (ks + 5, ks + 6):
                if k2 < 16 and fh == 0: fill.append(("vm2", ("h", k2), hdma(k2)))
        if ks < 15: fill += [("x", None, x) for x in rdh(ks + 1) + rdw(ks + 1)]
        kt = OPT.get("kt", 1)
        if fh == 1 and kt <= ks < kt + 7:
            j = ks - kt; lk = a.new("Ltg")
            fill.append(("x", None, f"s_cmp_lg_u32 s79, {j & 3}\ns_cbranch_scc1 {lk}\ns_add_u32 s72, s89, {8192*(j >> 2)}\nbuffer_load_dword v{134+(j>>2)}, v14, {WS}, s72 offen\n{lk}:"))
        for _ in range(OPT.get("pk", 3)):
            if wi < OPT.get("nl", 18) and ks >= (OPT.get("k0", 10) if fh == 0 else OPT.get("k1", 10)): fill.append(("vm", ("w", wi), W2L[wi])); wi += 1
        mf = []
        for sl in range(ns):
            for t in range(2):
                ac = GA + (sl*2 + t)*4; h = HFR[ks & 1] + 4*t
                mf.append(f"v_mfma_f32_16x16x32_bf16 v[{ac}:{ac+3}], v[{WF[ks&1]+4*sl}:{WF[ks&1]+4*sl+3}], v[{h}:{h+3}], v[{ac}:{ac+3}]")
        if fh == 1:
            for t in range(2):
                h = HFR[ks & 1] + 4*t
                mf.append(f"v_mfma_f32_16x16x32_bf16 v[{40+4*t}:{43+4*t}], v[{h}:{h+3}], v[{h}:{h+3}], v[{40+4*t}:{43+4*t}]")
                mf.append(f"v_mfma_f32_16x16x32_bf16 v[{48+4*t}:{51+4*t}], v[{ONE}:{ONE+3}], v[{h}:{h+3}], v[{48+4*t}:{51+4*t}]")
        a("s_waitcnt lgkmcnt(0)")
        if OPT.get("g1m") and ks in (0, 4, 8, 12): mark({0: 1, 4: 2, 8: 3, 12: 14}[ks])
        k = 0
        per = (len(fill) + len(mf) - 1) // len(mf)
        for m, x in enumerate(mf):
            a(x)
            tgt = min(len(fill), per*(m+1))
            while k < tgt:
                kind, tag, txt = fill[k]; k += 1
                if kind == "vm": a(txt); vm.append(tag)
                elif kind == "vm2": a(txt); vm.append(("h0", tag[1])); vm.append(tag)
                elif kind == "wait": a(f"s_waitcnt vmcnt({vmw(tag)})")
                else: a(txt)
    mark(10)
    for _ in range(28 - wi):
        a(W2L[wi]); wi += 1
    a("s_barrier")
    lc2 = a.new("Lc2")
    a(f"""v_lshlrev_b32 v10, 4, v3
    s_lshl_b32 s72, s28, 6
    v_add_u32 v4, s72, v10
    s_mov_b32 exec_lo, 0x00010001
    s_mov_b32 exec_hi, 0x00010001
    ds_write_b128 v4, v[{CSH}:{CSH+3}] offset:{L_CS}
    s_mov_b64 exec, -1
    s_lshl_b32 s72, s79, 8
    v_lshlrev_b32 v11, 3, v2
    v_add_u32 v11, s72, v11""")
    if fh == 1:
        a(f"""v_and_b32 v4, 3, v2
        v_cmp_eq_u32 s[72:73], 1, v4
        v_cmp_eq_u32 s[74:75], 2, v4
        v_cmp_eq_u32 s[76:77], 3, v4
        v_lshrrev_b32 v4, 2, v2
        v_cmp_eq_u32 vcc, v4, v3""")
        for t in range(2):
            g = 40 + 4*t
            a(f"""v_cndmask_b32_e64 v{g}, v{g}, v{g+1}, s[72:73]
            v_cndmask_b32_e64 v{g}, v{g}, v{g+2}, s[74:75]
            v_cndmask_b32_e64 v{g+1}, v{g}, v{g+3}, s[76:77]
            v_mov_b32 v{g}, v{48+4*t}""")
        a(f"""s_mov_b64 exec, vcc
        ds_write_b64 v11, v[40:41] offset:{L_SX}
        ds_write_b64 v11, v[44:45] offset:{L_SX+128}
        s_mov_b64 exec, -1""")
    CSR = 80
    a(f"""s_mul_i32 s72, s90, 57344
    s_add_u32 s72, s72, {WS_HP}
    s_mul_i32 s73, s85, 7
    s_add_u32 s74, s73, s94
    s_lshr_b32 s74, s74, 1
    s_lshl_b32 s74, s74, 10
    s_add_u32 s74, s74, s72
    s_mul_i32 s75, s94, 6
    s_sub_u32 s75, 6, s75
    s_add_u32 s75, s75, s73
    s_lshr_b32 s75, s75, 1
    s_lshl_b32 s75, s75, 10
    s_add_u32 s75, s75, s72
    s_lshl_b32 s76, s94, 3
    s_add_u32 s75, s75, s76
    v_add_u32 v12, 57344, v5
    s_waitcnt lgkmcnt(0)
    s_barrier
    ds_read_b64 v[64:65], v11 offset:{L_SX}
    ds_read_b64 v[66:67], v11 offset:{L_SX+128}""")
    for sl in range(ns): a(f"ds_read_b128 v[{CSR+4*sl}:{CSR+4*sl+3}], v10 offset:{L_CS + 64*(sl + 4*fh)}")
    a(f"s_waitcnt lgkmcnt({ns})")
    for t in range(2):
        s_, q_ = 64 + 2*t, 65 + 2*t
        a(f"""v_mul_f32 v{s_}, 0x3b000000, v{s_}
        v_mul_f32 v{q_}, 0x3b000000, v{q_}
        v_fma_f32 v{q_}, -v{s_}, v{s_}, v{q_}
        v_max_f32 v{q_}, 0, v{q_}
        v_cvt_pk_bf16_f32 v{s_}, v{s_}, v{q_}
        v_lshlrev_b32 v{70+4*t}, 16, v{s_}
        v_lshlrev_b32 v{71+4*t}, 16, v{s_}
        v_and_b32 v{q_}, 0xffff0000, v{s_}
        v_add_f32 v{q_}, 0x3727c5ac, v{q_}
        v_cvt_pk_bf16_f32 v{q_}, v{q_}, v{q_}
        v_and_b32 v{q_}, 0xffff0000, v{q_}
        v_sqrt_f32 v{q_}, v{q_}""")
    for t in range(2):
        q_ = 65 + 2*t
        a(f"""v_cvt_pk_bf16_f32 v{q_}, v{q_}, v{q_}
        v_and_b32 v{q_}, 0xffff0000, v{q_}
        v_rcp_f32 v{68+4*t}, v{q_}
        v_rcp_f32 v{69+4*t}, v{q_}""")
    a("s_waitcnt lgkmcnt(0)")
    n2 = ns * 4
    TT = 96
    def pk(i): return i
    for sl in range(ns):
        for t in range(2):
            for h in range(2):
                ac = GA + (sl*2+t)*4 + 2*h
                a(f"v_pk_fma_f32 v[{ac}:{ac+1}], v[{CSR+4*sl+2*h}:{CSR+4*sl+2*h+1}], v[{70+4*t}:{71+4*t}], v[{ac}:{ac+1}] neg_lo:[0,1,0] neg_hi:[0,1,0]")
    for t in range(2): a(f"v_mul_f32 v{128+2*t}, 0xbfb8aa3b, v{68+4*t}\nv_mul_f32 v{129+2*t}, 0xbfb8aa3b, v{68+4*t}")
    for i in range(n2):
        t = (i >> 1) & 1
        a(f"v_pk_mul_f32 v[{TT+2*i}:{TT+2*i+1}], v[{GA+2*i}:{GA+2*i+1}], v[{128+2*t}:{129+2*t}]")
    for i in range(n2):
        t = (i >> 1) & 1
        a(f"v_exp_f32 v{TT+2*i}, v{TT+2*i}\nv_exp_f32 v{TT+2*i+1}, v{TT+2*i+1}\nv_pk_mul_f32 v[{GA+2*i}:{GA+2*i+1}], v[{GA+2*i}:{GA+2*i+1}], v[{68+4*t}:{69+4*t}]")
    a("v_mov_b32 v132, 1.0\nv_mov_b32 v133, 1.0")
    for i in range(n2): a(f"v_pk_add_f32 v[{TT+2*i}:{TT+2*i+1}], v[{TT+2*i}:{TT+2*i+1}], v[132:133]")
    for i in range(2*n2): a(f"v_rcp_f32 v{TT+i}, v{TT+i}")
    a("s_nop 0")
    for i in range(n2): a(f"v_pk_mul_f32 v[{GA+2*i}:{GA+2*i+1}], v[{GA+2*i}:{GA+2*i+1}], v[{TT+2*i}:{TT+2*i+1}]")
    ST_ = []
    a_real = a
    for t in range(2):
        for p in range(ns // 2):
            o = 80 + (t*2 + p)*4
            for j in range(2):
                ac = GA + ((2*p + j)*2 + t)*4
                a(f"v_cvt_pk_bf16_f32 v{o+2*j}, v{ac}, v{ac+1}\nv_cvt_pk_bf16_f32 v{o+2*j+1}, v{ac+2}, v{ac+3}")
            ST_.append(f"buffer_store_dwordx4 v[{o}:{o+3}], v{5 if t == 0 else 12}, {WS}, s74 offen offset:{1024*(p + 2*fh)}")
        if fh == 1:
            o = 88 + 2*t + 4; ac = GA + (2*2 + t)*4
            a(f"v_cvt_pk_bf16_f32 v{o}, v{ac}, v{ac+1}\nv_cvt_pk_bf16_f32 v{o+1}, v{ac+2}, v{ac+3}")
            ST_.append(f"buffer_store_dwordx2 v[{o}:{o+1}], v{5 if t == 0 else 12}, {WS}, s75 offen")
    dual(ST_)
    return wi
WI = gemm1(0); a("s_branch L_g1_done")
a.label("L_g1_b"); gemm1(1)
a.label("L_g1_done")
A3 = 16; HF = [64, 96]
a(f"""s_lshl_b32 s73, s84, 1
s_lshr_b32 s72, s79, 1
s_add_u32 s73, s73, s72
s_lshl_b32 s73, s73, 4
s_add_u32 s73, s73, s85
s_lshl_b32 s73, s73, 2
s_and_b32 s72, s79, 1
s_lshl_b32 s72, s72, 1
s_add_u32 s73, s73, s72
s_add_u32 s73, s73, s78
s_lshl_b32 s73, s73, 7
s_add_u32 s73, s73, {WS_F3}
s_lshl_b32 s90, s84, 1
s_add_u32 s90, s90, s94
s_lshl_b32 s89, s90, 13
s_add_u32 s89, s89, {WS_F3}
s_lshl_b32 s90, s90, 2
s_mul_i32 s91, s86, 14
s_add_u32 s91, s91, s87
s_lshl_b32 s91, s91, 10
s_add_u32 s91, s91, {WS_HP}""")
for u in range(4):
    a(f"""s_add_u32 s72, s86, {u}
    s_and_b32 s72, s72, 3
    s_add_u32 s72, s72, s90
    s_mul_i32 s72, s72, 57344
    s_add_u32 s{40+u}, s72, s91""")
a(f"""s_lshl_b32 s92, s86, 13
s_lshl_b32 s72, s87, 12
s_add_u32 s93, s92, s72
v_add_u32 v10, s92, v5
s_add_u32 s90, s90, s86
s_lshr_b32 s95, s90, 1
s_lshl_b32 s95, s95, 15
s_and_b32 s72, s90, 1
s_lshl_b32 s72, s72, 5
s_add_u32 s95, s95, s72
s_lshr_b32 s72, s85, 1
s_lshl_b32 s72, s72, 1
s_add_u32 s72, s72, s87
s_lshl_b32 s72, s72, 11
s_add_u32 s95, s95, s72
s_add_u32 s95, s95, {WS_HT}
v_lshlrev_b32 v11, 9, v3
v_lshl_add_u32 v11, v2, 1, v11
v_add_u32 v12, 65536, v10
v_add_u32 v13, 0x20000, v10
s_waitcnt vmcnt(0)""")
flag_store("s73")
for x in w2_loads(0, 14)[WI:]: a(x)
mark(11)
if STOP <= 2: a("s_branch L_fin")
for e in range(4):
    a(f"buffer_load_short_d16 v{128+e}, v11, {WS}, s95 offen offset:{128*e} sc1\nbuffer_load_short_d16_hi v{132+e}, v11, {WS}, s95 offen offset:{128*e+64} sc1")
for i in range(32): a(f"v_mov_b32 v{A3+i}, 0")
lnp = a.new("Lnp3")
a(f"s_cmp_lg_u32 s28, 7\ns_cbranch_scc1 {lnp}")
polln("s89", 1)
a.label(lnp)
a("s_barrier")
mark(12)
def stage_dma(s):
    return [f"s_add_u32 m0, s93, {(s % 5)*32768 + u*1024}\ns_add_u32 s72, s{40+u}, {2048*s}\nbuffer_load_dwordx4 v5, {WS}, s72 offen{LD} lds" for u in range(4)]
for s in range(5):
    for x in stage_dma(s): a(x)
for s in range(7):
    issued = min(7, max(5, s + 4))
    a(f"s_waitcnt vmcnt({4*(issued - s - 1)})\ns_barrier")
    if s >= 1 and s + 4 <= 6:
        for x in stage_dma(s + 4): a(x)
    sl = s % 5
    base = 10 + [0, 0, 2, 2, 3][sl]; off0 = [0, 32768, 0, 32768, 0][sl]
    hf = HF[s & 1]
    for j in range(8): a(f"ds_read_b128 v[{hf+4*j}:{hf+4*j+3}], v{base} offset:{off0 + 1024*j}")
    for k2 in range(2):
        kk = 2*s + k2; b = w2reg(kk)
        for u in range(4):
            a(f"s_waitcnt lgkmcnt({7 - (k2*4+u)})")
            for t in range(2):
                ac = A3 + (u*2+t)*4
                a(f"v_mfma_f32_16x16x32_bf16 v[{ac}:{ac+3}], v[{b+4*t}:{b+4*t+3}], v[{hf+16*k2+4*u}:{hf+16*k2+4*u+3}], v[{ac}:{ac+3}]")
mark(13)
a("s_barrier")
for u in range(1, 4):
    a(f"""s_add_u32 s72, s86, {u}
    s_and_b32 s72, s72, 3
    s_lshl_b32 s73, s87, 2
    s_add_u32 s72, s72, s73
    s_mul_i32 s72, s72, 6144
    s_add_u32 s72, s72, {(u-1)*2048}
    v_add_u32 v{10+u}, s72, v5""")
a("""s_lshl_b32 s73, s87, 2
s_add_u32 s72, s86, s73
s_mul_i32 s72, s72, 6144
v_add_u32 v10, s72, v5""")
for u in range(1, 4):
    for t in range(2):
        ac = A3 + (u*2+t)*4
        a(f"ds_write_b128 v{10+u}, v[{ac}:{ac+3}] offset:{1024*t}")
a("""s_lshl_b32 s72, s90, 14
s_lshr_b32 s73, s85, 1
s_lshl_b32 s73, s73, 7
s_add_u32 s72, s72, s73
s_lshl_b32 s73, s87, 6
s_add_u32 s72, s72, s73
v_lshlrev_b32 v9, 10, v2
v_lshl_add_u32 v9, v3, 4, v9""")
for e in range(4): a(f"v_lshlrev_b32 v{96+e}, 16, v{128+e}\nv_and_b32 v{100+e}, 0xffff0000, v{132+e}")
a("s_waitcnt lgkmcnt(0)\ns_barrier")
for j in range(6): a(f"ds_read_b128 v[{64+4*j}:{67+4*j}], v10 offset:{1024*j}")
for t in range(2):
    ac = A3 + t*4
    for h in range(2): a(f"v_pk_add_f32 v[{ac+2*h}:{ac+2*h+1}], v[{ac+2*h}:{ac+2*h+1}], v[{96+4*t+2*h}:{97+4*t+2*h}]")
a("s_waitcnt lgkmcnt(0)")
for t in range(2):
    ac = A3 + t*4
    for h in range(2):
        a(f"v_pk_add_f32 v[{ac+2*h}:{ac+2*h+1}], v[{ac+2*h}:{ac+2*h+1}], v[{64+4*t+2*h}:{65+4*t+2*h}]")
        a(f"v_pk_add_f32 v[{72+4*t+2*h}:{73+4*t+2*h}], v[{72+4*t+2*h}:{73+4*t+2*h}], v[{80+4*t+2*h}:{81+4*t+2*h}]")
for t in range(2):
    ac = A3 + t*4
    for h in range(2): a(f"v_pk_add_f32 v[{ac+2*h}:{ac+2*h+1}], v[{ac+2*h}:{ac+2*h+1}], v[{72+4*t+2*h}:{73+4*t+2*h}]")
for r in range(4): a(f"v_cvt_pk_bf16_f32 v{104+r}, v{A3+r}, v{A3+4+r}")
a(f"buffer_store_dwordx4 v[104:107], v9, {OUT}, s72 offen")
a.label("L_fin")
if STAMP:
    a(f"""s_mov_b64 exec, -1
    s_waitcnt vmcnt(0) lgkmcnt(0)
    s_memrealtime s[98:99]
    s_waitcnt lgkmcnt(0)
    v_writelane_b32 v15, s96, 0
    v_writelane_b32 v15, s98, 15
    s_lshl_b32 s72, s2, 9
    s_lshl_b32 s73, s28, 6
    s_add_u32 s72, s72, s73
    s_add_u32 s72, s72, {WS_STAMP}
    v_lshlrev_b32 v4, 2, v1
    s_mov_b64 exec, 0xffff
    buffer_store_dword v15, v4, {WS}, s72 offen""")
a.label("L_end")
a("s_endpgm")
a.raw(f""".section .rodata,"a"
.p2align 6
.amdhsa_kernel {NAME}
  .amdhsa_next_free_vgpr 256
  .amdhsa_next_free_sgpr 102
  .amdhsa_accum_offset 256
  .amdhsa_group_segment_fixed_size 0
  .amdhsa_kernarg_size 96
  .amdhsa_user_sgpr_count 2
  .amdhsa_user_sgpr_kernarg_segment_ptr 1
  .amdhsa_system_sgpr_workgroup_id_x 1
.end_amdhsa_kernel""")
HEADER = open("sequential_preLN__ssm_conv_h3__dense_activation_silu__prompt.s.ref").read().split("; Override launch")[0]
print(HEADER + f"; @launch grid=(256,1,1) block=(512,1,1) lds={LDS_BYTES}\n" + '.amdgcn_target "amdgcn-amd-amdhsa--gfx950"\n.text\n' + a.text())
```

```python
import sys
STAMP = "stamp" in sys.argv[1:]
STOP = 99
OPT = {"nt": 1, "fast": 0}
for x in sys.argv[1:]:
    if x.startswith("stop="): STOP = int(x[5:])
    elif "=" in x: k, v = x.split("="); OPT[k] = int(v)
NT = " nt" if OPT["nt"] else ""

WS_KVT = 0
WS_XD  = 2 << 20
WS_ST  = 4 << 20
WS_HT  = 6 << 20
WS_W2P = 10 << 20
WS_HP  = 12 << 20
WS_F1  = 20 << 20
WS_FX  = WS_F1 + 0x20000
WS_FC  = WS_F1 + 0x30000
WS_F2  = WS_F1 + 0x40000
WS_F3  = WS_F1 + 0x80000
WS_STAMP = 0x4000000
WS_BYTES = 268435456
OOB = 0x7FF00000
SPIN = 40000

W1_EARLY = 0
L_RED = 28672
L_XS = L_RED + 65536
L_ST = L_XS + 8192
L_U = [114688, 114688 + 4608]
L_KC = [123904, 123904 + 16640]
KC_STRIDE = 4160
L_CNT = 157184
L_MODE = 157188
L_HR = 114688
L_CS = 0
L_SX = 1024
LDS_BYTES = 163840
NAME = "sequential_preLN__ssm_conv_h3__dense_activation_silu__prompt_kernel"

class A:
    def __init__(s): s.l = []; s.uid = 0
    def __call__(s, txt):
        for ln in txt.strip("\n").split("\n"):
            if ln.strip(): s.l.append(("    " + ln.strip()) if not ln.strip().endswith(":") else ln.strip())
    def label(s, n): s.l.append(n + ":")
    def raw(s, t): s.l.append(t)
    def new(s, p="L"): s.uid += 1; return f"{p}_{s.uid}"
    def text(s): return "\n".join(s.l) + "\n"
a = A()
def srd(d, b, n):
    a(f"s_mov_b32 s{d}, s{b}\ns_mov_b32 s{d+1}, s{b+1}\ns_mov_b32 s{d+2}, {n}\ns_mov_b32 s{d+3}, 0x00020000")
def mark(i):
    if STAMP: a(f"s_memrealtime s[98:99]\ns_memtime s[100:101]\ns_waitcnt lgkmcnt(0)\nv_writelane_b32 v15, s98, {i}\nv_writelane_b32 v15, s100, {16+i}")
X, K, V, SK, SSM, W1, W2, OUT, DBG, WS = [f"s[{32+4*i}:{35+4*i}]" for i in range(10)]

def tag_load():
    a(f"v_mov_b32 v4, 0\nbuffer_load_dwordx2 v[6:7], v4, {DBG}, 0 offen sc1")
def tag_check():
    l0, l1 = a.new("Ltag"), a.new("Ltagd")
    a(f"s_mov_b32 s72, {SPIN}")
    a.label(l0)
    a(f"""v_readfirstlane_b32 s73, v6
    s_cmp_lg_u32 s73, 0
    s_cbranch_scc1 {l1}
    s_sub_u32 s72, s72, 1
    s_cmp_eq_u32 s72, 0
    s_cbranch_scc1 {l1}
    v_mov_b32 v4, 0
    buffer_load_dwordx2 v[6:7], v4, {DBG}, 0 offen sc1
    s_waitcnt vmcnt(0)
    s_branch {l0}""")
    a.label(l1)
def flag_store(soff):
    a(f"""v_mov_b32 v4, 0
    s_mov_b64 exec, 1
    buffer_store_dwordx2 v[6:7], v4, {WS}, {soff} offen sc1
    s_mov_b64 exec, -1""")
def polln(sbase, n, vt=184, preissued=False):
    M = ["s[4:5]", "s[6:7]", "s[8:9]", "s[16:17]"]
    l0, l1, l2 = a.new("Lpn"), a.new("Lpnd"), a.new("Lpnc")
    for i in range(n): a(f"s_mov_b64 {M[i]}, -1")
    a(f"s_mov_b32 s72, {SPIN}")
    if preissued: a(f"s_branch {l2}")
    a.label(l0)
    for i in range(n):
        sk = a.new("Lsk")
        a(f"s_mov_b64 exec, {M[i]}\ns_add_u32 s77, {sbase}, {8192*i}\ns_cbranch_execz {sk}\nbuffer_load_dwordx2 v[{vt+2*i}:{vt+2*i+1}], v14, {WS}, s77 offen sc1")
        a.label(sk)
    a("s_mov_b64 exec, -1")
    a.label(l2)
    a("s_waitcnt vmcnt(0)")
    for i in range(n):
        a(f"v_cmp_ne_u64 vcc, v[{vt+2*i}:{vt+2*i+1}], v[6:7]\ns_and_b64 {M[i]}, {M[i]}, vcc")
    a(f"s_mov_b64 s[10:11], {M[0]}")
    for i in range(1, n): a(f"s_or_b64 s[10:11], s[10:11], {M[i]}")
    a(f"""s_sub_u32 s72, s72, 1
    s_cmp_eq_u32 s72, 0
    s_cbranch_scc1 {l1}
    s_cmp_lg_u64 s[10:11], 0
    s_cbranch_scc1 {l0}""")
    a.label(l1)
def polln_pre(sbase, n, vt=184):
    for i in range(n): a(f"s_add_u32 s77, {sbase}, {8192*i}\nbuffer_load_dwordx2 v[{vt+2*i}:{vt+2*i+1}], v14, {WS}, s77 offen sc1")

def mode_read(vt):
    a(f"v_mov_b32 v{vt}, {L_MODE}\nds_read_b32 v{vt}, v{vt}")
def mode_get(vt):
    a(f"s_waitcnt lgkmcnt(0)\nv_readfirstlane_b32 s3, v{vt}")
def dual(stores):
    lf, ld = a.new("Lfast"), a.new("Ldual")
    a(f"s_cmp_eq_u32 s3, 1\ns_cbranch_scc1 {lf}")
    for x in stores: a(x + (" sc1" if x.startswith("buffer_store") else ""))
    a(f"s_branch {ld}")
    a.label(lf)
    for x in stores: a(x)
    a.label(ld)
W2A, W2B = 192, 136
def w2reg(kk): return W2A + 8*kk if kk < 8 else W2B + 8*(kk-8)
def w2_loads(k0, k1):
    L = []
    for kk in range(k0, k1):
        b = w2reg(kk)
        for t in range(2):
            L.append(f"s_add_u32 s74, s31, {(kk>>1)*4096}\nbuffer_load_dwordx4 v[{b+4*t}:{b+4*t+3}], v5, {WS}, s74 offen offset:{(kk&1)*2048 + t*1024}" + ("" if OPT.get("plain", 1) else " sc1"))
    return L
def w1_pattern(vd, sp):
    a(f"s_lshl_b32 s77, {sp}, 6\nv_add_u32 v{vd}, s77, v1\nv_mul_u32_u24 v4, 4682, v{vd}\nv_lshrrev_b32 v4, 16, v4\nv_lshlrev_b32 v{vd}, 4, v{vd}\ns_movk_i32 s77, 3360\nv_mad_u32_u24 v{vd}, v4, s77, v{vd}")

def kc_build():
    lnf = a.new("Lnofix")
    a(f"""s_lshl_b32 s72, s79, 10
    s_add_u32 s72, s72, s80
    v_add_u32 v40, s72, v5
    ds_write_b128 v40, v[16:19] offset:32
    v_alignbit_b32 v24, v17, v16, 16
    v_alignbit_b32 v25, v18, v17, 16
    v_alignbit_b32 v26, v19, v18, 16
    v_alignbit_b32 v27, v20, v19, 16
    v_mov_b32 v28, v17
    v_mov_b32 v29, v18
    v_mov_b32 v30, v19
    v_mov_b32 v31, v20
    ds_write_b128 v40, v[24:27] offset:{32+KC_STRIDE}
    v_mov_b32 v32, v25
    v_mov_b32 v33, v26
    v_mov_b32 v34, v27
    v_alignbit_b32 v35, v21, v20, 16
    ds_write_b128 v40, v[28:31] offset:{32+2*KC_STRIDE}
    ds_write_b128 v40, v[32:35] offset:{32+3*KC_STRIDE}
    s_cmp_lg_u32 s79, 0
    s_cbranch_scc1 {lnf}
    s_mov_b64 exec, 1
    v_lshlrev_b32 v37, 16, v16
    v_mov_b32 v36, 0
    v_mov_b32 v38, 0
    v_mov_b32 v39, v16
    v_mov_b32 v42, v37
    v_mov_b32 v43, v24
    ds_write_b64 v40, v[36:37] offset:{24+KC_STRIDE}
    ds_write_b64 v40, v[38:39] offset:{24+2*KC_STRIDE}
    ds_write_b64 v40, v[42:43] offset:{24+3*KC_STRIDE}
    s_mov_b64 exec, -1""")
    a.label(lnf)
def ssm_load():
    a(f"buffer_load_dwordx4 v[16:19], v5, {SSM}, s81 offen{NT}\nbuffer_load_dwordx2 v[20:21], v5, {SSM}, s81 offen offset:16{NT}")
def zero_pads():
    lnz = a.new("Lnz")
    a(f"""s_cmp_lg_u32 s79, 0
    s_cbranch_scc1 {lnz}
    v_mov_b32 v44, 0
    v_mov_b32 v45, 0
    v_mov_b32 v46, 0
    v_mov_b32 v47, 0
    s_mov_b32 exec_hi, 0
    v_add_u32 v43, s82, v5
    ds_write_b128 v43, v[44:47]
    s_mov_b64 exec, 0xff
    v_lshrrev_b32 v42, 1, v1
    v_mul_u32_u24 v42, {KC_STRIDE}, v42
    v_and_b32 v4, 1, v1
    v_lshl_add_u32 v42, v4, 4, v42
    v_add_u32 v42, s80, v42
    ds_write_b128 v42, v[44:47]
    v_mov_b32 v42, {L_CNT}
    ds_write_b64 v42, v[44:45]
    s_mov_b64 exec, -1""")
    a.label(lnz)

a.raw(f".globl {NAME}\n.p2align 8\n.type {NAME},@function\n{NAME}:")
a("""s_cmp_ge_u32 s2, 256
s_cbranch_scc1 L_end
s_load_dwordx16 s[4:19], s[0:1], 0
s_load_dwordx8 s[20:27], s[0:1], 64""")
if STAMP: a("v_mov_b32 v15, 0\ns_memrealtime s[96:97]")
a(f"""v_lshrrev_b32 v4, 6, v0
v_and_b32 v1, 63, v0
v_readfirstlane_b32 s28, v4
v_and_b32 v2, 15, v0
v_bfe_u32 v3, v0, 4, 2
v_lshlrev_b32 v5, 4, v1
v_lshlrev_b32 v14, 7, v1
s_and_b32 s29, s2, 7
s_lshr_b32 s30, s2, 3
v_and_b32 v10, 31, v0
v_bfe_u32 v11, v0, 5, 3
s_lshl_b32 s72, s30, 16
s_lshl_b32 s73, s29, 7
s_add_u32 s72, s72, s73
v_lshlrev_b32 v12, 13, v11
v_lshl_add_u32 v12, v10, 2, v12
v_add_u32 v12, s72, v12
s_movk_i32 s74, 4096
s_lshr_b32 s78, s28, 2
s_and_b32 s79, s28, 3
s_mul_i32 s80, s78, {L_KC[1]-L_KC[0]}
s_add_u32 s80, s80, {L_KC[0]}
s_mul_i32 s82, s78, {L_U[1]-L_U[0]}
s_add_u32 s82, s82, {L_U[0]}
s_lshl_b32 s83, s29, 5
s_add_u32 s83, s83, s30
s_lshl_b32 s81, s83, 1
s_add_u32 s81, s81, s78
s_lshl_b32 s81, s81, 12
s_lshl_b32 s72, s79, 10
s_add_u32 s81, s81, s72
s_cmp_ge_u32 s28, 4
s_cbranch_scc1 L_aux""")
LD = "" if OPT.get("plain", 1) else " sc1"
a(f"""v_subrev_u32 v13, 3072, v12
v_mov_b32 v4, {OOB}
v_cmp_gt_i32 vcc, 0, v13
s_lshl_b32 s75, s29, 9
v_lshlrev_b32 v24, 4, v10
v_cndmask_b32 v13, v13, v4, vcc
s_waitcnt lgkmcnt(0)""")
srd(36, 6, 2097152); srd(64, 24, 256)
lnt = a.new("Lnotag")
a(f"""s_or_b32 s72, s2, s28
s_cmp_lg_u32 s72, 0
s_cbranch_scc1 {lnt}
s_memrealtime s[72:73]
s_waitcnt lgkmcnt(0)
s_or_b32 s72, s72, 1
v_mov_b32 v6, s72
v_mov_b32 v7, s73
v_mov_b32 v4, 0
s_mov_b64 exec, 1
buffer_store_dwordx2 v[6:7], v4, {DBG}, 0 offen sc1
s_mov_b64 exec, -1""")
a.label(lnt)
KR, VR = 48, 60
for r in range(3): a(f"buffer_load_dword v{KR+r}, v13, {K}, 0 offen offset:{1024*r}{NT}")
for r in range(8): a(f"buffer_load_dword v{KR+3+r}, v12, {K}, {'0' if r<4 else 's74'} offen offset:{1024*(r%4)}{NT}")
srd(44, 10, 4096)
a(f"buffer_load_dwordx4 v[76:79], v24, {SK}, s75 offen")
srd(40, 8, 2097152)
for r in range(8): a(f"buffer_load_dword v{VR+r}, v12, {V}, {'0' if r<4 else 's74'} offen offset:{1024*(r%4)}{NT}")
srd(48, 12, 2097152); srd(68, 26, WS_BYTES)
ssm_load()
srd(52, 18, 1835008); srd(60, 22, 2097152); srd(56, 20, 1835008)
zero_pads()
a(f"""v_and_b32 v4, 7, v10
v_xor_b32 v4, v4, v11
v_lshlrev_b32 v22, 8, v10
v_lshl_add_u32 v22, v4, 4, v22
v_add_u32 v22, {L_RED}, v22
v_lshrrev_b32 v23, 3, v1
v_lshrrev_b32 v4, 4, v1
v_and_b32 v13, 7, v1
v_xor_b32 v4, v4, v13
v_lshlrev_b32 v4, 4, v4
v_lshl_add_u32 v4, v23, 7, v4
v_lshlrev_b32 v13, 4, v13
v_lshl_add_u32 v13, v23, 12, v13
s_lshl_b32 s72, s28, 11
s_add_u32 s72, s72, {L_RED}
v_add_u32 v23, s72, v4
v_xor_b32 v12, 64, v23
s_lshl_b32 s72, s29, 18
s_lshl_b32 s73, s30, 7
s_add_u32 s90, s72, s73
s_lshl_b32 s72, s28, 16
s_add_u32 s90, s90, s72
s_add_u32 s90, s90, {WS_KVT}
s_add_u32 s91, s90, 32768
s_getreg_b32 s95, hwreg(HW_REG_XCC_ID)
s_and_b32 s95, s95, 0xff""")
mark(1)
a("s_waitcnt vmcnt(10)")
tag_load()
WPp = 80
for j in range(4):
    s0, s1 = 76 + (j >> 1), 78 + (j >> 1)
    if j & 1: a(f"v_and_b32 v{WPp+2*j}, 0xffff0000, v{s0}\nv_and_b32 v{WPp+1+2*j}, 0xffff0000, v{s1}")
    else:     a(f"v_lshlrev_b32 v{WPp+2*j}, 16, v{s0}\nv_lshlrev_b32 v{WPp+1+2*j}, 16, v{s1}")
KU = 88
for r in range(11): a(f"v_lshlrev_b32 v{KU+2*r}, 16, v{KR+r}\nv_and_b32 v{KU+2*r+1}, 0xffff0000, v{KR+r}")
O = 112
for st in range(4):
    for r in range(8):
        o = O + 2*r; ku = KU + 2*(r + st); w = WPp + 2*(3 - st)
        if st == 0: a(f"v_pk_mul_f32 v[{o}:{o+1}], v[{ku}:{ku+1}], v[{w}:{w+1}]")
        else: a(f"v_pk_fma_f32 v[{o}:{o+1}], v[{ku}:{ku+1}], v[{w}:{w+1}], v[{o}:{o+1}]")
a("s_waitcnt vmcnt(3)")
for r in range(8):
    a(f"v_lshlrev_b32 v{KU+2*r}, 16, v{VR+r}\nv_and_b32 v{KU+2*r+1}, 0xffff0000, v{VR+r}")
for r in range(8):
    o = O + 2*r
    a(f"v_pk_mul_f32 v[{o}:{o+1}], v[{o}:{o+1}], v[{KU+2*r}:{KU+2*r+1}]")
for c in range(2):
    for q in range(4):
        a(f"v_cvt_pk_bf16_f32 v{128+4*c+q}, v{O+2*(7-2*q)+c}, v{O+2*(6-2*q)+c}")
a(f"""ds_write_b128 v22, v[128:131]
ds_write_b128 v22, v[132:135] offset:128
s_waitcnt lgkmcnt(0)
s_barrier
ds_read_b128 v[128:131], v23
ds_read_b128 v[132:135], v12 offset:1024
v_mov_b32 v8, s95
v_mov_b32 v9, 0
s_waitcnt lgkmcnt(1)
buffer_store_dwordx4 v[128:131], v13, {WS}, s90 offen sc1
s_waitcnt lgkmcnt(0)
buffer_store_dwordx4 v[132:135], v13, {WS}, s91 offen sc1
s_waitcnt vmcnt(3)""")
kc_build()
a(f"""s_lshl_b32 s73, s83, 2
s_add_u32 s73, s73, s28
s_lshl_b32 s89, s73, 7
s_add_u32 s89, s89, {WS_F1}
s_waitcnt vmcnt(0)""")
tag_check()
a(f"""v_mov_b32 v4, 0
s_mov_b64 exec, 1
buffer_store_dwordx4 v[6:9], v4, {WS}, s89 offen sc1
s_mov_b64 exec, -1""")
mark(2)
a(f"s_cmp_lg_u32 s28, 0\ns_cbranch_scc1 L_bg")
lp, lpd, lnm = a.new("Lf1"), a.new("Lf1d"), a.new("Lnm")
a(f"""s_lshl_b32 s73, s29, 14
s_add_u32 s73, s73, {WS_F1}
s_add_u32 s77, s73, 8192
s_mov_b32 s72, {SPIN}
{lp}:
buffer_load_dwordx4 v[184:187], v14, {WS}, s73 offen sc1
buffer_load_dwordx4 v[188:191], v14, {WS}, s77 offen sc1
s_waitcnt vmcnt(0)
v_cmp_ne_u64 s[4:5], v[184:185], v[6:7]
v_cmp_ne_u64 vcc, v[188:189], v[6:7]
s_sub_u32 s72, s72, 1
s_cmp_eq_u32 s72, 0
s_cbranch_scc1 {lpd}
s_or_b64 s[4:5], s[4:5], vcc
s_cbranch_scc1 {lp}
{lpd}:""")
mark(3)
a(f"s_lshl_b32 s73, s83, 13\ns_add_u32 s73, s73, {WS_KVT}")
for c in range(2):
    a(f"s_mov_b32 m0, {L_U[c]+512}\ns_nop 0")
    for q in range(4): a(f"buffer_load_dwordx4 v5, {WS}, s73 offen offset:{1024*q}{LD} lds")
    if c == 0: a("s_add_u32 s73, s73, 4096")
a(f"""v_cmp_ne_u32 s[4:5], s95, v186
v_cmp_ne_u32 vcc, s95, v190
s_cmp_eq_u32 s72, 0
s_cbranch_scc1 {lnm}
s_or_b64 s[4:5], s[4:5], vcc
s_cbranch_scc1 {lnm}
v_mov_b32 v4, {L_MODE}
v_mov_b32 v184, {OPT.get("fast", 1)}
ds_write_b32 v4, v184
{lnm}:
s_waitcnt vmcnt(0)
s_branch L_p0_join""")

a.label("L_bg")
if OPT.get("pke", 0):
    a("s_cmp_eq_u32 s28, 3\ns_cbranch_scc1 L_p0_join")
    PKL, PKO = 192, 216
    a(f"""v_lshrrev_b32 v208, 5, v1
    v_and_b32 v209, 31, v1
    v_lshlrev_b32 v212, 12, v208
    v_lshl_add_u32 v212, v209, 2, v212
    v_lshrrev_b32 v213, 4, v209
    v_mul_u32_u24 v213, {56*2048}, v213
    v_and_b32 v209, 15, v209
    v_lshl_add_u32 v213, v209, 4, v213
    v_lshl_add_u32 v213, v208, 8, v213
    v_mov_b32 v214, {OOB}
    v_mov_b32 v215, {OOB}
    s_mov_b32 s95, 0
    """)
    a("s_mul_i32 s89, s2, 3\ns_add_u32 s89, s89, s28\ns_sub_u32 s89, s89, 1")
    lx = a.new("Lpkx")
    for u in range(2):
        if u == 1:
            a(f"s_add_u32 s89, s89, 1\ns_add_u32 s72, s2, 768\ns_cmp_eq_u32 s28, 1\ns_cselect_b32 s89, s72, s89\ns_cmp_ge_u32 s89, 896\ns_cbranch_scc1 {lx}\ns_mov_b32 s95, 1")
        a(f"""s_mul_i32 s73, s89, 2341
        s_lshr_b32 s73, s73, 18
        s_mul_i32 s72, s73, 112
        s_sub_u32 s72, s89, s72
        s_and_b32 s77, s72, 1
        s_lshr_b32 s72, s72, 1
        s_lshl_b32 s90, s72, 15
        s_lshl_b32 s91, s73, 7
        s_add_u32 s90, s90, s91
        s_lshl_b32 s91, s77, 13
        s_add_u32 s90, s90, s91""")
        for i in range(8):
            if i == 4: a("s_add_u32 s90, s90, 16384")
            a(f"buffer_load_dword v{PKL+8*u+i}, v212, {W2}, s90 offen offset:{(i&3)*1024}{NT}")
        a(f"""s_mul_i32 s73, s73, 112
        s_add_u32 s73, s73, s72
        s_lshl_b32 s73, s73, 11
        s_lshl_b32 s77, s77, 9
        s_add_u32 s73, s73, s77
        v_add_u32 v{214+u}, s73, v213""")
    a.label(lx)
    a(f"""s_mov_b32 s75, 0x05040100
    s_mov_b32 s76, 0x07060302
    s_mov_b32 s90, {WS_W2P}
    s_mov_b32 s91, {WS_W2P+1024}
    s_waitcnt vmcnt(0)""")
    for u in range(2):
        if u == 1: a(f"s_cmp_eq_u32 s95, 0\ns_cbranch_scc1 L_p0_join")
        for c in range(2):
            for q in range(4):
                a(f"v_perm_b32 v{PKO+8*u+4*c+q}, v{PKL+8*u+2*q+1}, v{PKL+8*u+2*q}, s{75+c}")
        a(f"buffer_store_dwordx4 v[{PKO+8*u}:{PKO+3+8*u}], v{214+u}, {WS}, s90 offen sc1")
        a(f"buffer_store_dwordx4 v[{PKO+4+8*u}:{PKO+7+8*u}], v{214+u}, {WS}, s91 offen sc1")

a("s_branch L_p0_join")
a.label("L_aux")
a(f"""v_lshrrev_b32 v24, 3, v1
v_lshlrev_b32 v24, 10, v24
v_and_b32 v4, 7, v1
v_lshl_add_u32 v24, v4, 4, v24
s_lshl_b32 s72, s2, 13
s_waitcnt lgkmcnt(0)""")
srd(32, 4, 2097152)
XR, XS = 48, 64
for r in range(8): a(f"buffer_load_dword v{XR+r}, v12, {X}, {'0' if r<4 else 's74'} offen offset:{1024*(r%4)}{NT}")
srd(48, 12, 2097152)
ssm_load()
ls = a.new("Lnst")
a(f"s_cmp_lg_u32 s28, 4\ns_cbranch_scc1 {ls}")
for i in range(8): a(f"buffer_load_dwordx4 v[{XS+4*i}:{XS+4*i+3}], v24, {X}, s72 offen offset:{128*i}{NT}")
a.label(ls)
srd(56, 20, 1835008); srd(52, 18, 1835008); srd(64, 24, 256); srd(68, 26, WS_BYTES); srd(60, 22, 2097152)
zero_pads()
XSTG = L_RED + 8192
a(f"""v_and_b32 v4, 7, v10
v_lshlrev_b32 v13, 1, v11
v_xor_b32 v4, v4, v13
v_lshlrev_b32 v22, 8, v10
v_lshl_add_u32 v22, v4, 4, v22
v_add_u32 v22, {XSTG}, v22
v_xor_b32 v12, 16, v22
v_lshrrev_b32 v23, 4, v1
v_and_b32 v13, 15, v1
v_xor_b32 v4, v23, v13
v_lshlrev_b32 v4, 4, v4
v_lshl_add_u32 v4, v23, 8, v4
v_lshlrev_b32 v13, 4, v13
v_lshl_add_u32 v13, v23, 13, v13
s_lshl_b32 s72, s79, 11
s_add_u32 s72, s72, {XSTG}
v_add_u32 v23, s72, v4
v_xor_b32 v11, 64, v23
s_lshl_b32 s72, s29, 18
s_lshl_b32 s73, s30, 8
s_add_u32 s90, s72, s73
s_lshl_b32 s72, s79, 16
s_add_u32 s90, s90, s72
s_add_u32 s90, s90, {WS_XD}
s_add_u32 s91, s90, 32768
s_mov_b32 s75, 0x3f803f80""")
mark(1)
a(f"""s_cmp_eq_u32 s28, 4
s_cbranch_scc1 L_w4a
s_waitcnt vmcnt(2)
s_branch L_w4b
L_w4a:
s_waitcnt vmcnt(10)
L_w4b:""")
tag_load()
a(f"""ds_write_b128 v22, v[{XR}:{XR+3}]
ds_write_b128 v12, v[{XR+4}:{XR+7}]
s_waitcnt lgkmcnt(0)
s_barrier
ds_read_b128 v[128:131], v23
ds_read_b128 v[132:135], v11 offset:1024
s_waitcnt lgkmcnt(1)
buffer_store_dwordx4 v[128:131], v13, {WS}, s90 offen sc1
s_waitcnt lgkmcnt(0)
buffer_store_dwordx4 v[132:135], v13, {WS}, s91 offen sc1
s_waitcnt vmcnt(3)
s_cmp_lg_u32 s28, 4
s_cbranch_scc1 L_aux_pub""")
for i in range(4): a(f"v_mov_b32 v{100+i}, 0")
for i in range(32): a(f"v_dot2_f32_bf16 v{100+(i&3)}, v{XS+i}, s75, v{100+(i&3)}")
a("s_nop 2\nv_add_f32 v100, v100, v101\nv_add_f32 v102, v102, v103\nv_add_f32 v100, v100, v102")
def red8(v):
    for m in ("quad_perm:[1,0,3,2]", "quad_perm:[2,3,0,1]", "row_half_mirror"):
        a(f"s_nop 1\nv_add_f32_dpp v{v}, v{v}, v{v} {m} row_mask:0xf bank_mask:0xf")
red8(100)
a("v_mul_f32 v100, 0x3b000000, v100\nv_mov_b32 v101, v100")
for i in range(4): a(f"v_mov_b32 v{102+i}, 0")
for i in range(32):
    t = 106 + 2*(i & 3); ac = 102 + 2*(i & 1)
    a(f"v_lshlrev_b32 v{t}, 16, v{XS+i}\nv_and_b32 v{t+1}, 0xffff0000, v{XS+i}")
    a(f"v_pk_add_f32 v[{t}:{t+1}], v[{t}:{t+1}], v[100:101] neg_lo:[0,1] neg_hi:[0,1]")
    a(f"v_pk_fma_f32 v[{ac}:{ac+1}], v[{t}:{t+1}], v[{t}:{t+1}], v[{ac}:{ac+1}]")
a("v_add_f32 v102, v102, v103\nv_add_f32 v104, v104, v105\nv_add_f32 v102, v102, v104")
red8(102)
a(f"""v_mul_f32 v102, 0x3b000000, v102
v_cvt_pk_bf16_f32 v104, v100, v102
v_and_b32 v105, 0xffff0000, v104
v_add_f32 v105, 0x3727c5ac, v105
v_cvt_pk_bf16_f32 v105, v105, v105
v_and_b32 v105, 0xffff0000, v105
v_sqrt_f32 v105, v105
s_nop 0
v_cvt_pk_bf16_f32 v105, v104, v105
v_and_b32 v104, 0xffff, v104
v_and_b32 v105, 0xffff0000, v105
v_or_b32 v104, v104, v105
v_lshrrev_b32 v24, 3, v1
v_lshlrev_b32 v24, 2, v24
s_lshl_b32 s72, s2, 5
s_add_u32 s72, s72, {WS_ST}
s_mov_b32 exec_lo, 0x01010101
s_mov_b32 exec_hi, 0x01010101
buffer_store_dword v104, v24, {WS}, s72 offen sc1
s_mov_b64 exec, -1""")
a.label("L_aux_pub")
kc_build()
a("s_waitcnt vmcnt(0)")
tag_check()
lnf = a.new("Lnfx")
a(f"""v_mov_b32 v24, {L_CNT}
v_mov_b32 v25, 1
s_mov_b64 exec, 1
ds_add_rtn_u32 v25, v24, v25
s_mov_b64 exec, -1
s_waitcnt lgkmcnt(0)
v_readfirstlane_b32 s72, v25
s_cmp_lg_u32 s72, 3
s_cbranch_scc1 {lnf}
s_lshl_b32 s73, s2, 7
s_add_u32 s73, s73, {WS_FX}""")
flag_store("s73")
a.label(lnf)
mark(2)

a.label("L_p0_join")
ACC = 16; AF = [48, 112]; BF = [80, 144]
a(f"""s_lshr_b32 s84, s30, 3
s_lshr_b32 s72, s29, 1
s_lshl_b32 s72, s72, 2
s_add_u32 s84, s84, s72
s_and_b32 s85, s30, 7
s_and_b32 s72, s29, 1
s_lshl_b32 s72, s72, 3
s_add_u32 s85, s85, s72
v_mov_b32 v214, {OOB}
v_mov_b32 v215, {OOB}
v_mov_b32 v234, {OOB}
s_mul_i32 s88, s85, 224
s_and_b32 s94, s85, 1
s_lshr_b32 s86, s28, 1
s_and_b32 s87, s28, 1
s_lshr_b32 s72, s85, 1
s_lshl_b32 s72, s72, 1
s_add_u32 s72, s72, s87
s_mul_i32 s31, s72, 56
s_mul_i32 s72, s86, 14
s_add_u32 s31, s31, s72
s_lshl_b32 s31, s31, 11
s_add_u32 s31, s31, {WS_W2P}
v_add_u32 v10, 1, v2
v_and_b32 v11, 3, v10
v_mul_u32_u24 v11, {KC_STRIDE}, v11
v_lshrrev_b32 v10, 2, v10
v_lshl_add_u32 v10, v10, 3, v11
v_lshlrev_b32 v11, 4, v3
v_sub_u32 v10, v10, v11
s_lshl_b32 s72, s79, 7
s_add_u32 s73, s80, s72
s_add_u32 s73, s73, 48
v_add_u32 v10, s73, v10
v_lshl_add_u32 v11, v2, 5, v11
s_add_u32 s73, s82, {480-64}
s_sub_u32 s73, s73, s72
v_add_u32 v11, s73, v11
v_lshlrev_b32 v13, 6, v2
v_lshl_add_u32 v13, v3, 4, v13
s_lshl_b32 s72, s28, 10
s_add_u32 s72, s72, {L_XS}
v_add_u32 v13, s72, v13
s_lshl_b32 s72, s83, 2
s_add_u32 s14, s14, s72
s_addc_u32 s15, s15, 0
s_load_dword s93, s[14:15], 0""")
a("s_waitcnt lgkmcnt(0)")
for i in range(32): a(f"v_mov_b32 v{ACC+i}, 0")
if STOP <= 0: a("s_branch L_fin")
a("s_barrier")
mark(4)
a("s_cmp_gt_u32 s28, 3\ns_cbranch_scc1 L_conv_t\ns_cmp_eq_u32 s28, 3\ns_cbranch_scc1 L_conv_w3")
if not OPT.get("pke", 0):
    a("s_cmp_eq_u32 s28, 0\ns_cbranch_scc1 L_conv_go")
    PKL, PKO = 192, 216
    a(f"""v_lshrrev_b32 v208, 5, v1
    v_and_b32 v209, 31, v1
    v_lshlrev_b32 v212, 12, v208
    v_lshl_add_u32 v212, v209, 2, v212
    v_lshrrev_b32 v213, 4, v209
    v_mul_u32_u24 v213, {56*2048}, v213
    v_and_b32 v209, 15, v209
    v_lshl_add_u32 v213, v209, 4, v213
    v_lshl_add_u32 v213, v208, 8, v213
    v_mov_b32 v214, {OOB}
    v_mov_b32 v215, {OOB}
    s_mov_b32 s95, 0
    """)
    a("s_mul_i32 s89, s2, 3\ns_add_u32 s89, s89, s28\ns_sub_u32 s89, s89, 1")
    lx = a.new("Lpkx")
    for u in range(2):
        if u == 1:
            a(f"s_add_u32 s89, s89, 1\ns_add_u32 s72, s2, 768\ns_cmp_eq_u32 s28, 1\ns_cselect_b32 s89, s72, s89\ns_cmp_ge_u32 s89, 896\ns_cbranch_scc1 {lx}\ns_mov_b32 s95, 1")
        a(f"""s_mul_i32 s73, s89, 2341
        s_lshr_b32 s73, s73, 18
        s_mul_i32 s72, s73, 112
        s_sub_u32 s72, s89, s72
        s_and_b32 s77, s72, 1
        s_lshr_b32 s72, s72, 1
        s_lshl_b32 s90, s72, 15
        s_lshl_b32 s91, s73, 7
        s_add_u32 s90, s90, s91
        s_lshl_b32 s91, s77, 13
        s_add_u32 s90, s90, s91""")
        for i in range(8):
            if i == 4: a("s_add_u32 s90, s90, 16384")
            a(f"buffer_load_dword v{PKL+8*u+i}, v212, {W2}, s90 offen offset:{(i&3)*1024}{NT}")
        a(f"""s_mul_i32 s73, s73, 112
        s_add_u32 s73, s73, s72
        s_lshl_b32 s73, s73, 11
        s_lshl_b32 s77, s77, 9
        s_add_u32 s73, s73, s77
        v_add_u32 v{214+u}, s73, v213""")
    a.label(lx)

a("s_branch L_conv_go")
a.label("L_conv_w3")
a(f"s_mov_b32 s73, {WS_FX}")
polln("s73", 4)
a(f"s_lshl_b32 s73, s83, 13\ns_add_u32 s73, s73, {WS_XD}\ns_mov_b32 m0, {L_XS}\ns_nop 0")
for q in range(4): a(f"buffer_load_dwordx4 v5, {WS}, s73 offen offset:{1024*q}{LD} lds")
a(f"s_add_u32 s73, s73, 4096\ns_mov_b32 m0, {L_XS+4096}\ns_nop 0")
for q in range(4): a(f"buffer_load_dwordx4 v5, {WS}, s73 offen offset:{1024*q}{LD} lds")
a(f"s_mov_b32 s73, {WS_ST}\ns_mov_b32 m0, {L_ST}\ns_nop 0")
for q in range(4): a(f"buffer_load_dwordx4 v5, {WS}, s73 offen offset:{1024*q}{LD} lds")
a(f"s_mov_b32 s73, {WS_ST+4096}\ns_mov_b32 m0, {L_ST+4096}\ns_nop 0")
for q in range(4): a(f"buffer_load_dwordx4 v5, {WS}, s73 offen offset:{1024*q}{LD} lds")
a("s_branch L_conv_go")
a.label("L_conv_t")
a(f"""s_mul_i32 s89, s30, 57344
s_mul_i32 s72, s79, 14336
s_add_u32 s89, s89, s72
s_and_b32 s72, s29, 1
s_mul_i32 s72, s72, 1792
s_add_u32 s89, s89, s72
v_mul_u32_u24 v234, 3584, v3
v_min_u32 v235, 13, v2
v_lshl_add_u32 v234, v235, 7, v234
""")
a.label("L_conv_go")
def reads(ph, T):
    return [f"ds_read_b64 v[{AF[ph]+4*T}:{AF[ph]+4*T+1}], v10 offset:{512*T+64*ph}",
            f"ds_read_b64 v[{AF[ph]+4*T+2}:{AF[ph]+4*T+3}], v10 offset:{512*T+64*ph+8}",
            f"ds_read_b128 v[{BF[ph]+4*T}:{BF[ph]+4*T+3}], v11 offset:{512*T+64*(1-ph)}"]
allreads = [r for ph in range(2) for T in range(8) for r in reads(ph, T)]
st = {"i": 0}
def issue(k):
    for _ in range(k):
        if st["i"] < len(allreads): a(allreads[st["i"]]); st["i"] += 1
issue(15)
for ph in range(2):
    for T in range(8):
        need = (ph * 8 + T + 1) * 3
        TP = {(0, 0): (4, 0), (0, 5): (5, 0), (1, 0): (6, 0), (1, 5): (7, 0)}
        if (ph, T) in TP:
            w_, r_ = TP[(ph, T)]; lk = a.new("Ltk")
            a(f"s_cmp_lg_u32 s28, {w_}\ns_cbranch_scc1 {lk}\ns_add_u32 s72, s89, {8192*r_}\nbuffer_load_dword v{232+r_}, v234, {W1}, s72 offen\n{lk}:")
        a(f"s_waitcnt lgkmcnt({st['i'] - need})")
        for i in range(T + 1):
            a(f"v_mfma_f32_16x16x32_bf16 v[{ACC+4*T}:{ACC+4*T+3}], v[{AF[ph]+4*i}:{AF[ph]+4*i+3}], v[{BF[ph]+4*(T-i)}:{BF[ph]+4*(T-i)+3}], v[{ACC+4*T}:{ACC+4*T+3}]")
            if i < 3 and st["i"] - need < 15: issue(1)
if not OPT.get("pke", 0):
    a("s_sub_u32 s72, s28, 1\ns_cmp_gt_u32 s72, 1\ns_cbranch_scc1 L_conv_red")
    a(f"""s_mov_b32 s75, 0x05040100
    s_mov_b32 s76, 0x07060302
    s_mov_b32 s90, {WS_W2P}
    s_mov_b32 s91, {WS_W2P+1024}
    s_waitcnt vmcnt(0)""")
    for u in range(2):
        if u == 1: a(f"s_cmp_eq_u32 s95, 0\ns_cbranch_scc1 L_conv_red")
        for c in range(2):
            for q in range(4):
                a(f"v_perm_b32 v{PKO+8*u+4*c+q}, v{PKL+8*u+2*q+1}, v{PKL+8*u+2*q}, s{75+c}")
        a(f"buffer_store_dwordx4 v[{PKO+8*u}:{PKO+3+8*u}], v{214+u}, {WS}, s90 offen sc1")
        a(f"buffer_store_dwordx4 v[{PKO+4+8*u}:{PKO+7+8*u}], v{214+u}, {WS}, s91 offen sc1")

a.label("L_conv_red")
mark(5)
mode_read(183); mode_get(183)
a(f"""s_lshl_b32 s72, s28, 13
s_add_u32 s72, s72, {L_RED}
v_add_u32 v184, s72, v5""")
for T in range(8):
    if T == 7: a("s_nop 5")
    a(f"ds_write_b128 v184, v[{ACC+4*T}:{ACC+4*T+3}] offset:{1024*T}")
a(f"""s_lshl_b32 s72, s28, 10
s_add_u32 s72, s72, {L_RED}
v_add_u32 v186, s72, v5
v_lshlrev_b32 v185, 5, v2
v_lshrrev_b32 v4, 1, v3
v_lshl_add_u32 v185, v4, 4, v185
v_and_b32 v4, 1, v3
v_lshlrev_b32 v4, 3, v4
v_sub_u32 v185, v185, v4
s_lshl_b32 s72, s28, 9
s_add_u32 s72, s72, {L_U[0]+512+8}
v_add_u32 v185, s72, v185
ds_read_b64 v[176:177], v185
ds_read_b64 v[178:179], v185 offset:{L_U[1]-L_U[0]}
s_lshl_b32 s76, s93, 16
s_and_b32 s77, s93, 0xffff0000
v_lshrrev_b32 v187, 1, v2
v_lshlrev_b32 v187, 15, v187
v_lshl_add_u32 v187, v4, 3, v187
v_lshrrev_b32 v4, 1, v3
v_lshl_add_u32 v187, v4, 4, v187
v_and_b32 v4, 1, v2
v_lshl_add_u32 v187, v4, 5, v187
s_lshl_b32 s90, s83, 7
s_lshl_b32 s73, s28, 18
s_add_u32 s90, s90, s73
s_add_u32 s90, s90, {WS_HT}
s_lshl_b32 s73, s28, 8
s_add_u32 s73, s73, s83
s_lshl_b32 s91, s73, 7
s_add_u32 s91, s91, {WS_F2}
s_cmp_gt_u32 s28, 3
s_cbranch_scc1 L_nvw
s_waitcnt vmcnt(0)
L_nvw:
s_waitcnt lgkmcnt(0)
s_barrier""")
mark(6)
P = 48; KV, XP, LN, Y, STT = 120, 128, 136, 144, 152
a(f"ds_read_b128 v[116:119], v13 offset:{L_ST-L_XS}\nds_read_b128 v[112:115], v13")
for w in range(8): a(f"ds_read_b128 v[{P+4*w}:{P+4*w+3}], v186 offset:{8192*w}")
for c in range(2):
    d0, d1 = 176 + 2*c, 177 + 2*c
    a(f"v_lshlrev_b32 v{KV+6+c}, 16, v{d0}\nv_and_b32 v{KV+4+c}, 0xffff0000, v{d0}\nv_lshlrev_b32 v{KV+2+c}, 16, v{d1}\nv_and_b32 v{KV+c}, 0xffff0000, v{d1}")
a("s_waitcnt lgkmcnt(8)")
for r in range(4): a(f"v_and_b32 v{STT+r}, 0xffff0000, v{116+r}")
for r in range(4): a(f"v_rcp_f32 v{STT+r}, v{STT+r}")
for r in range(4): a(f"v_lshlrev_b32 v{STT+4+r}, 16, v{116+r}\nv_lshlrev_b32 v{XP+2*r}, 16, v{112+r}\nv_and_b32 v{XP+1+2*r}, 0xffff0000, v{112+r}")
for r in range(4):
    for c in range(2): a(f"v_sub_f32 v{LN+2*r+c}, v{XP+2*r+c}, v{STT+4+r}")
for r in range(4):
    for c in range(2): a(f"v_mul_f32 v{LN+2*r+c}, v{LN+2*r+c}, v{STT+r}")
a("s_waitcnt lgkmcnt(0)")
for c in range(2):
    b = P + 16*c
    for h in range(2):
        a(f"v_pk_add_f32 v[{b+2*h}:{b+2*h+1}], v[{b+2*h}:{b+2*h+1}], v[{b+4+2*h}:{b+5+2*h}]")
        a(f"v_pk_add_f32 v[{b+8+2*h}:{b+9+2*h}], v[{b+8+2*h}:{b+9+2*h}], v[{b+12+2*h}:{b+13+2*h}]")
    for r in range(4): a(f"v_add_f32 v{Y+2*r+c}, v{b+r}, v{b+8+r}")
for r in range(4): a(f"v_pk_fma_f32 v[{Y+2*r}:{Y+1+2*r}], v[{KV+2*r}:{KV+1+2*r}], s[76:77], v[{Y+2*r}:{Y+1+2*r}]")
for r in range(4): a(f"v_pk_fma_f32 v[{Y+2*r}:{Y+1+2*r}], v[{LN+2*r}:{LN+1+2*r}], v[{Y+2*r}:{Y+1+2*r}], v[{XP+2*r}:{XP+1+2*r}]")
a(f"""v_cvt_pk_bf16_f32 v160, v{Y}, v{Y+2}
v_cvt_pk_bf16_f32 v161, v{Y+4}, v{Y+6}
v_cvt_pk_bf16_f32 v162, v{Y+1}, v{Y+3}
v_cvt_pk_bf16_f32 v163, v{Y+5}, v{Y+7}
s_nop 1
v_permlane16_swap_b32 v160, v162
v_permlane16_swap_b32 v161, v163
s_nop 1
buffer_store_dwordx4 v[160:163], v187, {WS}, s90 offen sc1
s_waitcnt vmcnt(0)""")
flag_store("s91")
mark(7)
if STOP <= 1: a("s_branch L_fin")
a("s_barrier")
lw7, lw7d = a.new("Lw7"), a.new("Lw7d")
a(f"s_cmp_eq_u32 s28, 7\ns_cbranch_scc1 {lw7}")
KPRE = OPT.get("kpre", 8)
w1_pattern(133, "s28")
a("s_lshl_b32 s95, s28, 10")
def w1dma(ks): return f"s_add_u32 m0, s95, {ks*7168}\ns_add_u32 s72, s88, {ks*114688}\nbuffer_load_dwordx4 v133, {W1}, s72 offen lds"
for ks in range(KPRE): a(w1dma(ks))
a(f"s_branch {lw7d}")
a.label(lw7)
a(f"s_lshr_b32 s73, s84, 1\ns_lshl_b32 s73, s73, 15\ns_add_u32 s73, s73, {WS_F2}")
polln("s73", 4)
a.label(lw7d)
GA, ONE, CSH = 16, 56, 60
HFR = [64, 72]
WF = [80, 96]
a(f"""v_lshrrev_b32 v8, 1, v3
v_lshlrev_b32 v8, 4, v8
v_and_b32 v4, 1, v3
v_lshl_add_u32 v8, v4, 2, v8
v_lshrrev_b32 v4, 2, v2
v_add_u32 v8, v8, v4
v_and_b32 v4, 3, v2
v_lshlrev_b32 v4, 3, v4
v_and_b32 v9, 7, v8
v_lshl_add_u32 v9, v9, 5, v4
v_lshrrev_b32 v190, 1, v3
v_lshl_add_u32 v9, v190, 10, v9
v_lshrrev_b32 v190, 5, v1
v_lshlrev_b32 v190, 9, v190
v_bfe_u32 v191, v1, 1, 3
v_lshl_add_u32 v190, v191, 6, v190
v_bfe_u32 v191, v1, 4, 1
v_lshl_add_u32 v190, v191, 5, v190
v_and_b32 v191, 1, v1
v_lshl_add_u32 v190, v191, 4, v190
v_mul_u32_u24 v8, 224, v8
v_add_u32 v8, v8, v4
s_mul_i32 s92, s79, 12288
s_add_u32 s92, s92, {L_HR}
v_add_u32 v9, s92, v9
s_lshl_b32 s72, s94, 5
s_lshl_b32 s73, s78, 7
s_add_u32 s72, s72, s73
v_add_u32 v10, s72, v8
v_add_u32 v11, 57344, v10
s_mul_i32 s73, s94, 192
s_sub_u32 s73, 192, s73
v_add_u32 v12, s73, v8
v_add_u32 v13, 57344, v12
s_add_u32 s72, s28, s94
s_lshl_b32 s72, s72, 5
s_cmp_eq_u32 s28, 6
s_cselect_b32 s72, s73, s72
v_add_u32 v188, s72, v8
v_add_u32 v189, 57344, v188
s_lshl_b32 s90, s84, 3
s_lshl_b32 s72, s79, 1
s_add_u32 s90, s90, s72
s_lshl_b32 s91, s90, 14
s_add_u32 s91, s91, {WS_HT}""")
for i in range(40): a(f"v_mov_b32 v{GA+i}, 0")
for i in range(4): a(f"v_mov_b32 v{ONE+i}, 0x3f803f80")
a("s_waitcnt vmcnt(0)")
mark(8)
a("s_barrier")
mark(9)
def hdma(ks): return f"s_add_u32 m0, s92, {(ks % 6)*2048}\ns_add_u32 s74, s91, {ks*2048}\nbuffer_load_dwordx4 v190, {WS}, s74 offen{LD} lds\nbuffer_load_dwordx4 v190, {WS}, s74 offen offset:1024{LD} lds"
a(f"""s_lshl_b32 s73, s84, 17
s_and_b32 s72, s30, 7
s_lshl_b32 s72, s72, 14
s_add_u32 s73, s73, s72
s_and_b32 s72, s28, 1
s_lshl_b32 s72, s72, 13
s_add_u32 s73, s73, s72
s_add_u32 s73, s73, {WS_HT}
s_cmp_lt_u32 s28, 6
s_cbranch_scc1 L_noht
buffer_load_dword v135, v14, {WS}, s73 offen
L_noht:
s_mul_i32 s89, s30, 28672
s_lshl_b32 s72, s79, 13
s_min_u32 s72, s72, 20480
s_add_u32 s89, s89, s72
s_and_b32 s72, s29, 1
s_mul_i32 s72, s72, 917504
s_add_u32 s89, s89, s72
s_add_u32 s89, s89, {WS_W2P}""")
a("s_cmp_eq_u32 s78, 1\ns_cbranch_scc1 L_nohp")
for ks in range(6): a(hdma(ks))
a.label("L_nohp")
lcs = a.new("Lcs")
a(f"s_cmp_eq_u32 s28, 7\ns_cbranch_scc1 {lcs}")
CF = 80
def csrd(ks):
    for hq in range(2): a(f"ds_read_b64_tr_b16 v[{CF+4*(ks%7)+2*hq}:{CF+4*(ks%7)+2*hq+1}], v{188+(ks>>3)} offset:{(ks%8)*7168 + hq*1792}")
for ks in range(min(7, KPRE)): csrd(ks)
for ks in range(KPRE):
    a(f"s_waitcnt lgkmcnt({2*min(6, KPRE-1-ks)})")
    a(f"v_mfma_f32_16x16x32_bf16 v[{CSH}:{CSH+3}], v[{CF+4*(ks%7)}:{CF+4*(ks%7)+3}], v[{ONE}:{ONE+3}], {'0' if ks == 0 else f'v[{CSH}:{CSH+3}]'}")
    if ks + 7 < KPRE: csrd(ks + 7)
a.label(lcs)
a("s_cmp_eq_u32 s78, 1\ns_cbranch_scc1 L_g1_b")
def gemm1(fh):
    ns = 4 if fh == 0 else 3
    def rdw(ks):
        o = []; hi = ks >= 8
        for sl in range(ns):
            for hq in range(2):
                six = (fh == 1 and sl == 2)
                base = (12 + hi) if six else (10 + hi)
                off = (ks - 8*hi)*7168 + hq*1792 + (0 if six else sl*32)
                r = WF[ks & 1] + 4*sl + 2*hq
                o.append(f"ds_read_b64_tr_b16 v[{r}:{r+1}], v{base} offset:{off}")
        return o
    def rdh(ks):
        o = []
        for t in range(2):
            for hq in range(2):
                r = HFR[ks & 1] + 4*t + 2*hq
                o.append(f"ds_read_b64_tr_b16 v[{r}:{r+1}], v9 offset:{(ks % 6)*2048 + t*256 + hq*512}")
        return o
    W2L = w2_loads(0, 14)
    vm = [x for k in range(6) for x in (("h0", k), ("h", k))] if fh == 0 else []
    def vmw(tag): return len(vm) - 1 - vm.index(tag)
    for x in rdw(0): a(x)
    if fh == 0: a(f"s_waitcnt vmcnt({vmw(('h', 1))})")
    a("s_barrier")
    for x in rdh(0): a(x)
    wi = 0
    for ks in range(16):
        fill = []
        if ks % 2 == 1 and ks < 15:
            if fh == 0: fill.append(("wait", ("h", ks + 2), None))
            if KPRE <= ks + 2 and KPRE < 16: fill.append(("wait", ("d", min(15, ks + 2)), None))
            fill.append(("x", None, "s_barrier"))
            for k2 in (ks + 5, ks + 6):
                if k2 < 16 and fh == 0: fill.append(("vm2", ("h", k2), hdma(k2)))
        if ks < 15: fill += [("x", None, x) for x in rdh(ks + 1) + rdw(ks + 1)]
        nd = (16 - KPRE + 3) // 4
        for k2 in range(KPRE + nd*ks, min(16, KPRE + nd*(ks+1))):
            lk = a.new("Lw1")
            fill.append(("vm", ("d", k2), (f"s_cmp_eq_u32 s28, 7\ns_cbranch_scc1 {lk}\n" if fh == 1 else "") + w1dma(k2) + (f"\n{lk}:" if fh == 1 else "")))
        if ks + 1 >= KPRE and ks < 15:
            for hq in range(2): fill.append(("x", None, f"ds_read_b64_tr_b16 v[{112+4*((ks+1)&1)+2*hq}:{113+4*((ks+1)&1)+2*hq}], v{188+((ks+1)>>3)} offset:{((ks+1)%8)*7168 + hq*1792}"))
        kt = OPT.get("kt", 1)
        if fh == 1 and kt <= ks < kt + 8 and (ks - kt) % 2 == 0:
            j = (ks - kt) // 2; lk = a.new("Ltg")
            fill.append(("vm", ("t", j), f"s_cmp_eq_u32 s79, {j & 3}\ns_cselect_b32 s72, s89, {OOB}\nbuffer_load_dword v134, v14, {WS}, s72 offen"))
        for _ in range(OPT.get("pk", 3)):
            if wi < OPT.get("nl", 18) and ks >= (OPT.get("k0", 10) if fh == 0 else OPT.get("k1", 10)): fill.append(("vm", ("w", wi), W2L[wi])); wi += 1
        mf = []
        for sl in range(ns):
            for t in range(2):
                ac = GA + (sl*2 + t)*4; h = HFR[ks & 1] + 4*t
                mf.append(f"v_mfma_f32_16x16x32_bf16 v[{ac}:{ac+3}], v[{WF[ks&1]+4*sl}:{WF[ks&1]+4*sl+3}], v[{h}:{h+3}], v[{ac}:{ac+3}]")
        if fh == 1:
            for t in range(2):
                h = HFR[ks & 1] + 4*t
                mf.append(f"v_mfma_f32_16x16x32_bf16 v[{40+4*t}:{43+4*t}], v[{h}:{h+3}], v[{h}:{h+3}], v[{40+4*t}:{43+4*t}]")
                mf.append(f"v_mfma_f32_16x16x32_bf16 v[{48+4*t}:{51+4*t}], v[{ONE}:{ONE+3}], v[{h}:{h+3}], v[{48+4*t}:{51+4*t}]")
        if ks >= KPRE: mf.append(f"v_mfma_f32_16x16x32_bf16 v[{CSH}:{CSH+3}], v[{112+4*(ks&1)}:{115+4*(ks&1)}], v[{ONE}:{ONE+3}], v[{CSH}:{CSH+3}]")
        a("s_waitcnt lgkmcnt(0)")
        if OPT.get("g1m") and ks in (0, 4, 8, 12): mark({0: 1, 4: 2, 8: 3, 12: 14}[ks])
        k = 0
        per = (len(fill) + len(mf) - 1) // len(mf)
        for m, x in enumerate(mf):
            a(x)
            tgt = min(len(fill), per*(m+1))
            while k < tgt:
                kind, tag, txt = fill[k]; k += 1
                if kind == "vm": a(txt); vm.append(tag)
                elif kind == "vm2": a(txt); vm.append(("h0", tag[1])); vm.append(tag)
                elif kind == "wait": a(f"s_waitcnt vmcnt({vmw(tag)})")
                else: a(txt)
    mark(10)
    for _ in range(28 - wi):
        a(W2L[wi]); wi += 1
    a("s_barrier")
    if OPT.get("e1m"): mark(1)
    lc2 = a.new("Lc2")
    a(f"""v_lshlrev_b32 v10, 4, v3
    s_lshl_b32 s72, s28, 6
    v_add_u32 v4, s72, v10
    s_mov_b32 exec_lo, 0x00010001
    s_mov_b32 exec_hi, 0x00010001
    ds_write_b128 v4, v[{CSH}:{CSH+3}] offset:{L_CS}
    s_mov_b64 exec, -1
    s_lshl_b32 s72, s79, 8
    v_lshlrev_b32 v11, 3, v2
    v_add_u32 v11, s72, v11""")
    if fh == 1:
        a(f"""v_and_b32 v4, 3, v2
        v_cmp_eq_u32 s[72:73], 1, v4
        v_cmp_eq_u32 s[74:75], 2, v4
        v_cmp_eq_u32 s[76:77], 3, v4
        v_lshrrev_b32 v4, 2, v2
        v_cmp_eq_u32 vcc, v4, v3""")
        for t in range(2):
            g = 40 + 4*t
            a(f"""v_cndmask_b32_e64 v{g}, v{g}, v{g+1}, s[72:73]
            v_cndmask_b32_e64 v{g}, v{g}, v{g+2}, s[74:75]
            v_cndmask_b32_e64 v{g+1}, v{g}, v{g+3}, s[76:77]
            v_mov_b32 v{g}, v{48+4*t}""")
        a(f"""s_mov_b64 exec, vcc
        ds_write_b64 v11, v[40:41] offset:{L_SX}
        ds_write_b64 v11, v[44:45] offset:{L_SX+128}
        s_mov_b64 exec, -1""")
    CSR = 80
    a(f"""s_mul_i32 s72, s90, 57344
    s_add_u32 s72, s72, {WS_HP}
    s_mul_i32 s73, s85, 7
    s_add_u32 s74, s73, s94
    s_lshr_b32 s74, s74, 1
    s_lshl_b32 s74, s74, 10
    s_add_u32 s74, s74, s72
    s_mul_i32 s75, s94, 6
    s_sub_u32 s75, 6, s75
    s_add_u32 s75, s75, s73
    s_lshr_b32 s75, s75, 1
    s_lshl_b32 s75, s75, 10
    s_add_u32 s75, s75, s72
    s_lshl_b32 s76, s94, 3
    s_add_u32 s75, s75, s76
    v_add_u32 v12, 57344, v5
    s_waitcnt lgkmcnt(0)
    s_barrier
    ds_read_b64 v[64:65], v11 offset:{L_SX}
    ds_read_b64 v[66:67], v11 offset:{L_SX+128}""")
    for sl in range(ns): a(f"ds_read_b128 v[{CSR+4*sl}:{CSR+4*sl+3}], v10 offset:{L_CS + 64*(sl + 4*fh)}")
    a(f"s_waitcnt lgkmcnt({ns})")
    for t in range(2):
        s_, q_ = 64 + 2*t, 65 + 2*t
        a(f"""v_mul_f32 v{s_}, 0x3b000000, v{s_}
        v_mul_f32 v{q_}, 0x3b000000, v{q_}
        v_fma_f32 v{q_}, -v{s_}, v{s_}, v{q_}
        v_max_f32 v{q_}, 0, v{q_}
        v_cvt_pk_bf16_f32 v{s_}, v{s_}, v{q_}
        v_lshlrev_b32 v{70+4*t}, 16, v{s_}
        v_lshlrev_b32 v{71+4*t}, 16, v{s_}
        v_and_b32 v{q_}, 0xffff0000, v{s_}
        v_add_f32 v{q_}, 0x3727c5ac, v{q_}
        v_cvt_pk_bf16_f32 v{q_}, v{q_}, v{q_}
        v_and_b32 v{q_}, 0xffff0000, v{q_}
        v_sqrt_f32 v{q_}, v{q_}""")
    for t in range(2):
        q_ = 65 + 2*t
        a(f"""v_cvt_pk_bf16_f32 v{q_}, v{q_}, v{q_}
        v_and_b32 v{q_}, 0xffff0000, v{q_}
        v_rcp_f32 v{68+4*t}, v{q_}
        v_rcp_f32 v{69+4*t}, v{q_}""")
    a("s_waitcnt lgkmcnt(0)")
    TT = 96
    if OPT.get("e1m"): mark(2)
    for t in range(2): a(f"v_mul_f32 v{128+2*t}, 0xbfb8aa3b, v{68+4*t}\nv_mul_f32 v{129+2*t}, 0xbfb8aa3b, v{68+4*t}")
    a("v_mov_b32 v132, 1.0\nv_mov_b32 v133, 1.0")
    groups = [(0, 1), (2, 3)] if fh == 0 else [(0, 1), (2,)]
    for gi, grp in enumerate(groups):
        prs = [(sl, t, h) for sl in grp for t in range(2) for h in range(2)]
        def AC(sl, t, h): return GA + (sl*2+t)*4 + 2*h
        def T_(i): return TT + 16*gi + 2*i
        for i, (sl, t, h) in enumerate(prs):
            ac = AC(sl, t, h)
            a(f"v_pk_fma_f32 v[{ac}:{ac+1}], v[{CSR+4*sl+2*h}:{CSR+4*sl+2*h+1}], v[{70+4*t}:{71+4*t}], v[{ac}:{ac+1}] neg_lo:[0,1,0] neg_hi:[0,1,0]")
        for i, (sl, t, h) in enumerate(prs):
            ac = AC(sl, t, h)
            a(f"v_pk_mul_f32 v[{T_(i)}:{T_(i)+1}], v[{ac}:{ac+1}], v[{128+2*t}:{129+2*t}]")
        for i, (sl, t, h) in enumerate(prs):
            ac = AC(sl, t, h)
            a(f"v_exp_f32 v{T_(i)}, v{T_(i)}\nv_exp_f32 v{T_(i)+1}, v{T_(i)+1}\nv_pk_mul_f32 v[{ac}:{ac+1}], v[{ac}:{ac+1}], v[{68+4*t}:{69+4*t}]")
        for i in range(len(prs)): a(f"v_pk_add_f32 v[{T_(i)}:{T_(i)+1}], v[{T_(i)}:{T_(i)+1}], v[132:133]")
        for i in range(len(prs)): a(f"v_rcp_f32 v{T_(i)}, v{T_(i)}\nv_rcp_f32 v{T_(i)+1}, v{T_(i)+1}")
        a("s_nop 0")
        for i, (sl, t, h) in enumerate(prs):
            ac = AC(sl, t, h)
            a(f"v_pk_mul_f32 v[{ac}:{ac+1}], v[{ac}:{ac+1}], v[{T_(i)}:{T_(i)+1}]")
        for t in range(2):
            o = TT + 16*gi + 4*t
            for j, sl in enumerate(grp):
                ac = AC(sl, t, 0)
                a(f"v_cvt_pk_bf16_f32 v{o+2*j}, v{ac}, v{ac+1}\nv_cvt_pk_bf16_f32 v{o+2*j+1}, v{ac+2}, v{ac+3}")
            if len(grp) == 2: a(f"buffer_store_dwordx4 v[{o}:{o+3}], v{5 if t == 0 else 12}, {WS}, s74 offen offset:{1024*(gi + 2*fh)} sc1")
            else: a(f"buffer_store_dwordx2 v[{o}:{o+1}], v{5 if t == 0 else 12}, {WS}, s75 offen sc1")

    return wi
WI = gemm1(0); a("s_branch L_g1_done")
a.label("L_g1_b"); gemm1(1)
a.label("L_g1_done")
if OPT.get("e1m"): mark(3)
A3 = 16; HF = [64, 96]
a(f"""s_lshl_b32 s73, s84, 1
s_lshr_b32 s72, s79, 1
s_add_u32 s73, s73, s72
s_lshl_b32 s73, s73, 4
s_add_u32 s73, s73, s85
s_lshl_b32 s73, s73, 2
s_and_b32 s72, s79, 1
s_lshl_b32 s72, s72, 1
s_add_u32 s73, s73, s72
s_add_u32 s73, s73, s78
s_lshl_b32 s73, s73, 7
s_add_u32 s73, s73, {WS_F3}
s_lshl_b32 s90, s84, 1
s_add_u32 s90, s90, s94
s_lshl_b32 s89, s90, 13
s_add_u32 s89, s89, {WS_F3}
s_lshl_b32 s90, s90, 2
s_mul_i32 s91, s86, 14
s_add_u32 s91, s91, s87
s_lshl_b32 s91, s91, 10
s_add_u32 s91, s91, {WS_HP}""")
for u in range(4):
    a(f"""s_add_u32 s72, s86, {u}
    s_and_b32 s72, s72, 3
    s_add_u32 s72, s72, s90
    s_mul_i32 s72, s72, 57344
    s_add_u32 s{40+u}, s72, s91""")
a(f"""s_lshl_b32 s92, s86, 13
s_lshl_b32 s72, s87, 12
s_add_u32 s93, s92, s72
v_add_u32 v10, s92, v5
s_add_u32 s90, s90, s86
s_lshr_b32 s95, s90, 1
s_lshl_b32 s95, s95, 15
s_and_b32 s72, s90, 1
s_lshl_b32 s72, s72, 5
s_add_u32 s95, s95, s72
s_lshr_b32 s72, s85, 1
s_lshl_b32 s72, s72, 1
s_add_u32 s72, s72, s87
s_lshl_b32 s72, s72, 11
s_add_u32 s95, s95, s72
s_add_u32 s95, s95, {WS_HT}
v_lshlrev_b32 v11, 9, v3
v_lshl_add_u32 v11, v2, 1, v11
v_add_u32 v12, 65536, v10
v_add_u32 v13, 0x20000, v10
s_waitcnt vmcnt(0)""")
flag_store("s73")
for x in w2_loads(0, 14)[WI:]: a(x)
mark(11)
if STOP <= 2: a("s_branch L_fin")
for e in range(4):
    a(f"buffer_load_short_d16 v{128+e}, v11, {WS}, s95 offen offset:{128*e} sc1\nbuffer_load_short_d16_hi v{132+e}, v11, {WS}, s95 offen offset:{128*e+64} sc1")
for i in range(32): a(f"v_mov_b32 v{A3+i}, 0")
lnp = a.new("Lnp3")
a(f"s_cmp_lg_u32 s28, 7\ns_cbranch_scc1 {lnp}")
polln("s89", 1)
a.label(lnp)
a("s_barrier")
mark(12)
def stage_dma(s):
    return [f"s_add_u32 m0, s93, {(s % 5)*32768 + u*1024}\ns_add_u32 s72, s{40+u}, {2048*s}\nbuffer_load_dwordx4 v5, {WS}, s72 offen{LD} lds" for u in range(4)]
for s in range(5):
    for x in stage_dma(s): a(x)
for s in range(7):
    issued = min(7, max(5, s + 4))
    a(f"s_waitcnt vmcnt({4*(issued - s - 1)})\ns_barrier")
    if s >= 1 and s + 4 <= 6:
        for x in stage_dma(s + 4): a(x)
    sl = s % 5
    base = 10 + [0, 0, 2, 2, 3][sl]; off0 = [0, 32768, 0, 32768, 0][sl]
    hf = HF[s & 1]
    for j in range(8): a(f"ds_read_b128 v[{hf+4*j}:{hf+4*j+3}], v{base} offset:{off0 + 1024*j}")
    for k2 in range(2):
        kk = 2*s + k2; b = w2reg(kk)
        for u in range(4):
            a(f"s_waitcnt lgkmcnt({7 - (k2*4+u)})")
            for t in range(2):
                ac = A3 + (u*2+t)*4
                a(f"v_mfma_f32_16x16x32_bf16 v[{ac}:{ac+3}], v[{b+4*t}:{b+4*t+3}], v[{hf+16*k2+4*u}:{hf+16*k2+4*u+3}], v[{ac}:{ac+3}]")
mark(13)
a("s_barrier")
for u in range(1, 4):
    a(f"""s_add_u32 s72, s86, {u}
    s_and_b32 s72, s72, 3
    s_lshl_b32 s73, s87, 2
    s_add_u32 s72, s72, s73
    s_mul_i32 s72, s72, 6144
    s_add_u32 s72, s72, {(u-1)*2048}
    v_add_u32 v{10+u}, s72, v5""")
a("""s_lshl_b32 s73, s87, 2
s_add_u32 s72, s86, s73
s_mul_i32 s72, s72, 6144
v_add_u32 v10, s72, v5""")
for u in range(1, 4):
    for t in range(2):
        ac = A3 + (u*2+t)*4
        a(f"ds_write_b128 v{10+u}, v[{ac}:{ac+3}] offset:{1024*t}")
a("""s_lshl_b32 s72, s90, 14
s_lshr_b32 s73, s85, 1
s_lshl_b32 s73, s73, 7
s_add_u32 s72, s72, s73
s_lshl_b32 s73, s87, 6
s_add_u32 s72, s72, s73
v_lshlrev_b32 v9, 10, v2
v_lshl_add_u32 v9, v3, 4, v9""")
for e in range(4): a(f"v_lshlrev_b32 v{96+e}, 16, v{128+e}\nv_and_b32 v{100+e}, 0xffff0000, v{132+e}")
a("s_waitcnt lgkmcnt(0)\ns_barrier")
for j in range(6): a(f"ds_read_b128 v[{64+4*j}:{67+4*j}], v10 offset:{1024*j}")
for t in range(2):
    ac = A3 + t*4
    for h in range(2): a(f"v_pk_add_f32 v[{ac+2*h}:{ac+2*h+1}], v[{ac+2*h}:{ac+2*h+1}], v[{96+4*t+2*h}:{97+4*t+2*h}]")
a("s_waitcnt lgkmcnt(0)")
for t in range(2):
    ac = A3 + t*4
    for h in range(2):
        a(f"v_pk_add_f32 v[{ac+2*h}:{ac+2*h+1}], v[{ac+2*h}:{ac+2*h+1}], v[{64+4*t+2*h}:{65+4*t+2*h}]")
        a(f"v_pk_add_f32 v[{72+4*t+2*h}:{73+4*t+2*h}], v[{72+4*t+2*h}:{73+4*t+2*h}], v[{80+4*t+2*h}:{81+4*t+2*h}]")
for t in range(2):
    ac = A3 + t*4
    for h in range(2): a(f"v_pk_add_f32 v[{ac+2*h}:{ac+2*h+1}], v[{ac+2*h}:{ac+2*h+1}], v[{72+4*t+2*h}:{73+4*t+2*h}]")
for r in range(4): a(f"v_cvt_pk_bf16_f32 v{104+r}, v{A3+r}, v{A3+4+r}")
a(f"buffer_store_dwordx4 v[104:107], v9, {OUT}, s72 offen")
a.label("L_fin")
if STAMP:
    a(f"""s_mov_b64 exec, -1
    s_waitcnt vmcnt(0) lgkmcnt(0)
    s_memrealtime s[98:99]
    s_waitcnt lgkmcnt(0)
    v_writelane_b32 v15, s96, 0
    v_writelane_b32 v15, s98, 15
    s_lshl_b32 s72, s2, 9
    s_lshl_b32 s73, s28, 6
    s_add_u32 s72, s72, s73
    s_add_u32 s72, s72, {WS_STAMP}
    v_lshlrev_b32 v4, 2, v1
    s_mov_b64 exec, 0xffff
    buffer_store_dword v15, v4, {WS}, s72 offen
    s_add_u32 s72, s72, {0x100000 - 64}
    s_mov_b32 exec_lo, 0xffff0000
    buffer_store_dword v15, v4, {WS}, s72 offen""")
a.label("L_end")
a("s_endpgm")
a.raw(f""".section .rodata,"a"
.p2align 6
.amdhsa_kernel {NAME}
  .amdhsa_next_free_vgpr 256
  .amdhsa_next_free_sgpr 102
  .amdhsa_accum_offset 256
  .amdhsa_group_segment_fixed_size 0
  .amdhsa_kernarg_size 96
  .amdhsa_user_sgpr_count 2
  .amdhsa_user_sgpr_kernarg_segment_ptr 1
  .amdhsa_system_sgpr_workgroup_id_x 1
.end_amdhsa_kernel""")
HEADER = open("sequential_preLN__ssm_conv_h3__dense_activation_silu__prompt.s.ref").read().split("; Override launch")[0]
print(HEADER + f"; @launch grid=(256,1,1) block=(512,1,1) lds={LDS_BYTES}\n" + '.amdgcn_target "amdgcn-amd-amdhsa--gfx950"\n.text\n' + a.text())
```

```python
import sys
STAMP = "stamp" in sys.argv[1:]
STOP = 99
OPT = {"nt": 1, "fast": 0}
for x in sys.argv[1:]:
    if x.startswith("stop="): STOP = int(x[5:])
    elif "=" in x: k, v = x.split("="); OPT[k] = int(v)
NT = " nt" if OPT["nt"] else ""

WS_KVT = 0
WS_XD  = 2 << 20
WS_ST  = 4 << 20
WS_HT  = 6 << 20
WS_W2P = 10 << 20
WS_HP  = 12 << 20
WS_F1  = 20 << 20
WS_FX  = WS_F1 + 0x20000
WS_FC  = WS_F1 + 0x30000
WS_F2  = WS_F1 + 0x40000
WS_F3  = WS_F1 + 0x80000
WS_STAMP = 0x4000000
WS_BYTES = 268435456
OOB = 0x7FF00000
SPIN = 40000

W1_EARLY = 0
L_RED = 28672
L_XS = L_RED + 65536
L_ST = L_XS + 8192
L_U = [114688, 114688 + 4608]
L_KC = [123904, 123904 + 16640]
KC_STRIDE = 4160
L_CNT = 157184
L_MODE = 157188
L_HR = 114688
L_CS = 0
L_SX = 1024
LDS_BYTES = 163840
NAME = "sequential_preLN__ssm_conv_h3__dense_activation_silu__prompt_kernel"

class A:
    def __init__(s): s.l = []; s.uid = 0
    def __call__(s, txt):
        for ln in txt.strip("\n").split("\n"):
            if ln.strip(): s.l.append(("    " + ln.strip()) if not ln.strip().endswith(":") else ln.strip())
    def label(s, n): s.l.append(n + ":")
    def raw(s, t): s.l.append(t)
    def new(s, p="L"): s.uid += 1; return f"{p}_{s.uid}"
    def text(s): return "\n".join(s.l) + "\n"
a = A()
def srd(d, b, n):
    a(f"s_mov_b32 s{d}, s{b}\ns_mov_b32 s{d+1}, s{b+1}\ns_mov_b32 s{d+2}, {n}\ns_mov_b32 s{d+3}, 0x00020000")
def mark(i):
    if STAMP: a(f"s_memrealtime s[98:99]\ns_memtime s[100:101]\ns_waitcnt lgkmcnt(0)\nv_writelane_b32 v15, s98, {i}\nv_writelane_b32 v15, s100, {16+i}")
X, K, V, SK, SSM, W1, W2, OUT, DBG, WS = [f"s[{32+4*i}:{35+4*i}]" for i in range(10)]

def tag_load():
    a(f"v_mov_b32 v4, 0\nbuffer_load_dwordx2 v[6:7], v4, {DBG}, 0 offen sc1")
def tag_check():
    l0, l1 = a.new("Ltag"), a.new("Ltagd")
    a(f"s_mov_b32 s72, {SPIN}")
    a.label(l0)
    a(f"""v_readfirstlane_b32 s73, v6
    s_cmp_lg_u32 s73, 0
    s_cbranch_scc1 {l1}
    s_sub_u32 s72, s72, 1
    s_cmp_eq_u32 s72, 0
    s_cbranch_scc1 {l1}
    v_mov_b32 v4, 0
    buffer_load_dwordx2 v[6:7], v4, {DBG}, 0 offen sc1
    s_waitcnt vmcnt(0)
    s_branch {l0}""")
    a.label(l1)
def flag_store(soff):
    a(f"""v_mov_b32 v4, 0
    s_mov_b64 exec, 1
    buffer_store_dwordx2 v[6:7], v4, {WS}, {soff} offen sc1
    s_mov_b64 exec, -1""")
def polln(sbase, n, vt=184, preissued=False):
    M = ["s[4:5]", "s[6:7]", "s[8:9]", "s[16:17]"]
    l0, l1, l2 = a.new("Lpn"), a.new("Lpnd"), a.new("Lpnc")
    for i in range(n): a(f"s_mov_b64 {M[i]}, -1")
    a(f"s_mov_b32 s72, {SPIN}")
    if preissued: a(f"s_branch {l2}")
    a.label(l0)
    for i in range(n):
        sk = a.new("Lsk")
        a(f"s_mov_b64 exec, {M[i]}\ns_add_u32 s77, {sbase}, {8192*i}\ns_cbranch_execz {sk}\nbuffer_load_dwordx2 v[{vt+2*i}:{vt+2*i+1}], v14, {WS}, s77 offen sc1")
        a.label(sk)
    a("s_mov_b64 exec, -1")
    a.label(l2)
    a("s_waitcnt vmcnt(0)")
    for i in range(n):
        a(f"v_cmp_ne_u64 vcc, v[{vt+2*i}:{vt+2*i+1}], v[6:7]\ns_and_b64 {M[i]}, {M[i]}, vcc")
    a(f"s_mov_b64 s[10:11], {M[0]}")
    for i in range(1, n): a(f"s_or_b64 s[10:11], s[10:11], {M[i]}")
    a(f"""s_sub_u32 s72, s72, 1
    s_cmp_eq_u32 s72, 0
    s_cbranch_scc1 {l1}
    s_cmp_lg_u64 s[10:11], 0
    s_cbranch_scc1 {l0}""")
    a.label(l1)
def polln_pre(sbase, n, vt=184):
    for i in range(n): a(f"s_add_u32 s77, {sbase}, {8192*i}\nbuffer_load_dwordx2 v[{vt+2*i}:{vt+2*i+1}], v14, {WS}, s77 offen sc1")

def mode_read(vt):
    a(f"v_mov_b32 v{vt}, {L_MODE}\nds_read_b32 v{vt}, v{vt}")
def mode_get(vt):
    a(f"s_waitcnt lgkmcnt(0)\nv_readfirstlane_b32 s3, v{vt}")
def dual(stores):
    lf, ld = a.new("Lfast"), a.new("Ldual")
    a(f"s_cmp_eq_u32 s3, 1\ns_cbranch_scc1 {lf}")
    for x in stores: a(x + (" sc1" if x.startswith("buffer_store") else ""))
    a(f"s_branch {ld}")
    a.label(lf)
    for x in stores: a(x)
    a.label(ld)
W2A, W2B = 192, 136
def w2reg(kk): return W2A + 8*kk if kk < 8 else W2B + 8*(kk-8)
def w2_loads(k0, k1):
    L = []
    for kk in range(k0, k1):
        b = w2reg(kk)
        for t in range(2):
            L.append(f"s_add_u32 s74, s31, {(kk>>1)*4096}\nbuffer_load_dwordx4 v[{b+4*t}:{b+4*t+3}], v5, {WS}, s74 offen offset:{(kk&1)*2048 + t*1024}" + ("" if OPT.get("plain", 1) else " sc1"))
    return L
def w1_pattern(vd, sp):
    a(f"s_lshl_b32 s77, {sp}, 6\nv_add_u32 v{vd}, s77, v1\nv_mul_u32_u24 v4, 4682, v{vd}\nv_lshrrev_b32 v4, 16, v4\nv_lshlrev_b32 v{vd}, 4, v{vd}\ns_movk_i32 s77, 3360\nv_mad_u32_u24 v{vd}, v4, s77, v{vd}")

def kc_build():
    lnf = a.new("Lnofix")
    a(f"""s_lshl_b32 s72, s79, 10
    s_add_u32 s72, s72, s80
    v_add_u32 v40, s72, v5
    ds_write_b128 v40, v[16:19] offset:32
    v_alignbit_b32 v24, v17, v16, 16
    v_alignbit_b32 v25, v18, v17, 16
    v_alignbit_b32 v26, v19, v18, 16
    v_alignbit_b32 v27, v20, v19, 16
    v_mov_b32 v28, v17
    v_mov_b32 v29, v18
    v_mov_b32 v30, v19
    v_mov_b32 v31, v20
    ds_write_b128 v40, v[24:27] offset:{32+KC_STRIDE}
    v_mov_b32 v32, v25
    v_mov_b32 v33, v26
    v_mov_b32 v34, v27
    v_alignbit_b32 v35, v21, v20, 16
    ds_write_b128 v40, v[28:31] offset:{32+2*KC_STRIDE}
    ds_write_b128 v40, v[32:35] offset:{32+3*KC_STRIDE}
    s_cmp_lg_u32 s79, 0
    s_cbranch_scc1 {lnf}
    s_mov_b64 exec, 1
    v_lshlrev_b32 v37, 16, v16
    v_mov_b32 v36, 0
    v_mov_b32 v38, 0
    v_mov_b32 v39, v16
    v_mov_b32 v42, v37
    v_mov_b32 v43, v24
    ds_write_b64 v40, v[36:37] offset:{24+KC_STRIDE}
    ds_write_b64 v40, v[38:39] offset:{24+2*KC_STRIDE}
    ds_write_b64 v40, v[42:43] offset:{24+3*KC_STRIDE}
    s_mov_b64 exec, -1""")
    a.label(lnf)
def ssm_load():
    a(f"buffer_load_dwordx4 v[16:19], v5, {SSM}, s81 offen{NT}\nbuffer_load_dwordx2 v[20:21], v5, {SSM}, s81 offen offset:16{NT}")
def zero_pads():
    lnz = a.new("Lnz")
    a(f"""s_cmp_lg_u32 s79, 0
    s_cbranch_scc1 {lnz}
    v_mov_b32 v44, 0
    v_mov_b32 v45, 0
    v_mov_b32 v46, 0
    v_mov_b32 v47, 0
    s_mov_b32 exec_hi, 0
    v_add_u32 v43, s82, v5
    ds_write_b128 v43, v[44:47]
    s_mov_b64 exec, 0xff
    v_lshrrev_b32 v42, 1, v1
    v_mul_u32_u24 v42, {KC_STRIDE}, v42
    v_and_b32 v4, 1, v1
    v_lshl_add_u32 v42, v4, 4, v42
    v_add_u32 v42, s80, v42
    ds_write_b128 v42, v[44:47]
    v_mov_b32 v42, {L_CNT}
    ds_write_b64 v42, v[44:45]
    s_mov_b64 exec, -1""")
    a.label(lnz)

a.raw(f".globl {NAME}\n.p2align 8\n.type {NAME},@function\n{NAME}:")
a("""s_cmp_ge_u32 s2, 256
s_cbranch_scc1 L_end
s_load_dwordx16 s[4:19], s[0:1], 0
s_load_dwordx8 s[20:27], s[0:1], 64""")
if STAMP: a("v_mov_b32 v15, 0\ns_memrealtime s[96:97]")
if OPT.get("dbg"): a("s_memrealtime s[96:97]")
a(f"""v_lshrrev_b32 v4, 6, v0
v_and_b32 v1, 63, v0
v_readfirstlane_b32 s28, v4
v_and_b32 v2, 15, v0
v_bfe_u32 v3, v0, 4, 2
v_lshlrev_b32 v5, 4, v1
v_lshlrev_b32 v14, 7, v1
s_and_b32 s29, s2, 7
s_lshr_b32 s30, s2, 3
v_and_b32 v10, 31, v0
v_bfe_u32 v11, v0, 5, 3
s_lshl_b32 s72, s30, 16
s_lshl_b32 s73, s29, 7
s_add_u32 s72, s72, s73
v_lshlrev_b32 v12, 13, v11
v_lshl_add_u32 v12, v10, 2, v12
v_add_u32 v12, s72, v12
s_movk_i32 s74, 4096
s_lshr_b32 s78, s28, 2
s_and_b32 s79, s28, 3
s_mul_i32 s80, s78, {L_KC[1]-L_KC[0]}
s_add_u32 s80, s80, {L_KC[0]}
s_mul_i32 s82, s78, {L_U[1]-L_U[0]}
s_add_u32 s82, s82, {L_U[0]}
s_lshl_b32 s83, s29, 5
s_add_u32 s83, s83, s30
s_lshl_b32 s81, s83, 1
s_add_u32 s81, s81, s78
s_lshl_b32 s81, s81, 12
s_lshl_b32 s72, s79, 10
s_add_u32 s81, s81, s72
s_cmp_ge_u32 s28, 4
s_cbranch_scc1 L_aux""")
LD = "" if OPT.get("plain", 1) else " sc1"
a(f"""v_subrev_u32 v13, 3072, v12
v_mov_b32 v4, {OOB}
v_cmp_gt_i32 vcc, 0, v13
s_lshl_b32 s75, s29, 9
v_lshlrev_b32 v24, 4, v10
v_cndmask_b32 v13, v13, v4, vcc
s_waitcnt lgkmcnt(0)""")
srd(36, 6, 2097152); srd(64, 24, 256)
lnt = a.new("Lnotag")
a(f"""s_or_b32 s72, s2, s28
s_cmp_lg_u32 s72, 0
s_cbranch_scc1 {lnt}
s_memrealtime s[72:73]
s_waitcnt lgkmcnt(0)
s_or_b32 s72, s72, 1
v_mov_b32 v6, s72
v_mov_b32 v7, s73
v_mov_b32 v4, 0
s_mov_b64 exec, 1
buffer_store_dwordx2 v[6:7], v4, {DBG}, 0 offen sc1
s_mov_b64 exec, -1""")
a.label(lnt)
KR, VR = 48, 60
for r in range(3): a(f"buffer_load_dword v{KR+r}, v13, {K}, 0 offen offset:{1024*r}{NT}")
for r in range(8): a(f"buffer_load_dword v{KR+3+r}, v12, {K}, {'0' if r<4 else 's74'} offen offset:{1024*(r%4)}{NT}")
srd(44, 10, 4096)
a(f"buffer_load_dwordx4 v[76:79], v24, {SK}, s75 offen")
srd(40, 8, 2097152)
for r in range(8): a(f"buffer_load_dword v{VR+r}, v12, {V}, {'0' if r<4 else 's74'} offen offset:{1024*(r%4)}{NT}")
srd(48, 12, 2097152); srd(68, 26, WS_BYTES)
ssm_load()
srd(52, 18, 1835008); srd(60, 22, 2097152); srd(56, 20, 1835008)
zero_pads()
a(f"""v_and_b32 v4, 7, v10
v_xor_b32 v4, v4, v11
v_lshlrev_b32 v22, 8, v10
v_lshl_add_u32 v22, v4, 4, v22
v_add_u32 v22, {L_RED}, v22
v_lshrrev_b32 v23, 3, v1
v_lshrrev_b32 v4, 4, v1
v_and_b32 v13, 7, v1
v_xor_b32 v4, v4, v13
v_lshlrev_b32 v4, 4, v4
v_lshl_add_u32 v4, v23, 7, v4
v_lshlrev_b32 v13, 4, v13
v_lshl_add_u32 v13, v23, 12, v13
s_lshl_b32 s72, s28, 11
s_add_u32 s72, s72, {L_RED}
v_add_u32 v23, s72, v4
v_xor_b32 v12, 64, v23
s_lshl_b32 s72, s29, 18
s_lshl_b32 s73, s30, 7
s_add_u32 s90, s72, s73
s_lshl_b32 s72, s28, 16
s_add_u32 s90, s90, s72
s_add_u32 s90, s90, {WS_KVT}
s_add_u32 s91, s90, 32768
s_getreg_b32 s95, hwreg(HW_REG_XCC_ID)
s_and_b32 s95, s95, 0xff""")
mark(1)
a("s_waitcnt vmcnt(10)")
tag_load()
WPp = 80
for j in range(4):
    s0, s1 = 76 + (j >> 1), 78 + (j >> 1)
    if j & 1: a(f"v_and_b32 v{WPp+2*j}, 0xffff0000, v{s0}\nv_and_b32 v{WPp+1+2*j}, 0xffff0000, v{s1}")
    else:     a(f"v_lshlrev_b32 v{WPp+2*j}, 16, v{s0}\nv_lshlrev_b32 v{WPp+1+2*j}, 16, v{s1}")
KU = 88
for r in range(11): a(f"v_lshlrev_b32 v{KU+2*r}, 16, v{KR+r}\nv_and_b32 v{KU+2*r+1}, 0xffff0000, v{KR+r}")
O = 112
for st in range(4):
    for r in range(8):
        o = O + 2*r; ku = KU + 2*(r + st); w = WPp + 2*(3 - st)
        if st == 0: a(f"v_pk_mul_f32 v[{o}:{o+1}], v[{ku}:{ku+1}], v[{w}:{w+1}]")
        else: a(f"v_pk_fma_f32 v[{o}:{o+1}], v[{ku}:{ku+1}], v[{w}:{w+1}], v[{o}:{o+1}]")
a("s_waitcnt vmcnt(3)")
for r in range(8):
    a(f"v_lshlrev_b32 v{KU+2*r}, 16, v{VR+r}\nv_and_b32 v{KU+2*r+1}, 0xffff0000, v{VR+r}")
for r in range(8):
    o = O + 2*r
    a(f"v_pk_mul_f32 v[{o}:{o+1}], v[{o}:{o+1}], v[{KU+2*r}:{KU+2*r+1}]")
for c in range(2):
    for q in range(4):
        a(f"v_cvt_pk_bf16_f32 v{128+4*c+q}, v{O+2*(7-2*q)+c}, v{O+2*(6-2*q)+c}")
a(f"""ds_write_b128 v22, v[128:131]
ds_write_b128 v22, v[132:135] offset:128
s_waitcnt lgkmcnt(0)
s_barrier
ds_read_b128 v[128:131], v23
ds_read_b128 v[132:135], v12 offset:1024
v_mov_b32 v8, s95
v_mov_b32 v9, 0
s_waitcnt lgkmcnt(1)
buffer_store_dwordx4 v[128:131], v13, {WS}, s90 offen sc1
s_waitcnt lgkmcnt(0)
buffer_store_dwordx4 v[132:135], v13, {WS}, s91 offen sc1
s_waitcnt vmcnt(3)""")
kc_build()
a(f"""s_lshl_b32 s73, s83, 2
s_add_u32 s73, s73, s28
s_lshl_b32 s89, s73, 7
s_add_u32 s89, s89, {WS_F1}
s_waitcnt vmcnt(0)""")
tag_check()
a(f"""v_mov_b32 v4, 0
s_mov_b64 exec, 1
buffer_store_dwordx4 v[6:9], v4, {WS}, s89 offen sc1
s_mov_b64 exec, -1""")
mark(2)
a(f"s_cmp_lg_u32 s28, 0\ns_cbranch_scc1 L_bg")
lp, lpd, lnm = a.new("Lf1"), a.new("Lf1d"), a.new("Lnm")
a(f"""s_lshl_b32 s73, s29, 14
s_add_u32 s73, s73, {WS_F1}
s_add_u32 s77, s73, 8192
s_mov_b32 s72, {SPIN}
{lp}:
buffer_load_dwordx4 v[184:187], v14, {WS}, s73 offen sc1
buffer_load_dwordx4 v[188:191], v14, {WS}, s77 offen sc1
s_waitcnt vmcnt(0)
v_cmp_ne_u64 s[4:5], v[184:185], v[6:7]
v_cmp_ne_u64 vcc, v[188:189], v[6:7]
s_sub_u32 s72, s72, 1
s_cmp_eq_u32 s72, 0
s_cbranch_scc1 {lpd}
s_or_b64 s[4:5], s[4:5], vcc
s_cbranch_scc1 {lp}
{lpd}:""")
mark(3)
a(f"s_lshl_b32 s73, s83, 13\ns_add_u32 s73, s73, {WS_KVT}")
for c in range(2):
    a(f"s_mov_b32 m0, {L_U[c]+512}\ns_nop 0")
    for q in range(4): a(f"buffer_load_dwordx4 v5, {WS}, s73 offen offset:{1024*q}{LD} lds")
    if c == 0: a("s_add_u32 s73, s73, 4096")
a(f"""v_cmp_ne_u32 s[4:5], s95, v186
v_cmp_ne_u32 vcc, s95, v190
s_cmp_eq_u32 s72, 0
s_cbranch_scc1 {lnm}
s_or_b64 s[4:5], s[4:5], vcc
s_cbranch_scc1 {lnm}
v_mov_b32 v4, {L_MODE}
v_mov_b32 v184, {OPT.get("fast", 1)}
ds_write_b32 v4, v184
{lnm}:
s_waitcnt vmcnt(0)
s_branch L_p0_join""")

a.label("L_bg")
if OPT.get("pke", 0):
    a("s_cmp_eq_u32 s28, 3\ns_cbranch_scc1 L_p0_join")
    PKL, PKO = 192, 216
    a(f"""v_lshrrev_b32 v208, 5, v1
    v_and_b32 v209, 31, v1
    v_lshlrev_b32 v212, 12, v208
    v_lshl_add_u32 v212, v209, 2, v212
    v_lshrrev_b32 v213, 4, v209
    v_mul_u32_u24 v213, {56*2048}, v213
    v_and_b32 v209, 15, v209
    v_lshl_add_u32 v213, v209, 4, v213
    v_lshl_add_u32 v213, v208, 8, v213
    v_mov_b32 v214, {OOB}
    v_mov_b32 v215, {OOB}
    s_mov_b32 s95, 0
    """)
    a("s_mul_i32 s89, s2, 3\ns_add_u32 s89, s89, s28\ns_sub_u32 s89, s89, 1")
    lx = a.new("Lpkx")
    for u in range(2):
        if u == 1:
            a(f"s_add_u32 s89, s89, 1\ns_add_u32 s72, s2, 768\ns_cmp_eq_u32 s28, 1\ns_cselect_b32 s89, s72, s89\ns_cmp_ge_u32 s89, 896\ns_cbranch_scc1 {lx}\ns_mov_b32 s95, 1")
        a(f"""s_mul_i32 s73, s89, 2341
        s_lshr_b32 s73, s73, 18
        s_mul_i32 s72, s73, 112
        s_sub_u32 s72, s89, s72
        s_and_b32 s77, s72, 1
        s_lshr_b32 s72, s72, 1
        s_lshl_b32 s90, s72, 15
        s_lshl_b32 s91, s73, 7
        s_add_u32 s90, s90, s91
        s_lshl_b32 s91, s77, 13
        s_add_u32 s90, s90, s91""")
        for i in range(8):
            if i == 4: a("s_add_u32 s90, s90, 16384")
            a(f"buffer_load_dword v{PKL+8*u+i}, v212, {W2}, s90 offen offset:{(i&3)*1024}{NT}")
        a(f"""s_mul_i32 s73, s73, 112
        s_add_u32 s73, s73, s72
        s_lshl_b32 s73, s73, 11
        s_lshl_b32 s77, s77, 9
        s_add_u32 s73, s73, s77
        v_add_u32 v{214+u}, s73, v213""")
    a.label(lx)
    a(f"""s_mov_b32 s75, 0x05040100
    s_mov_b32 s76, 0x07060302
    s_mov_b32 s90, {WS_W2P}
    s_mov_b32 s91, {WS_W2P+1024}
    s_waitcnt vmcnt(0)""")
    for u in range(2):
        if u == 1: a(f"s_cmp_eq_u32 s95, 0\ns_cbranch_scc1 L_p0_join")
        for c in range(2):
            for q in range(4):
                a(f"v_perm_b32 v{PKO+8*u+4*c+q}, v{PKL+8*u+2*q+1}, v{PKL+8*u+2*q}, s{75+c}")
        a(f"buffer_store_dwordx4 v[{PKO+8*u}:{PKO+3+8*u}], v{214+u}, {WS}, s90 offen sc1")
        a(f"buffer_store_dwordx4 v[{PKO+4+8*u}:{PKO+7+8*u}], v{214+u}, {WS}, s91 offen sc1")

a("s_branch L_p0_join")
a.label("L_aux")
a(f"""v_lshrrev_b32 v24, 3, v1
v_lshlrev_b32 v24, 10, v24
v_and_b32 v4, 7, v1
v_lshl_add_u32 v24, v4, 4, v24
s_lshl_b32 s72, s2, 13
s_waitcnt lgkmcnt(0)""")
srd(32, 4, 2097152)
XR, XS = 48, 64
for r in range(8): a(f"buffer_load_dword v{XR+r}, v12, {X}, {'0' if r<4 else 's74'} offen offset:{1024*(r%4)}{NT}")
srd(48, 12, 2097152)
ssm_load()
ls = a.new("Lnst")
a(f"s_cmp_lg_u32 s28, 4\ns_cbranch_scc1 {ls}")
for i in range(8): a(f"buffer_load_dwordx4 v[{XS+4*i}:{XS+4*i+3}], v24, {X}, s72 offen offset:{128*i}{NT}")
a.label(ls)
srd(56, 20, 1835008); srd(52, 18, 1835008); srd(64, 24, 256); srd(68, 26, WS_BYTES); srd(60, 22, 2097152)
zero_pads()
XSTG = L_RED + 8192
a(f"""v_and_b32 v4, 7, v10
v_lshlrev_b32 v13, 1, v11
v_xor_b32 v4, v4, v13
v_lshlrev_b32 v22, 8, v10
v_lshl_add_u32 v22, v4, 4, v22
v_add_u32 v22, {XSTG}, v22
v_xor_b32 v12, 16, v22
v_lshrrev_b32 v23, 4, v1
v_and_b32 v13, 15, v1
v_xor_b32 v4, v23, v13
v_lshlrev_b32 v4, 4, v4
v_lshl_add_u32 v4, v23, 8, v4
v_lshlrev_b32 v13, 4, v13
v_lshl_add_u32 v13, v23, 13, v13
s_lshl_b32 s72, s79, 11
s_add_u32 s72, s72, {XSTG}
v_add_u32 v23, s72, v4
v_xor_b32 v11, 64, v23
s_lshl_b32 s72, s29, 18
s_lshl_b32 s73, s30, 8
s_add_u32 s90, s72, s73
s_lshl_b32 s72, s79, 16
s_add_u32 s90, s90, s72
s_add_u32 s90, s90, {WS_XD}
s_add_u32 s91, s90, 32768
s_mov_b32 s75, 0x3f803f80""")
mark(1)
a(f"""s_cmp_eq_u32 s28, 4
s_cbranch_scc1 L_w4a
s_waitcnt vmcnt(2)
s_branch L_w4b
L_w4a:
s_waitcnt vmcnt(10)
L_w4b:""")
tag_load()
a(f"""ds_write_b128 v22, v[{XR}:{XR+3}]
ds_write_b128 v12, v[{XR+4}:{XR+7}]
s_waitcnt lgkmcnt(0)
s_barrier
ds_read_b128 v[128:131], v23
ds_read_b128 v[132:135], v11 offset:1024
s_waitcnt lgkmcnt(1)
buffer_store_dwordx4 v[128:131], v13, {WS}, s90 offen sc1
s_waitcnt lgkmcnt(0)
buffer_store_dwordx4 v[132:135], v13, {WS}, s91 offen sc1
s_waitcnt vmcnt(3)
s_cmp_lg_u32 s28, 4
s_cbranch_scc1 L_aux_pub""")
for i in range(4): a(f"v_mov_b32 v{100+i}, 0")
for i in range(32): a(f"v_dot2_f32_bf16 v{100+(i&3)}, v{XS+i}, s75, v{100+(i&3)}")
a("s_nop 2\nv_add_f32 v100, v100, v101\nv_add_f32 v102, v102, v103\nv_add_f32 v100, v100, v102")
def red8(v):
    for m in ("quad_perm:[1,0,3,2]", "quad_perm:[2,3,0,1]", "row_half_mirror"):
        a(f"s_nop 1\nv_add_f32_dpp v{v}, v{v}, v{v} {m} row_mask:0xf bank_mask:0xf")
red8(100)
a("v_mul_f32 v100, 0x3b000000, v100\nv_mov_b32 v101, v100")
for i in range(4): a(f"v_mov_b32 v{102+i}, 0")
for i in range(32):
    t = 106 + 2*(i & 3); ac = 102 + 2*(i & 1)
    a(f"v_lshlrev_b32 v{t}, 16, v{XS+i}\nv_and_b32 v{t+1}, 0xffff0000, v{XS+i}")
    a(f"v_pk_add_f32 v[{t}:{t+1}], v[{t}:{t+1}], v[100:101] neg_lo:[0,1] neg_hi:[0,1]")
    a(f"v_pk_fma_f32 v[{ac}:{ac+1}], v[{t}:{t+1}], v[{t}:{t+1}], v[{ac}:{ac+1}]")
a("v_add_f32 v102, v102, v103\nv_add_f32 v104, v104, v105\nv_add_f32 v102, v102, v104")
red8(102)
a(f"""v_mul_f32 v102, 0x3b000000, v102
v_cvt_pk_bf16_f32 v104, v100, v102
v_and_b32 v105, 0xffff0000, v104
v_add_f32 v105, 0x3727c5ac, v105
v_cvt_pk_bf16_f32 v105, v105, v105
v_and_b32 v105, 0xffff0000, v105
v_sqrt_f32 v105, v105
s_nop 0
v_cvt_pk_bf16_f32 v105, v104, v105
v_and_b32 v104, 0xffff, v104
v_and_b32 v105, 0xffff0000, v105
v_or_b32 v104, v104, v105
v_lshrrev_b32 v24, 3, v1
v_lshlrev_b32 v24, 2, v24
s_lshl_b32 s72, s2, 5
s_add_u32 s72, s72, {WS_ST}
s_mov_b32 exec_lo, 0x01010101
s_mov_b32 exec_hi, 0x01010101
buffer_store_dword v104, v24, {WS}, s72 offen sc1
s_mov_b64 exec, -1""")
a.label("L_aux_pub")
kc_build()
a("s_waitcnt vmcnt(0)")
tag_check()
lnf = a.new("Lnfx")
a(f"""v_mov_b32 v24, {L_CNT}
v_mov_b32 v25, 1
s_mov_b64 exec, 1
ds_add_rtn_u32 v25, v24, v25
s_mov_b64 exec, -1
s_waitcnt lgkmcnt(0)
v_readfirstlane_b32 s72, v25
s_cmp_lg_u32 s72, 3
s_cbranch_scc1 {lnf}
s_lshl_b32 s73, s2, 7
s_add_u32 s73, s73, {WS_FX}""")
flag_store("s73")
a.label(lnf)
mark(2)

a.label("L_p0_join")
ACC = 16; AF = [48, 112]; BF = [80, 144]
a(f"""s_lshr_b32 s84, s30, 3
s_lshr_b32 s72, s29, 1
s_lshl_b32 s72, s72, 2
s_add_u32 s84, s84, s72
s_and_b32 s85, s30, 7
s_and_b32 s72, s29, 1
s_lshl_b32 s72, s72, 3
s_add_u32 s85, s85, s72
v_mov_b32 v214, {OOB}
v_mov_b32 v215, {OOB}
v_mov_b32 v234, {OOB}
s_mul_i32 s88, s85, 224
s_and_b32 s94, s85, 1
s_lshr_b32 s86, s28, 1
s_and_b32 s87, s28, 1
s_lshr_b32 s72, s85, 1
s_lshl_b32 s72, s72, 1
s_add_u32 s72, s72, s87
s_mul_i32 s31, s72, 56
s_mul_i32 s72, s86, 14
s_add_u32 s31, s31, s72
s_lshl_b32 s31, s31, 11
s_add_u32 s31, s31, {WS_W2P}
v_add_u32 v10, 1, v2
v_and_b32 v11, 3, v10
v_mul_u32_u24 v11, {KC_STRIDE}, v11
v_lshrrev_b32 v10, 2, v10
v_lshl_add_u32 v10, v10, 3, v11
v_lshlrev_b32 v11, 4, v3
v_sub_u32 v10, v10, v11
s_lshl_b32 s72, s79, 7
s_add_u32 s73, s80, s72
s_add_u32 s73, s73, 48
v_add_u32 v10, s73, v10
v_lshl_add_u32 v11, v2, 5, v11
s_add_u32 s73, s82, {480-64}
s_sub_u32 s73, s73, s72
v_add_u32 v11, s73, v11
v_lshlrev_b32 v13, 6, v2
v_lshl_add_u32 v13, v3, 4, v13
s_lshl_b32 s72, s28, 10
s_add_u32 s72, s72, {L_XS}
v_add_u32 v13, s72, v13
s_lshl_b32 s72, s83, 2
s_add_u32 s14, s14, s72
s_addc_u32 s15, s15, 0
s_load_dword s93, s[14:15], 0""")
a("s_waitcnt lgkmcnt(0)")
for i in range(32): a(f"v_mov_b32 v{ACC+i}, 0")
if STOP <= 0: a("s_branch L_fin")
a("s_barrier")
mark(4)
a("s_cmp_gt_u32 s28, 3\ns_cbranch_scc1 L_conv_t\ns_cmp_eq_u32 s28, 3\ns_cbranch_scc1 L_conv_w3")
if not OPT.get("pke", 0):
    a("s_cmp_eq_u32 s28, 0\ns_cbranch_scc1 L_conv_go")
    PKL, PKO = 192, 216
    a(f"""v_lshrrev_b32 v208, 5, v1
    v_and_b32 v209, 31, v1
    v_lshlrev_b32 v212, 12, v208
    v_lshl_add_u32 v212, v209, 2, v212
    v_lshrrev_b32 v213, 4, v209
    v_mul_u32_u24 v213, {56*2048}, v213
    v_and_b32 v209, 15, v209
    v_lshl_add_u32 v213, v209, 4, v213
    v_lshl_add_u32 v213, v208, 8, v213
    v_mov_b32 v214, {OOB}
    v_mov_b32 v215, {OOB}
    s_mov_b32 s95, 0
    """)
    a("s_mul_i32 s89, s2, 3\ns_add_u32 s89, s89, s28\ns_sub_u32 s89, s89, 1")
    lx = a.new("Lpkx")
    for u in range(2):
        if u == 1:
            a(f"s_add_u32 s89, s89, 1\ns_add_u32 s72, s2, 768\ns_cmp_eq_u32 s28, 1\ns_cselect_b32 s89, s72, s89\ns_cmp_ge_u32 s89, 896\ns_cbranch_scc1 {lx}\ns_mov_b32 s95, 1")
        a(f"""s_mul_i32 s73, s89, 2341
        s_lshr_b32 s73, s73, 18
        s_mul_i32 s72, s73, 112
        s_sub_u32 s72, s89, s72
        s_and_b32 s77, s72, 1
        s_lshr_b32 s72, s72, 1
        s_lshl_b32 s90, s72, 15
        s_lshl_b32 s91, s73, 7
        s_add_u32 s90, s90, s91
        s_lshl_b32 s91, s77, 13
        s_add_u32 s90, s90, s91""")
        for i in range(8):
            if i == 4: a("s_add_u32 s90, s90, 16384")
            a(f"buffer_load_dword v{PKL+8*u+i}, v212, {W2}, s90 offen offset:{(i&3)*1024}{NT}")
        a(f"""s_mul_i32 s73, s73, 112
        s_add_u32 s73, s73, s72
        s_lshl_b32 s73, s73, 11
        s_lshl_b32 s77, s77, 9
        s_add_u32 s73, s73, s77
        v_add_u32 v{214+u}, s73, v213""")
    a.label(lx)

a("s_branch L_conv_go")
a.label("L_conv_w3")
a(f"s_mov_b32 s73, {WS_FX}")
polln("s73", 4)
a(f"s_lshl_b32 s73, s83, 13\ns_add_u32 s73, s73, {WS_XD}\ns_mov_b32 m0, {L_XS}\ns_nop 0")
for q in range(4): a(f"buffer_load_dwordx4 v5, {WS}, s73 offen offset:{1024*q}{LD} lds")
a(f"s_add_u32 s73, s73, 4096\ns_mov_b32 m0, {L_XS+4096}\ns_nop 0")
for q in range(4): a(f"buffer_load_dwordx4 v5, {WS}, s73 offen offset:{1024*q}{LD} lds")
a(f"s_mov_b32 s73, {WS_ST}\ns_mov_b32 m0, {L_ST}\ns_nop 0")
for q in range(4): a(f"buffer_load_dwordx4 v5, {WS}, s73 offen offset:{1024*q}{LD} lds")
a(f"s_mov_b32 s73, {WS_ST+4096}\ns_mov_b32 m0, {L_ST+4096}\ns_nop 0")
for q in range(4): a(f"buffer_load_dwordx4 v5, {WS}, s73 offen offset:{1024*q}{LD} lds")
a("s_branch L_conv_go")
a.label("L_conv_t")
a(f"""s_mul_i32 s89, s30, 57344
s_mul_i32 s72, s79, 14336
s_add_u32 s89, s89, s72
s_and_b32 s72, s29, 1
s_mul_i32 s72, s72, 1792
s_add_u32 s89, s89, s72
v_mul_u32_u24 v234, 3584, v3
v_min_u32 v235, 13, v2
v_lshl_add_u32 v234, v235, 7, v234
""")
a.label("L_conv_go")
def reads(ph, T):
    return [f"ds_read_b64 v[{AF[ph]+4*T}:{AF[ph]+4*T+1}], v10 offset:{512*T+64*ph}",
            f"ds_read_b64 v[{AF[ph]+4*T+2}:{AF[ph]+4*T+3}], v10 offset:{512*T+64*ph+8}",
            f"ds_read_b128 v[{BF[ph]+4*T}:{BF[ph]+4*T+3}], v11 offset:{512*T+64*(1-ph)}"]
allreads = [r for ph in range(2) for T in range(8) for r in reads(ph, T)]
st = {"i": 0}
def issue(k):
    for _ in range(k):
        if st["i"] < len(allreads): a(allreads[st["i"]]); st["i"] += 1
issue(15)
for ph in range(2):
    for T in range(8):
        need = (ph * 8 + T + 1) * 3
        TP = {(0, 0): (4, 0), (0, 5): (5, 0), (1, 0): (6, 0), (1, 5): (7, 0)}
        if (ph, T) in TP:
            w_, r_ = TP[(ph, T)]; lk = a.new("Ltk")
            a(f"s_cmp_lg_u32 s28, {w_}\ns_cbranch_scc1 {lk}\ns_add_u32 s72, s89, {8192*r_}\nbuffer_load_dword v{232+r_}, v234, {W1}, s72 offen\n{lk}:")
        a(f"s_waitcnt lgkmcnt({st['i'] - need})")
        for i in range(T + 1):
            a(f"v_mfma_f32_16x16x32_bf16 v[{ACC+4*T}:{ACC+4*T+3}], v[{AF[ph]+4*i}:{AF[ph]+4*i+3}], v[{BF[ph]+4*(T-i)}:{BF[ph]+4*(T-i)+3}], v[{ACC+4*T}:{ACC+4*T+3}]")
            if i < 3 and st["i"] - need < 15: issue(1)
if not OPT.get("pke", 0):
    a("s_sub_u32 s72, s28, 1\ns_cmp_gt_u32 s72, 1\ns_cbranch_scc1 L_conv_red")
    a(f"""s_mov_b32 s75, 0x05040100
    s_mov_b32 s76, 0x07060302
    s_mov_b32 s90, {WS_W2P}
    s_mov_b32 s91, {WS_W2P+1024}
    s_waitcnt vmcnt(0)""")
    for u in range(2):
        if u == 1: a(f"s_cmp_eq_u32 s95, 0\ns_cbranch_scc1 L_conv_red")
        for c in range(2):
            for q in range(4):
                a(f"v_perm_b32 v{PKO+8*u+4*c+q}, v{PKL+8*u+2*q+1}, v{PKL+8*u+2*q}, s{75+c}")
        a(f"buffer_store_dwordx4 v[{PKO+8*u}:{PKO+3+8*u}], v{214+u}, {WS}, s90 offen sc1")
        a(f"buffer_store_dwordx4 v[{PKO+4+8*u}:{PKO+7+8*u}], v{214+u}, {WS}, s91 offen sc1")

a.label("L_conv_red")
mark(5)
mode_read(183); mode_get(183)
a(f"""s_lshl_b32 s72, s28, 13
s_add_u32 s72, s72, {L_RED}
v_add_u32 v184, s72, v5""")
for T in range(8):
    if T == 7: a("s_nop 5")
    a(f"ds_write_b128 v184, v[{ACC+4*T}:{ACC+4*T+3}] offset:{1024*T}")
a(f"""s_lshl_b32 s72, s28, 10
s_add_u32 s72, s72, {L_RED}
v_add_u32 v186, s72, v5
v_lshlrev_b32 v185, 5, v2
v_lshrrev_b32 v4, 1, v3
v_lshl_add_u32 v185, v4, 4, v185
v_and_b32 v4, 1, v3
v_lshlrev_b32 v4, 3, v4
v_sub_u32 v185, v185, v4
s_lshl_b32 s72, s28, 9
s_add_u32 s72, s72, {L_U[0]+512+8}
v_add_u32 v185, s72, v185
ds_read_b64 v[176:177], v185
ds_read_b64 v[178:179], v185 offset:{L_U[1]-L_U[0]}
s_lshl_b32 s76, s93, 16
s_and_b32 s77, s93, 0xffff0000
v_lshrrev_b32 v187, 1, v2
v_lshlrev_b32 v187, 15, v187
v_lshl_add_u32 v187, v4, 3, v187
v_lshrrev_b32 v4, 1, v3
v_lshl_add_u32 v187, v4, 4, v187
v_and_b32 v4, 1, v2
v_lshl_add_u32 v187, v4, 5, v187
s_lshl_b32 s90, s83, 7
s_lshl_b32 s73, s28, 18
s_add_u32 s90, s90, s73
s_add_u32 s90, s90, {WS_HT}
s_lshl_b32 s73, s28, 8
s_add_u32 s73, s73, s83
s_lshl_b32 s91, s73, 7
s_add_u32 s91, s91, {WS_F2}
s_cmp_gt_u32 s28, 3
s_cbranch_scc1 L_nvw
s_waitcnt vmcnt(0)
L_nvw:
s_waitcnt lgkmcnt(0)
s_barrier""")
mark(6)
P = 48; KV, XP, LN, Y, STT = 120, 128, 136, 144, 152
a(f"ds_read_b128 v[116:119], v13 offset:{L_ST-L_XS}\nds_read_b128 v[112:115], v13")
for w in range(8): a(f"ds_read_b128 v[{P+4*w}:{P+4*w+3}], v186 offset:{8192*w}")
for c in range(2):
    d0, d1 = 176 + 2*c, 177 + 2*c
    a(f"v_lshlrev_b32 v{KV+6+c}, 16, v{d0}\nv_and_b32 v{KV+4+c}, 0xffff0000, v{d0}\nv_lshlrev_b32 v{KV+2+c}, 16, v{d1}\nv_and_b32 v{KV+c}, 0xffff0000, v{d1}")
a("s_waitcnt lgkmcnt(8)")
for r in range(4): a(f"v_and_b32 v{STT+r}, 0xffff0000, v{116+r}")
for r in range(4): a(f"v_rcp_f32 v{STT+r}, v{STT+r}")
for r in range(4): a(f"v_lshlrev_b32 v{STT+4+r}, 16, v{116+r}\nv_lshlrev_b32 v{XP+2*r}, 16, v{112+r}\nv_and_b32 v{XP+1+2*r}, 0xffff0000, v{112+r}")
for r in range(4):
    for c in range(2): a(f"v_sub_f32 v{LN+2*r+c}, v{XP+2*r+c}, v{STT+4+r}")
for r in range(4):
    for c in range(2): a(f"v_mul_f32 v{LN+2*r+c}, v{LN+2*r+c}, v{STT+r}")
a("s_waitcnt lgkmcnt(0)")
for c in range(2):
    b = P + 16*c
    for h in range(2):
        a(f"v_pk_add_f32 v[{b+2*h}:{b+2*h+1}], v[{b+2*h}:{b+2*h+1}], v[{b+4+2*h}:{b+5+2*h}]")
        a(f"v_pk_add_f32 v[{b+8+2*h}:{b+9+2*h}], v[{b+8+2*h}:{b+9+2*h}], v[{b+12+2*h}:{b+13+2*h}]")
    for r in range(4): a(f"v_add_f32 v{Y+2*r+c}, v{b+r}, v{b+8+r}")
for r in range(4): a(f"v_pk_fma_f32 v[{Y+2*r}:{Y+1+2*r}], v[{KV+2*r}:{KV+1+2*r}], s[76:77], v[{Y+2*r}:{Y+1+2*r}]")
for r in range(4): a(f"v_pk_fma_f32 v[{Y+2*r}:{Y+1+2*r}], v[{LN+2*r}:{LN+1+2*r}], v[{Y+2*r}:{Y+1+2*r}], v[{XP+2*r}:{XP+1+2*r}]")
a(f"""v_cvt_pk_bf16_f32 v160, v{Y}, v{Y+2}
v_cvt_pk_bf16_f32 v161, v{Y+4}, v{Y+6}
v_cvt_pk_bf16_f32 v162, v{Y+1}, v{Y+3}
v_cvt_pk_bf16_f32 v163, v{Y+5}, v{Y+7}
s_nop 1
v_permlane16_swap_b32 v160, v162
v_permlane16_swap_b32 v161, v163
s_nop 1
buffer_store_dwordx4 v[160:163], v187, {WS}, s90 offen sc1
s_waitcnt vmcnt(0)""")
flag_store("s91")
mark(7)
if STOP <= 1: a("s_branch L_fin")
a("s_barrier")
lw7, lw7d = a.new("Lw7"), a.new("Lw7d")
a(f"s_cmp_eq_u32 s28, 7\ns_cbranch_scc1 {lw7}")
KPRE = OPT.get("kpre", 8)
w1_pattern(133, "s28")
a("s_lshl_b32 s95, s28, 10")
def w1dma(ks): return f"s_add_u32 m0, s95, {ks*7168}\ns_add_u32 s72, s88, {ks*114688}\nbuffer_load_dwordx4 v133, {W1}, s72 offen lds"
for ks in range(KPRE): a(w1dma(ks))
a(f"s_branch {lw7d}")
a.label(lw7)
a(f"s_lshr_b32 s73, s84, 1\ns_lshl_b32 s73, s73, 15\ns_add_u32 s73, s73, {WS_F2}")
polln("s73", 4)
a.label(lw7d)
GA, ONE, CSH = 16, 56, 60
HFR = [64, 72]
WF = [80, 96]
a(f"""v_lshrrev_b32 v8, 1, v3
v_lshlrev_b32 v8, 4, v8
v_and_b32 v4, 1, v3
v_lshl_add_u32 v8, v4, 2, v8
v_lshrrev_b32 v4, 2, v2
v_add_u32 v8, v8, v4
v_and_b32 v4, 3, v2
v_lshlrev_b32 v4, 3, v4
v_and_b32 v9, 7, v8
v_lshl_add_u32 v9, v9, 5, v4
v_lshrrev_b32 v190, 1, v3
v_lshl_add_u32 v9, v190, 10, v9
v_lshrrev_b32 v190, 5, v1
v_lshlrev_b32 v190, 9, v190
v_bfe_u32 v191, v1, 1, 3
v_lshl_add_u32 v190, v191, 6, v190
v_bfe_u32 v191, v1, 4, 1
v_lshl_add_u32 v190, v191, 5, v190
v_and_b32 v191, 1, v1
v_lshl_add_u32 v190, v191, 4, v190
v_mul_u32_u24 v8, 224, v8
v_add_u32 v8, v8, v4
s_mul_i32 s92, s79, 12288
s_add_u32 s92, s92, {L_HR}
v_add_u32 v9, s92, v9
s_lshl_b32 s72, s94, 5
s_lshl_b32 s73, s78, 7
s_add_u32 s72, s72, s73
v_add_u32 v10, s72, v8
v_add_u32 v11, 57344, v10
s_mul_i32 s73, s94, 192
s_sub_u32 s73, 192, s73
v_add_u32 v12, s73, v8
v_add_u32 v13, 57344, v12
s_add_u32 s72, s28, s94
s_lshl_b32 s72, s72, 5
s_cmp_eq_u32 s28, 6
s_cselect_b32 s72, s73, s72
v_add_u32 v188, s72, v8
v_add_u32 v189, 57344, v188
s_lshl_b32 s90, s84, 3
s_lshl_b32 s72, s79, 1
s_add_u32 s90, s90, s72
s_lshl_b32 s91, s90, 14
s_add_u32 s91, s91, {WS_HT}""")
for i in range(40): a(f"v_mov_b32 v{GA+i}, 0")
for i in range(4): a(f"v_mov_b32 v{ONE+i}, 0x3f803f80")
a("s_waitcnt vmcnt(0)")
mark(8)
a("s_barrier")
mark(9)
def hdma(ks): return f"s_add_u32 m0, s92, {(ks % 6)*2048}\ns_add_u32 s74, s91, {ks*2048}\nbuffer_load_dwordx4 v190, {WS}, s74 offen{LD} lds\nbuffer_load_dwordx4 v190, {WS}, s74 offen offset:1024{LD} lds"
a(f"""s_lshl_b32 s73, s84, 17
s_and_b32 s72, s30, 7
s_lshl_b32 s72, s72, 14
s_add_u32 s73, s73, s72
s_and_b32 s72, s28, 1
s_lshl_b32 s72, s72, 13
s_add_u32 s73, s73, s72
s_add_u32 s73, s73, {WS_HT}
s_cmp_lt_u32 s28, 6
s_cbranch_scc1 L_noht
buffer_load_dword v135, v14, {WS}, s73 offen
L_noht:
s_mul_i32 s89, s30, 28672
s_lshl_b32 s72, s79, 13
s_min_u32 s72, s72, 20480
s_add_u32 s89, s89, s72
s_and_b32 s72, s29, 1
s_mul_i32 s72, s72, 917504
s_add_u32 s89, s89, s72
s_add_u32 s89, s89, {WS_W2P}""")
a("s_cmp_eq_u32 s78, 1\ns_cbranch_scc1 L_nohp")
for ks in range(6): a(hdma(ks))
a.label("L_nohp")
lcs = a.new("Lcs")
a(f"s_cmp_eq_u32 s28, 7\ns_cbranch_scc1 {lcs}")
CF = 80
def csrd(ks):
    for hq in range(2): a(f"ds_read_b64_tr_b16 v[{CF+4*(ks%7)+2*hq}:{CF+4*(ks%7)+2*hq+1}], v{188+(ks>>3)} offset:{(ks%8)*7168 + hq*1792}")
for ks in range(min(7, KPRE)): csrd(ks)
for ks in range(KPRE):
    a(f"s_waitcnt lgkmcnt({2*min(6, KPRE-1-ks)})")
    a(f"v_mfma_f32_16x16x32_bf16 v[{CSH}:{CSH+3}], v[{CF+4*(ks%7)}:{CF+4*(ks%7)+3}], v[{ONE}:{ONE+3}], {'0' if ks == 0 else f'v[{CSH}:{CSH+3}]'}")
    if ks + 7 < KPRE: csrd(ks + 7)
a.label(lcs)
a("s_cmp_eq_u32 s78, 1\ns_cbranch_scc1 L_g1_b")
def gemm1(fh):
    ns = 4 if fh == 0 else 3
    def rdw(ks):
        o = []; hi = ks >= 8
        for sl in range(ns):
            for hq in range(2):
                six = (fh == 1 and sl == 2)
                base = (12 + hi) if six else (10 + hi)
                off = (ks - 8*hi)*7168 + hq*1792 + (0 if six else sl*32)
                r = WF[ks & 1] + 4*sl + 2*hq
                o.append(f"ds_read_b64_tr_b16 v[{r}:{r+1}], v{base} offset:{off}")
        return o
    def rdh(ks):
        o = []
        for t in range(2):
            for hq in range(2):
                r = HFR[ks & 1] + 4*t + 2*hq
                o.append(f"ds_read_b64_tr_b16 v[{r}:{r+1}], v9 offset:{(ks % 6)*2048 + t*256 + hq*512}")
        return o
    W2L = w2_loads(0, 14)
    vm = [x for k in range(6) for x in (("h0", k), ("h", k))] if fh == 0 else []
    def vmw(tag): return len(vm) - 1 - vm.index(tag)
    for x in rdw(0): a(x)
    if fh == 0: a(f"s_waitcnt vmcnt({vmw(('h', 1))})")
    a("s_barrier")
    for x in rdh(0): a(x)
    wi = 0
    for ks in range(16):
        fill = []
        if ks % 2 == 1 and ks < 15:
            if fh == 0: fill.append(("wait", ("h", ks + 2), None))
            if KPRE <= ks + 2 and KPRE < 16: fill.append(("wait", ("d", min(15, ks + 2)), None))
            fill.append(("x", None, "s_barrier"))
            for k2 in (ks + 5, ks + 6):
                if k2 < 16 and fh == 0: fill.append(("vm2", ("h", k2), hdma(k2)))
        if ks < 15: fill += [("x", None, x) for x in rdh(ks + 1) + rdw(ks + 1)]
        nd = (16 - KPRE + 3) // 4
        for k2 in range(KPRE + nd*ks, min(16, KPRE + nd*(ks+1))):
            lk = a.new("Lw1")
            fill.append(("vm", ("d", k2), (f"s_cmp_eq_u32 s28, 7\ns_cbranch_scc1 {lk}\n" if fh == 1 else "") + w1dma(k2) + (f"\n{lk}:" if fh == 1 else "")))
        if ks + 1 >= KPRE and ks < 15:
            for hq in range(2): fill.append(("x", None, f"ds_read_b64_tr_b16 v[{112+4*((ks+1)&1)+2*hq}:{113+4*((ks+1)&1)+2*hq}], v{188+((ks+1)>>3)} offset:{((ks+1)%8)*7168 + hq*1792}"))
        kt = OPT.get("kt", 1)
        if fh == 1 and kt <= ks < kt + 8 and (ks - kt) % 2 == 0:
            j = (ks - kt) // 2; lk = a.new("Ltg")
            fill.append(("vm", ("t", j), f"s_cmp_eq_u32 s79, {j & 3}\ns_cselect_b32 s72, s89, {OOB}\nbuffer_load_dword v134, v14, {WS}, s72 offen"))
        for _ in range(OPT.get("pk", 3)):
            if wi < OPT.get("nl", 18) and ks >= (OPT.get("k0", 10) if fh == 0 else OPT.get("k1", 10)): fill.append(("vm", ("w", wi), W2L[wi])); wi += 1
        mf = []
        for sl in range(ns):
            for t in range(2):
                ac = GA + (sl*2 + t)*4; h = HFR[ks & 1] + 4*t
                mf.append(f"v_mfma_f32_16x16x32_bf16 v[{ac}:{ac+3}], v[{WF[ks&1]+4*sl}:{WF[ks&1]+4*sl+3}], v[{h}:{h+3}], v[{ac}:{ac+3}]")
        if fh == 1:
            for t in range(2):
                h = HFR[ks & 1] + 4*t
                mf.append(f"v_mfma_f32_16x16x32_bf16 v[{40+4*t}:{43+4*t}], v[{h}:{h+3}], v[{h}:{h+3}], v[{40+4*t}:{43+4*t}]")
                mf.append(f"v_mfma_f32_16x16x32_bf16 v[{48+4*t}:{51+4*t}], v[{ONE}:{ONE+3}], v[{h}:{h+3}], v[{48+4*t}:{51+4*t}]")
        if ks >= KPRE: mf.append(f"v_mfma_f32_16x16x32_bf16 v[{CSH}:{CSH+3}], v[{112+4*(ks&1)}:{115+4*(ks&1)}], v[{ONE}:{ONE+3}], v[{CSH}:{CSH+3}]")
        a("s_waitcnt lgkmcnt(0)")
        if OPT.get("g1m") and ks in (0, 4, 8, 12): mark({0: 1, 4: 2, 8: 3, 12: 14}[ks])
        k = 0
        per = (len(fill) + len(mf) - 1) // len(mf)
        for m, x in enumerate(mf):
            a(x)
            tgt = min(len(fill), per*(m+1))
            while k < tgt:
                kind, tag, txt = fill[k]; k += 1
                if kind == "vm": a(txt); vm.append(tag)
                elif kind == "vm2": a(txt); vm.append(("h0", tag[1])); vm.append(tag)
                elif kind == "wait": a(f"s_waitcnt vmcnt({vmw(tag)})")
                else: a(txt)
    mark(10)
    for _ in range(28 - wi):
        a(W2L[wi]); wi += 1
    a("s_barrier")
    if OPT.get("e1m"): mark(1)
    lc2 = a.new("Lc2")
    a(f"""v_lshlrev_b32 v10, 4, v3
    s_lshl_b32 s72, s28, 6
    v_add_u32 v4, s72, v10
    s_mov_b32 exec_lo, 0x00010001
    s_mov_b32 exec_hi, 0x00010001
    ds_write_b128 v4, v[{CSH}:{CSH+3}] offset:{L_CS}
    s_mov_b64 exec, -1
    s_lshl_b32 s72, s79, 8
    v_lshlrev_b32 v11, 3, v2
    v_add_u32 v11, s72, v11""")
    if fh == 1:
        a(f"""v_and_b32 v4, 3, v2
        v_cmp_eq_u32 s[72:73], 1, v4
        v_cmp_eq_u32 s[74:75], 2, v4
        v_cmp_eq_u32 s[76:77], 3, v4
        v_lshrrev_b32 v4, 2, v2
        v_cmp_eq_u32 vcc, v4, v3""")
        for t in range(2):
            g = 40 + 4*t
            a(f"""v_cndmask_b32_e64 v{g}, v{g}, v{g+1}, s[72:73]
            v_cndmask_b32_e64 v{g}, v{g}, v{g+2}, s[74:75]
            v_cndmask_b32_e64 v{g+1}, v{g}, v{g+3}, s[76:77]
            v_mov_b32 v{g}, v{48+4*t}""")
        a(f"""s_mov_b64 exec, vcc
        ds_write_b64 v11, v[40:41] offset:{L_SX}
        ds_write_b64 v11, v[44:45] offset:{L_SX+128}
        s_mov_b64 exec, -1""")
    CSR = 80
    a(f"""s_mul_i32 s72, s90, 57344
    s_add_u32 s72, s72, {WS_HP}
    s_mul_i32 s73, s85, 7
    s_add_u32 s74, s73, s94
    s_lshr_b32 s74, s74, 1
    s_lshl_b32 s74, s74, 10
    s_add_u32 s74, s74, s72
    s_mul_i32 s75, s94, 6
    s_sub_u32 s75, 6, s75
    s_add_u32 s75, s75, s73
    s_lshr_b32 s75, s75, 1
    s_lshl_b32 s75, s75, 10
    s_add_u32 s75, s75, s72
    s_lshl_b32 s76, s94, 3
    s_add_u32 s75, s75, s76
    v_add_u32 v12, 57344, v5
    s_waitcnt lgkmcnt(0)
    s_barrier
    ds_read_b64 v[64:65], v11 offset:{L_SX}
    ds_read_b64 v[66:67], v11 offset:{L_SX+128}""")
    for sl in range(ns): a(f"ds_read_b128 v[{CSR+4*sl}:{CSR+4*sl+3}], v10 offset:{L_CS + 64*(sl + 4*fh)}")
    a(f"s_waitcnt lgkmcnt({ns})")
    for t in range(2):
        s_, q_ = 64 + 2*t, 65 + 2*t
        a(f"""v_mul_f32 v{s_}, 0x3b000000, v{s_}
        v_mul_f32 v{q_}, 0x3b000000, v{q_}
        v_fma_f32 v{q_}, -v{s_}, v{s_}, v{q_}
        v_max_f32 v{q_}, 0, v{q_}
        v_cvt_pk_bf16_f32 v{s_}, v{s_}, v{q_}
        v_lshlrev_b32 v{70+4*t}, 16, v{s_}
        v_lshlrev_b32 v{71+4*t}, 16, v{s_}
        v_and_b32 v{q_}, 0xffff0000, v{s_}
        v_add_f32 v{q_}, 0x3727c5ac, v{q_}
        v_cvt_pk_bf16_f32 v{q_}, v{q_}, v{q_}
        v_and_b32 v{q_}, 0xffff0000, v{q_}
        v_sqrt_f32 v{q_}, v{q_}""")
    for t in range(2):
        q_ = 65 + 2*t
        a(f"""v_cvt_pk_bf16_f32 v{q_}, v{q_}, v{q_}
        v_and_b32 v{q_}, 0xffff0000, v{q_}
        v_rcp_f32 v{68+4*t}, v{q_}
        v_rcp_f32 v{69+4*t}, v{q_}""")
    a("s_waitcnt lgkmcnt(0)")
    TT = 96
    if OPT.get("e1m"): mark(2)
    for t in range(2): a(f"v_mul_f32 v{128+2*t}, 0xbfb8aa3b, v{68+4*t}\nv_mul_f32 v{129+2*t}, 0xbfb8aa3b, v{68+4*t}")
    a("v_mov_b32 v132, 1.0\nv_mov_b32 v133, 1.0")
    groups = [(0, 1), (2, 3)] if fh == 0 else [(0, 1), (2,)]
    for gi, grp in enumerate(groups):
        prs = [(sl, t, h) for sl in grp for t in range(2) for h in range(2)]
        def AC(sl, t, h): return GA + (sl*2+t)*4 + 2*h
        def T_(i): return TT + 16*gi + 2*i
        for i, (sl, t, h) in enumerate(prs):
            ac = AC(sl, t, h)
            a(f"v_pk_fma_f32 v[{ac}:{ac+1}], v[{CSR+4*sl+2*h}:{CSR+4*sl+2*h+1}], v[{70+4*t}:{71+4*t}], v[{ac}:{ac+1}] neg_lo:[0,1,0] neg_hi:[0,1,0]")
        for i, (sl, t, h) in enumerate(prs):
            ac = AC(sl, t, h)
            a(f"v_pk_mul_f32 v[{T_(i)}:{T_(i)+1}], v[{ac}:{ac+1}], v[{128+2*t}:{129+2*t}]")
        for i, (sl, t, h) in enumerate(prs):
            ac = AC(sl, t, h)
            a(f"v_exp_f32 v{T_(i)}, v{T_(i)}\nv_exp_f32 v{T_(i)+1}, v{T_(i)+1}\nv_pk_mul_f32 v[{ac}:{ac+1}], v[{ac}:{ac+1}], v[{68+4*t}:{69+4*t}]")
        for i in range(len(prs)): a(f"v_pk_add_f32 v[{T_(i)}:{T_(i)+1}], v[{T_(i)}:{T_(i)+1}], v[132:133]")
        for i in range(len(prs)): a(f"v_rcp_f32 v{T_(i)}, v{T_(i)}\nv_rcp_f32 v{T_(i)+1}, v{T_(i)+1}")
        a("s_nop 0")
        for i, (sl, t, h) in enumerate(prs):
            ac = AC(sl, t, h)
            a(f"v_pk_mul_f32 v[{ac}:{ac+1}], v[{ac}:{ac+1}], v[{T_(i)}:{T_(i)+1}]")
        for t in range(2):
            o = TT + 16*gi + 4*t
            for j, sl in enumerate(grp):
                ac = AC(sl, t, 0)
                a(f"v_cvt_pk_bf16_f32 v{o+2*j}, v{ac}, v{ac+1}\nv_cvt_pk_bf16_f32 v{o+2*j+1}, v{ac+2}, v{ac+3}")
            if len(grp) == 2: a(f"buffer_store_dwordx4 v[{o}:{o+3}], v{5 if t == 0 else 12}, {WS}, s74 offen offset:{1024*(gi + 2*fh)} sc1")
            else: a(f"buffer_store_dwordx2 v[{o}:{o+1}], v{5 if t == 0 else 12}, {WS}, s75 offen sc1")

    return wi
WI = gemm1(0); a("s_branch L_g1_done")
a.label("L_g1_b"); gemm1(1)
a.label("L_g1_done")
if OPT.get("e1m"): mark(3)
A3 = 16; HF = [64, 96]
a(f"""s_lshl_b32 s73, s84, 1
s_lshr_b32 s72, s79, 1
s_add_u32 s73, s73, s72
s_lshl_b32 s73, s73, 4
s_add_u32 s73, s73, s85
s_lshl_b32 s73, s73, 2
s_and_b32 s72, s79, 1
s_lshl_b32 s72, s72, 1
s_add_u32 s73, s73, s72
s_add_u32 s73, s73, s78
s_lshl_b32 s73, s73, 7
s_add_u32 s73, s73, {WS_F3}
s_lshl_b32 s90, s84, 1
s_add_u32 s90, s90, s94
s_lshl_b32 s89, s90, 13
s_add_u32 s89, s89, {WS_F3}
s_lshl_b32 s90, s90, 2
s_mul_i32 s91, s86, 14
s_add_u32 s91, s91, s87
s_lshl_b32 s91, s91, 10
s_add_u32 s91, s91, {WS_HP}""")
for u in range(4):
    a(f"""s_add_u32 s72, s86, {u}
    s_and_b32 s72, s72, 3
    s_add_u32 s72, s72, s90
    s_mul_i32 s72, s72, 57344
    s_add_u32 s{40+u}, s72, s91""")
a(f"""s_lshl_b32 s92, s86, 13
s_lshl_b32 s72, s87, 12
s_add_u32 s93, s92, s72
v_add_u32 v10, s92, v5
s_add_u32 s90, s90, s86
s_lshr_b32 s95, s90, 1
s_lshl_b32 s95, s95, 15
s_and_b32 s72, s90, 1
s_lshl_b32 s72, s72, 5
s_add_u32 s95, s95, s72
s_lshr_b32 s72, s85, 1
s_lshl_b32 s72, s72, 1
s_add_u32 s72, s72, s87
s_lshl_b32 s72, s72, 11
s_add_u32 s95, s95, s72
s_add_u32 s95, s95, {WS_HT}
v_lshlrev_b32 v11, 9, v3
v_lshl_add_u32 v11, v2, 1, v11
v_add_u32 v12, 65536, v10
v_add_u32 v13, 0x20000, v10
s_waitcnt vmcnt(0)""")
flag_store("s73")
for x in w2_loads(0, 14)[WI:]: a(x)
mark(11)
if STOP <= 2: a("s_branch L_fin")
for e in range(4):
    a(f"buffer_load_short_d16 v{128+e}, v11, {WS}, s95 offen offset:{128*e} sc1\nbuffer_load_short_d16_hi v{132+e}, v11, {WS}, s95 offen offset:{128*e+64} sc1")
for i in range(32): a(f"v_mov_b32 v{A3+i}, 0")
lnp = a.new("Lnp3")
a(f"s_cmp_lg_u32 s28, 7\ns_cbranch_scc1 {lnp}")
polln("s89", 1)
a.label(lnp)
a("s_barrier")
mark(12)
def stage_dma(s):
    return [f"s_add_u32 m0, s93, {(s % 5)*32768 + u*1024}\ns_add_u32 s72, s{40+u}, {2048*s}\nbuffer_load_dwordx4 v5, {WS}, s72 offen{LD} lds" for u in range(4)]
for s in range(5):
    for x in stage_dma(s): a(x)
for s in range(7):
    issued = min(7, max(5, s + 4))
    a(f"s_waitcnt vmcnt({4*(issued - s - 1)})\ns_barrier")
    if s >= 1 and s + 4 <= 6:
        for x in stage_dma(s + 4): a(x)
    sl = s % 5
    base = 10 + [0, 0, 2, 2, 3][sl]; off0 = [0, 32768, 0, 32768, 0][sl]
    hf = HF[s & 1]
    for j in range(8): a(f"ds_read_b128 v[{hf+4*j}:{hf+4*j+3}], v{base} offset:{off0 + 1024*j}")
    for k2 in range(2):
        kk = 2*s + k2; b = w2reg(kk)
        for u in range(4):
            a(f"s_waitcnt lgkmcnt({7 - (k2*4+u)})")
            for t in range(2):
                ac = A3 + (u*2+t)*4
                a(f"v_mfma_f32_16x16x32_bf16 v[{ac}:{ac+3}], v[{b+4*t}:{b+4*t+3}], v[{hf+16*k2+4*u}:{hf+16*k2+4*u+3}], v[{ac}:{ac+3}]")
mark(13)
a("s_barrier")
for u in range(1, 4):
    a(f"""s_add_u32 s72, s86, {u}
    s_and_b32 s72, s72, 3
    s_lshl_b32 s73, s87, 2
    s_add_u32 s72, s72, s73
    s_mul_i32 s72, s72, 6144
    s_add_u32 s72, s72, {(u-1)*2048}
    v_add_u32 v{10+u}, s72, v5""")
a("""s_lshl_b32 s73, s87, 2
s_add_u32 s72, s86, s73
s_mul_i32 s72, s72, 6144
v_add_u32 v10, s72, v5""")
for u in range(1, 4):
    for t in range(2):
        ac = A3 + (u*2+t)*4
        a(f"ds_write_b128 v{10+u}, v[{ac}:{ac+3}] offset:{1024*t}")
a("""s_lshl_b32 s72, s90, 14
s_lshr_b32 s73, s85, 1
s_lshl_b32 s73, s73, 7
s_add_u32 s72, s72, s73
s_lshl_b32 s73, s87, 6
s_add_u32 s72, s72, s73
v_lshlrev_b32 v9, 10, v2
v_lshl_add_u32 v9, v3, 4, v9""")
for e in range(4): a(f"v_lshlrev_b32 v{96+e}, 16, v{128+e}\nv_and_b32 v{100+e}, 0xffff0000, v{132+e}")
a("s_waitcnt lgkmcnt(0)\ns_barrier")
for j in range(6): a(f"ds_read_b128 v[{64+4*j}:{67+4*j}], v10 offset:{1024*j}")
for t in range(2):
    ac = A3 + t*4
    for h in range(2): a(f"v_pk_add_f32 v[{ac+2*h}:{ac+2*h+1}], v[{ac+2*h}:{ac+2*h+1}], v[{96+4*t+2*h}:{97+4*t+2*h}]")
a("s_waitcnt lgkmcnt(0)")
for t in range(2):
    ac = A3 + t*4
    for h in range(2):
        a(f"v_pk_add_f32 v[{ac+2*h}:{ac+2*h+1}], v[{ac+2*h}:{ac+2*h+1}], v[{64+4*t+2*h}:{65+4*t+2*h}]")
        a(f"v_pk_add_f32 v[{72+4*t+2*h}:{73+4*t+2*h}], v[{72+4*t+2*h}:{73+4*t+2*h}], v[{80+4*t+2*h}:{81+4*t+2*h}]")
for t in range(2):
    ac = A3 + t*4
    for h in range(2): a(f"v_pk_add_f32 v[{ac+2*h}:{ac+2*h+1}], v[{ac+2*h}:{ac+2*h+1}], v[{72+4*t+2*h}:{73+4*t+2*h}]")
for r in range(4): a(f"v_cvt_pk_bf16_f32 v{104+r}, v{A3+r}, v{A3+4+r}")
a(f"buffer_store_dwordx4 v[104:107], v9, {OUT}, s72 offen")
a.label("L_fin")
if OPT.get("dbg"):
    a(f"""s_waitcnt vmcnt(0)
    s_memrealtime s[98:99]
    s_waitcnt lgkmcnt(0)
    s_not_b32 s96, s96
    v_mov_b32 v16, s96
    v_mov_b32 v17, s98
    v_mov_b32 v4, 16
    s_mov_b64 exec, 1
    buffer_atomic_umax v16, v4, {DBG}, 0 offen
    buffer_atomic_umax v17, v4, {DBG}, 0 offen offset:4
    s_mov_b64 exec, -1""")
if STAMP:
    a(f"""s_mov_b64 exec, -1
    s_waitcnt vmcnt(0) lgkmcnt(0)
    s_memrealtime s[98:99]
    s_waitcnt lgkmcnt(0)
    v_writelane_b32 v15, s96, 0
    v_writelane_b32 v15, s98, 15
    s_lshl_b32 s72, s2, 9
    s_lshl_b32 s73, s28, 6
    s_add_u32 s72, s72, s73
    s_add_u32 s72, s72, {WS_STAMP}
    v_lshlrev_b32 v4, 2, v1
    s_mov_b64 exec, 0xffff
    buffer_store_dword v15, v4, {WS}, s72 offen
    s_add_u32 s72, s72, {0x100000 - 64}
    s_mov_b32 exec_lo, 0xffff0000
    buffer_store_dword v15, v4, {WS}, s72 offen""")
a.label("L_end")
a("s_endpgm")
a.raw(f""".section .rodata,"a"
.p2align 6
.amdhsa_kernel {NAME}
  .amdhsa_next_free_vgpr 256
  .amdhsa_next_free_sgpr 102
  .amdhsa_accum_offset 256
  .amdhsa_group_segment_fixed_size 0
  .amdhsa_kernarg_size 96
  .amdhsa_user_sgpr_count 2
  .amdhsa_user_sgpr_kernarg_segment_ptr 1
  .amdhsa_system_sgpr_workgroup_id_x 1
.end_amdhsa_kernel""")
HEADER = open("sequential_preLN__ssm_conv_h3__dense_activation_silu__prompt.s.ref").read().split("; Override launch")[0]
print(HEADER + f"; @launch grid=(256,1,1) block=(512,1,1) lds={LDS_BYTES}\n" + '.amdgcn_target "amdgcn-amd-amdhsa--gfx950"\n.text\n' + a.text())
```

```python
import sys
STAMP = "stamp" in sys.argv[1:]
STOP = 99
OPT = {"nt": 1, "fast": 0}
for x in sys.argv[1:]:
    if x.startswith("stop="): STOP = int(x[5:])
    elif "=" in x: k, v = x.split("="); OPT[k] = int(v)
NT = " nt" if OPT["nt"] else ""

WS_KVT = 0
WS_XD  = 2 << 20
WS_ST  = 4 << 20
WS_HT  = 6 << 20
WS_W2P = 10 << 20
WS_HP  = 12 << 20
WS_F1  = 20 << 20
WS_FX  = WS_F1 + 0x20000
WS_FC  = WS_F1 + 0x30000
WS_F2  = WS_F1 + 0x40000
WS_F3  = WS_F1 + 0x80000
WS_STAMP = 0x4000000
WS_BYTES = 268435456
OOB = 0x7FF00000
SPIN = 40000

W1_EARLY = 0
L_RED = 28672
L_XS = L_RED + 65536
L_ST = L_XS + 8192
L_U = [114688, 114688 + 4608]
L_KC = [123904, 123904 + 16640]
KC_STRIDE = 4160
L_CNT = 157184
L_MODE = 157188
L_HR = 114688
L_CS = 0
L_SX = 1024
LDS_BYTES = 163840
NAME = "sequential_preLN__ssm_conv_h3__dense_activation_silu__prompt_kernel"

class A:
    def __init__(s): s.l = []; s.uid = 0
    def __call__(s, txt):
        for ln in txt.strip("\n").split("\n"):
            if ln.strip(): s.l.append(("    " + ln.strip()) if not ln.strip().endswith(":") else ln.strip())
    def label(s, n): s.l.append(n + ":")
    def raw(s, t): s.l.append(t)
    def new(s, p="L"): s.uid += 1; return f"{p}_{s.uid}"
    def text(s): return "\n".join(s.l) + "\n"
a = A()
def srd(d, b, n):
    a(f"s_mov_b32 s{d}, s{b}\ns_mov_b32 s{d+1}, s{b+1}\ns_mov_b32 s{d+2}, {n}\ns_mov_b32 s{d+3}, 0x00020000")
def mark(i):
    if STAMP: a(f"s_memrealtime s[98:99]\ns_memtime s[100:101]\ns_waitcnt lgkmcnt(0)\nv_writelane_b32 v15, s98, {i}\nv_writelane_b32 v15, s100, {16+i}")
X, K, V, SK, SSM, W1, W2, OUT, DBG, WS = [f"s[{32+4*i}:{35+4*i}]" for i in range(10)]

def tag_load():
    a(f"v_mov_b32 v4, 0\nbuffer_load_dwordx2 v[6:7], v4, {DBG}, 0 offen sc1")
def tag_check():
    l0, l1 = a.new("Ltag"), a.new("Ltagd")
    a(f"s_mov_b32 s72, {SPIN}")
    a.label(l0)
    a(f"""v_readfirstlane_b32 s73, v6
    s_cmp_lg_u32 s73, 0
    s_cbranch_scc1 {l1}
    s_sub_u32 s72, s72, 1
    s_cmp_eq_u32 s72, 0
    s_cbranch_scc1 {l1}
    v_mov_b32 v4, 0
    buffer_load_dwordx2 v[6:7], v4, {DBG}, 0 offen sc1
    s_waitcnt vmcnt(0)
    s_branch {l0}""")
    a.label(l1)
def flag_store(soff):
    a(f"""v_mov_b32 v4, 0
    s_mov_b64 exec, 1
    buffer_store_dwordx2 v[6:7], v4, {WS}, {soff} offen sc1
    s_mov_b64 exec, -1""")
def polln(sbase, n, vt=184, preissued=False):
    M = ["s[4:5]", "s[6:7]", "s[8:9]", "s[16:17]"]
    l0, l1, l2 = a.new("Lpn"), a.new("Lpnd"), a.new("Lpnc")
    for i in range(n): a(f"s_mov_b64 {M[i]}, -1")
    a(f"s_mov_b32 s72, {SPIN}")
    if preissued: a(f"s_branch {l2}")
    a.label(l0)
    for i in range(n):
        sk = a.new("Lsk")
        a(f"s_mov_b64 exec, {M[i]}\ns_add_u32 s77, {sbase}, {8192*i}\ns_cbranch_execz {sk}\nbuffer_load_dwordx2 v[{vt+2*i}:{vt+2*i+1}], v14, {WS}, s77 offen sc1")
        a.label(sk)
    a("s_mov_b64 exec, -1")
    a.label(l2)
    a("s_waitcnt vmcnt(0)")
    for i in range(n):
        a(f"v_cmp_ne_u64 vcc, v[{vt+2*i}:{vt+2*i+1}], v[6:7]\ns_and_b64 {M[i]}, {M[i]}, vcc")
    a(f"s_mov_b64 s[10:11], {M[0]}")
    for i in range(1, n): a(f"s_or_b64 s[10:11], s[10:11], {M[i]}")
    a(f"""s_sub_u32 s72, s72, 1
    s_cmp_eq_u32 s72, 0
    s_cbranch_scc1 {l1}
    s_cmp_lg_u64 s[10:11], 0
    s_cbranch_scc1 {l0}""")
    a.label(l1)
def polln_pre(sbase, n, vt=184):
    for i in range(n): a(f"s_add_u32 s77, {sbase}, {8192*i}\nbuffer_load_dwordx2 v[{vt+2*i}:{vt+2*i+1}], v14, {WS}, s77 offen sc1")

def mode_read(vt):
    a(f"v_mov_b32 v{vt}, {L_MODE}\nds_read_b32 v{vt}, v{vt}")
def mode_get(vt):
    a(f"s_waitcnt lgkmcnt(0)\nv_readfirstlane_b32 s3, v{vt}")
def dual(stores):
    lf, ld = a.new("Lfast"), a.new("Ldual")
    a(f"s_cmp_eq_u32 s3, 1\ns_cbranch_scc1 {lf}")
    for x in stores: a(x + (" sc1" if x.startswith("buffer_store") else ""))
    a(f"s_branch {ld}")
    a.label(lf)
    for x in stores: a(x)
    a.label(ld)
W2A, W2B = 192, 136
def w2reg(kk): return W2A + 8*kk if kk < 8 else W2B + 8*(kk-8)
def w2_loads(k0, k1):
    L = []
    for kk in range(k0, k1):
        b = w2reg(kk)
        for t in range(2):
            L.append(f"s_add_u32 s74, s31, {(kk>>1)*4096}\nbuffer_load_dwordx4 v[{b+4*t}:{b+4*t+3}], v5, {WS}, s74 offen offset:{(kk&1)*2048 + t*1024}" + ("" if OPT.get("plain", 1) else " sc1"))
    return L
def w1_pattern(vd, sp):
    a(f"s_lshl_b32 s77, {sp}, 6\nv_add_u32 v{vd}, s77, v1\nv_mul_u32_u24 v4, 4682, v{vd}\nv_lshrrev_b32 v4, 16, v4\nv_lshlrev_b32 v{vd}, 4, v{vd}\ns_movk_i32 s77, 3360\nv_mad_u32_u24 v{vd}, v4, s77, v{vd}")

def kc_build():
    lnf = a.new("Lnofix")
    a(f"""s_lshl_b32 s72, s79, 10
    s_add_u32 s72, s72, s80
    v_add_u32 v40, s72, v5
    ds_write_b128 v40, v[16:19] offset:32
    v_alignbit_b32 v24, v17, v16, 16
    v_alignbit_b32 v25, v18, v17, 16
    v_alignbit_b32 v26, v19, v18, 16
    v_alignbit_b32 v27, v20, v19, 16
    v_mov_b32 v28, v17
    v_mov_b32 v29, v18
    v_mov_b32 v30, v19
    v_mov_b32 v31, v20
    ds_write_b128 v40, v[24:27] offset:{32+KC_STRIDE}
    v_mov_b32 v32, v25
    v_mov_b32 v33, v26
    v_mov_b32 v34, v27
    v_alignbit_b32 v35, v21, v20, 16
    ds_write_b128 v40, v[28:31] offset:{32+2*KC_STRIDE}
    ds_write_b128 v40, v[32:35] offset:{32+3*KC_STRIDE}
    s_cmp_lg_u32 s79, 0
    s_cbranch_scc1 {lnf}
    s_mov_b64 exec, 1
    v_lshlrev_b32 v37, 16, v16
    v_mov_b32 v36, 0
    v_mov_b32 v38, 0
    v_mov_b32 v39, v16
    v_mov_b32 v42, v37
    v_mov_b32 v43, v24
    ds_write_b64 v40, v[36:37] offset:{24+KC_STRIDE}
    ds_write_b64 v40, v[38:39] offset:{24+2*KC_STRIDE}
    ds_write_b64 v40, v[42:43] offset:{24+3*KC_STRIDE}
    s_mov_b64 exec, -1""")
    a.label(lnf)
def ssm_load():
    a(f"buffer_load_dwordx4 v[16:19], v5, {SSM}, s81 offen{NT}\nbuffer_load_dwordx2 v[20:21], v5, {SSM}, s81 offen offset:16{NT}")
def zero_pads():
    lnz = a.new("Lnz")
    a(f"""s_cmp_lg_u32 s79, 0
    s_cbranch_scc1 {lnz}
    v_mov_b32 v44, 0
    v_mov_b32 v45, 0
    v_mov_b32 v46, 0
    v_mov_b32 v47, 0
    s_mov_b32 exec_hi, 0
    v_add_u32 v43, s82, v5
    ds_write_b128 v43, v[44:47]
    s_mov_b64 exec, 0xff
    v_lshrrev_b32 v42, 1, v1
    v_mul_u32_u24 v42, {KC_STRIDE}, v42
    v_and_b32 v4, 1, v1
    v_lshl_add_u32 v42, v4, 4, v42
    v_add_u32 v42, s80, v42
    ds_write_b128 v42, v[44:47]
    v_mov_b32 v42, {L_CNT}
    ds_write_b64 v42, v[44:45]
    s_mov_b64 exec, -1""")
    a.label(lnz)

a.raw(f".globl {NAME}\n.p2align 8\n.type {NAME},@function\n{NAME}:")
a("""s_cmp_ge_u32 s2, 256
s_cbranch_scc1 L_end
s_load_dwordx16 s[4:19], s[0:1], 0
s_load_dwordx8 s[20:27], s[0:1], 64""")
if STAMP: a("v_mov_b32 v15, 0\ns_memrealtime s[96:97]")
if OPT.get("dbg"): a("s_memrealtime s[96:97]")
a(f"""v_lshrrev_b32 v4, 6, v0
v_and_b32 v1, 63, v0
v_readfirstlane_b32 s28, v4
v_and_b32 v2, 15, v0
v_bfe_u32 v3, v0, 4, 2
v_lshlrev_b32 v5, 4, v1
v_lshlrev_b32 v14, 7, v1
s_and_b32 s29, s2, 7
s_lshr_b32 s30, s2, 3
v_and_b32 v10, 31, v0
v_bfe_u32 v11, v0, 5, 3
s_lshl_b32 s72, s30, 16
s_lshl_b32 s73, s29, 7
s_add_u32 s72, s72, s73
v_lshlrev_b32 v12, 13, v11
v_lshl_add_u32 v12, v10, 2, v12
v_add_u32 v12, s72, v12
s_movk_i32 s74, 4096
s_lshr_b32 s78, s28, 2
s_and_b32 s79, s28, 3
s_mul_i32 s80, s78, {L_KC[1]-L_KC[0]}
s_add_u32 s80, s80, {L_KC[0]}
s_mul_i32 s82, s78, {L_U[1]-L_U[0]}
s_add_u32 s82, s82, {L_U[0]}
s_lshl_b32 s83, s29, 5
s_add_u32 s83, s83, s30
s_lshl_b32 s81, s83, 1
s_add_u32 s81, s81, s78
s_lshl_b32 s81, s81, 12
s_lshl_b32 s72, s79, 10
s_add_u32 s81, s81, s72
s_cmp_ge_u32 s28, 4
s_cbranch_scc1 L_aux""")
LD = "" if OPT.get("plain", 1) else " sc1"
a(f"""v_subrev_u32 v13, 3072, v12
v_mov_b32 v4, {OOB}
v_cmp_gt_i32 vcc, 0, v13
s_lshl_b32 s75, s29, 9
v_lshlrev_b32 v24, 4, v10
v_cndmask_b32 v13, v13, v4, vcc
s_waitcnt lgkmcnt(0)""")
srd(36, 6, 2097152); srd(64, 24, 256)
lnt = a.new("Lnotag")
a(f"""s_or_b32 s72, s2, s28
s_cmp_lg_u32 s72, 0
s_cbranch_scc1 {lnt}
s_memrealtime s[72:73]
s_waitcnt lgkmcnt(0)
s_or_b32 s72, s72, 1
v_mov_b32 v6, s72
v_mov_b32 v7, s73
v_mov_b32 v4, 0
s_mov_b64 exec, 1
buffer_store_dwordx2 v[6:7], v4, {DBG}, 0 offen sc1
s_mov_b64 exec, -1""")
a.label(lnt)
KR, VR = 48, 60
for r in range(3): a(f"buffer_load_dword v{KR+r}, v13, {K}, 0 offen offset:{1024*r}{NT}")
for r in range(8): a(f"buffer_load_dword v{KR+3+r}, v12, {K}, {'0' if r<4 else 's74'} offen offset:{1024*(r%4)}{NT}")
srd(44, 10, 4096)
a(f"buffer_load_dwordx4 v[76:79], v24, {SK}, s75 offen")
srd(40, 8, 2097152)
for r in range(8): a(f"buffer_load_dword v{VR+r}, v12, {V}, {'0' if r<4 else 's74'} offen offset:{1024*(r%4)}{NT}")
srd(48, 12, 2097152); srd(68, 26, WS_BYTES)
ssm_load()
srd(52, 18, 1835008); srd(60, 22, 2097152); srd(56, 20, 1835008)
zero_pads()
a(f"""v_and_b32 v4, 7, v10
v_xor_b32 v4, v4, v11
v_lshlrev_b32 v22, 8, v10
v_lshl_add_u32 v22, v4, 4, v22
v_add_u32 v22, {L_RED}, v22
v_lshrrev_b32 v23, 3, v1
v_lshrrev_b32 v4, 4, v1
v_and_b32 v13, 7, v1
v_xor_b32 v4, v4, v13
v_lshlrev_b32 v4, 4, v4
v_lshl_add_u32 v4, v23, 7, v4
v_lshlrev_b32 v13, 4, v13
v_lshl_add_u32 v13, v23, 12, v13
s_lshl_b32 s72, s28, 11
s_add_u32 s72, s72, {L_RED}
v_add_u32 v23, s72, v4
v_xor_b32 v12, 64, v23
s_lshl_b32 s72, s29, 18
s_lshl_b32 s73, s30, 7
s_add_u32 s90, s72, s73
s_lshl_b32 s72, s28, 16
s_add_u32 s90, s90, s72
s_add_u32 s90, s90, {WS_KVT}
s_add_u32 s91, s90, 32768
s_getreg_b32 s95, hwreg(HW_REG_XCC_ID)
s_and_b32 s95, s95, 0xff""")
mark(1)
a("s_waitcnt vmcnt(10)")
tag_load()
WPp = 80
for j in range(4):
    s0, s1 = 76 + (j >> 1), 78 + (j >> 1)
    if j & 1: a(f"v_and_b32 v{WPp+2*j}, 0xffff0000, v{s0}\nv_and_b32 v{WPp+1+2*j}, 0xffff0000, v{s1}")
    else:     a(f"v_lshlrev_b32 v{WPp+2*j}, 16, v{s0}\nv_lshlrev_b32 v{WPp+1+2*j}, 16, v{s1}")
KU = 88
for r in range(11): a(f"v_lshlrev_b32 v{KU+2*r}, 16, v{KR+r}\nv_and_b32 v{KU+2*r+1}, 0xffff0000, v{KR+r}")
O = 112
for st in range(4):
    for r in range(8):
        o = O + 2*r; ku = KU + 2*(r + st); w = WPp + 2*(3 - st)
        if st == 0: a(f"v_pk_mul_f32 v[{o}:{o+1}], v[{ku}:{ku+1}], v[{w}:{w+1}]")
        else: a(f"v_pk_fma_f32 v[{o}:{o+1}], v[{ku}:{ku+1}], v[{w}:{w+1}], v[{o}:{o+1}]")
a("s_waitcnt vmcnt(3)")
for r in range(8):
    a(f"v_lshlrev_b32 v{KU+2*r}, 16, v{VR+r}\nv_and_b32 v{KU+2*r+1}, 0xffff0000, v{VR+r}")
for r in range(8):
    o = O + 2*r
    a(f"v_pk_mul_f32 v[{o}:{o+1}], v[{o}:{o+1}], v[{KU+2*r}:{KU+2*r+1}]")
for c in range(2):
    for q in range(4):
        a(f"v_cvt_pk_bf16_f32 v{128+4*c+q}, v{O+2*(7-2*q)+c}, v{O+2*(6-2*q)+c}")
a(f"""ds_write_b128 v22, v[128:131]
ds_write_b128 v22, v[132:135] offset:128
s_waitcnt lgkmcnt(0)
s_barrier
ds_read_b128 v[128:131], v23
ds_read_b128 v[132:135], v12 offset:1024
v_mov_b32 v8, s95
v_mov_b32 v9, 0
s_waitcnt lgkmcnt(1)
buffer_store_dwordx4 v[128:131], v13, {WS}, s90 offen sc1
s_waitcnt lgkmcnt(0)
buffer_store_dwordx4 v[132:135], v13, {WS}, s91 offen sc1
s_waitcnt vmcnt(3)""")
kc_build()
a(f"""s_lshl_b32 s73, s83, 2
s_add_u32 s73, s73, s28
s_lshl_b32 s89, s73, 7
s_add_u32 s89, s89, {WS_F1}
s_waitcnt vmcnt(0)""")
tag_check()
a(f"""v_mov_b32 v4, 0
s_mov_b64 exec, 1
buffer_store_dwordx4 v[6:9], v4, {WS}, s89 offen sc1
s_mov_b64 exec, -1""")
mark(2)
a(f"s_cmp_lg_u32 s28, 0\ns_cbranch_scc1 L_bg")
lp, lpd, lnm = a.new("Lf1"), a.new("Lf1d"), a.new("Lnm")
a(f"""s_lshl_b32 s73, s29, 14
s_add_u32 s73, s73, {WS_F1}
s_add_u32 s77, s73, 8192
s_mov_b32 s72, {SPIN}
{lp}:
buffer_load_dwordx4 v[184:187], v14, {WS}, s73 offen sc1
buffer_load_dwordx4 v[188:191], v14, {WS}, s77 offen sc1
s_waitcnt vmcnt(0)
v_cmp_ne_u64 s[4:5], v[184:185], v[6:7]
v_cmp_ne_u64 vcc, v[188:189], v[6:7]
s_sub_u32 s72, s72, 1
s_cmp_eq_u32 s72, 0
s_cbranch_scc1 {lpd}
s_or_b64 s[4:5], s[4:5], vcc
s_cbranch_scc1 {lp}
{lpd}:""")
mark(3)
a(f"s_lshl_b32 s73, s83, 13\ns_add_u32 s73, s73, {WS_KVT}")
for c in range(2):
    a(f"s_mov_b32 m0, {L_U[c]+512}\ns_nop 0")
    for q in range(4): a(f"buffer_load_dwordx4 v5, {WS}, s73 offen offset:{1024*q}{LD} lds")
    if c == 0: a("s_add_u32 s73, s73, 4096")
a(f"""v_cmp_ne_u32 s[4:5], s95, v186
v_cmp_ne_u32 vcc, s95, v190
s_cmp_eq_u32 s72, 0
s_cbranch_scc1 {lnm}
s_or_b64 s[4:5], s[4:5], vcc
s_cbranch_scc1 {lnm}
v_mov_b32 v4, {L_MODE}
v_mov_b32 v184, {OPT.get("fast", 1)}
ds_write_b32 v4, v184
{lnm}:
s_waitcnt vmcnt(0)
s_branch L_p0_join""")

a.label("L_bg")
if OPT.get("pke", 0):
    a("s_cmp_eq_u32 s28, 3\ns_cbranch_scc1 L_p0_join")
    PKL, PKO = 192, 216
    a(f"""v_lshrrev_b32 v208, 5, v1
    v_and_b32 v209, 31, v1
    v_lshlrev_b32 v212, 12, v208
    v_lshl_add_u32 v212, v209, 2, v212
    v_lshrrev_b32 v213, 4, v209
    v_mul_u32_u24 v213, {56*2048}, v213
    v_and_b32 v209, 15, v209
    v_lshl_add_u32 v213, v209, 4, v213
    v_lshl_add_u32 v213, v208, 8, v213
    v_mov_b32 v214, {OOB}
    v_mov_b32 v215, {OOB}
    s_mov_b32 s95, 0
    """)
    a("s_mul_i32 s89, s2, 3\ns_add_u32 s89, s89, s28\ns_sub_u32 s89, s89, 1")
    lx = a.new("Lpkx")
    for u in range(2):
        if u == 1:
            a(f"s_add_u32 s89, s89, 1\ns_add_u32 s72, s2, 768\ns_cmp_eq_u32 s28, 1\ns_cselect_b32 s89, s72, s89\ns_cmp_ge_u32 s89, 896\ns_cbranch_scc1 {lx}\ns_mov_b32 s95, 1")
        a(f"""s_mul_i32 s73, s89, 2341
        s_lshr_b32 s73, s73, 18
        s_mul_i32 s72, s73, 112
        s_sub_u32 s72, s89, s72
        s_and_b32 s77, s72, 1
        s_lshr_b32 s72, s72, 1
        s_lshl_b32 s90, s72, 15
        s_lshl_b32 s91, s73, 7
        s_add_u32 s90, s90, s91
        s_lshl_b32 s91, s77, 13
        s_add_u32 s90, s90, s91""")
        for i in range(8):
            if i == 4: a("s_add_u32 s90, s90, 16384")
            a(f"buffer_load_dword v{PKL+8*u+i}, v212, {W2}, s90 offen offset:{(i&3)*1024}{NT}")
        a(f"""s_mul_i32 s73, s73, 112
        s_add_u32 s73, s73, s72
        s_lshl_b32 s73, s73, 11
        s_lshl_b32 s77, s77, 9
        s_add_u32 s73, s73, s77
        v_add_u32 v{214+u}, s73, v213""")
    a.label(lx)
    a(f"""s_mov_b32 s75, 0x05040100
    s_mov_b32 s76, 0x07060302
    s_mov_b32 s90, {WS_W2P}
    s_mov_b32 s91, {WS_W2P+1024}
    s_waitcnt vmcnt(0)""")
    for u in range(2):
        if u == 1: a(f"s_cmp_eq_u32 s95, 0\ns_cbranch_scc1 L_p0_join")
        for c in range(2):
            for q in range(4):
                a(f"v_perm_b32 v{PKO+8*u+4*c+q}, v{PKL+8*u+2*q+1}, v{PKL+8*u+2*q}, s{75+c}")
        a(f"buffer_store_dwordx4 v[{PKO+8*u}:{PKO+3+8*u}], v{214+u}, {WS}, s90 offen sc1")
        a(f"buffer_store_dwordx4 v[{PKO+4+8*u}:{PKO+7+8*u}], v{214+u}, {WS}, s91 offen sc1")

a("s_branch L_p0_join")
a.label("L_aux")
a(f"""v_lshrrev_b32 v24, 3, v1
v_lshlrev_b32 v24, 10, v24
v_and_b32 v4, 7, v1
v_lshl_add_u32 v24, v4, 4, v24
s_lshl_b32 s72, s2, 13
s_waitcnt lgkmcnt(0)""")
srd(32, 4, 2097152)
XR, XS = 48, 64
for r in range(8): a(f"buffer_load_dword v{XR+r}, v12, {X}, {'0' if r<4 else 's74'} offen offset:{1024*(r%4)}{NT}")
srd(48, 12, 2097152)
ssm_load()
ls = a.new("Lnst")
a(f"s_cmp_lg_u32 s28, 4\ns_cbranch_scc1 {ls}")
for i in range(8): a(f"buffer_load_dwordx4 v[{XS+4*i}:{XS+4*i+3}], v24, {X}, s72 offen offset:{128*i}{NT}")
a.label(ls)
srd(56, 20, 1835008); srd(52, 18, 1835008); srd(64, 24, 256); srd(68, 26, WS_BYTES); srd(60, 22, 2097152)
zero_pads()
XSTG = L_RED + 8192
a(f"""v_and_b32 v4, 7, v10
v_lshlrev_b32 v13, 1, v11
v_xor_b32 v4, v4, v13
v_lshlrev_b32 v22, 8, v10
v_lshl_add_u32 v22, v4, 4, v22
v_add_u32 v22, {XSTG}, v22
v_xor_b32 v12, 16, v22
v_lshrrev_b32 v23, 4, v1
v_and_b32 v13, 15, v1
v_xor_b32 v4, v23, v13
v_lshlrev_b32 v4, 4, v4
v_lshl_add_u32 v4, v23, 8, v4
v_lshlrev_b32 v13, 4, v13
v_lshl_add_u32 v13, v23, 13, v13
s_lshl_b32 s72, s79, 11
s_add_u32 s72, s72, {XSTG}
v_add_u32 v23, s72, v4
v_xor_b32 v11, 64, v23
s_lshl_b32 s72, s29, 18
s_lshl_b32 s73, s30, 8
s_add_u32 s90, s72, s73
s_lshl_b32 s72, s79, 16
s_add_u32 s90, s90, s72
s_add_u32 s90, s90, {WS_XD}
s_add_u32 s91, s90, 32768
s_mov_b32 s75, 0x3f803f80""")
mark(1)
a(f"""s_cmp_eq_u32 s28, 4
s_cbranch_scc1 L_w4a
s_waitcnt vmcnt(2)
s_branch L_w4b
L_w4a:
s_waitcnt vmcnt(10)
L_w4b:""")
tag_load()
a(f"""ds_write_b128 v22, v[{XR}:{XR+3}]
ds_write_b128 v12, v[{XR+4}:{XR+7}]
s_waitcnt lgkmcnt(0)
s_barrier
ds_read_b128 v[128:131], v23
ds_read_b128 v[132:135], v11 offset:1024
s_waitcnt lgkmcnt(1)
buffer_store_dwordx4 v[128:131], v13, {WS}, s90 offen sc1
s_waitcnt lgkmcnt(0)
buffer_store_dwordx4 v[132:135], v13, {WS}, s91 offen sc1
s_waitcnt vmcnt(3)
s_cmp_lg_u32 s28, 4
s_cbranch_scc1 L_aux_pub""")
for i in range(4): a(f"v_mov_b32 v{100+i}, 0")
for i in range(32): a(f"v_dot2_f32_bf16 v{100+(i&3)}, v{XS+i}, s75, v{100+(i&3)}")
a("s_nop 2\nv_add_f32 v100, v100, v101\nv_add_f32 v102, v102, v103\nv_add_f32 v100, v100, v102")
def red8(v):
    for m in ("quad_perm:[1,0,3,2]", "quad_perm:[2,3,0,1]", "row_half_mirror"):
        a(f"s_nop 1\nv_add_f32_dpp v{v}, v{v}, v{v} {m} row_mask:0xf bank_mask:0xf")
red8(100)
a("v_mul_f32 v100, 0x3b000000, v100\nv_mov_b32 v101, v100")
for i in range(4): a(f"v_mov_b32 v{102+i}, 0")
for i in range(32):
    t = 106 + 2*(i & 3); ac = 102 + 2*(i & 1)
    a(f"v_lshlrev_b32 v{t}, 16, v{XS+i}\nv_and_b32 v{t+1}, 0xffff0000, v{XS+i}")
    a(f"v_pk_add_f32 v[{t}:{t+1}], v[{t}:{t+1}], v[100:101] neg_lo:[0,1] neg_hi:[0,1]")
    a(f"v_pk_fma_f32 v[{ac}:{ac+1}], v[{t}:{t+1}], v[{t}:{t+1}], v[{ac}:{ac+1}]")
a("v_add_f32 v102, v102, v103\nv_add_f32 v104, v104, v105\nv_add_f32 v102, v102, v104")
red8(102)
a(f"""v_mul_f32 v102, 0x3b000000, v102
v_cvt_pk_bf16_f32 v104, v100, v102
v_and_b32 v105, 0xffff0000, v104
v_add_f32 v105, 0x3727c5ac, v105
v_cvt_pk_bf16_f32 v105, v105, v105
v_and_b32 v105, 0xffff0000, v105
v_sqrt_f32 v105, v105
s_nop 0
v_cvt_pk_bf16_f32 v105, v104, v105
v_and_b32 v104, 0xffff, v104
v_and_b32 v105, 0xffff0000, v105
v_or_b32 v104, v104, v105
v_lshrrev_b32 v24, 3, v1
v_lshlrev_b32 v24, 2, v24
s_lshl_b32 s72, s2, 5
s_add_u32 s72, s72, {WS_ST}
s_mov_b32 exec_lo, 0x01010101
s_mov_b32 exec_hi, 0x01010101
buffer_store_dword v104, v24, {WS}, s72 offen sc1
s_mov_b64 exec, -1""")
a.label("L_aux_pub")
kc_build()
a("s_waitcnt vmcnt(0)")
tag_check()
lnf = a.new("Lnfx")
a(f"""v_mov_b32 v24, {L_CNT}
v_mov_b32 v25, 1
s_mov_b64 exec, 1
ds_add_rtn_u32 v25, v24, v25
s_mov_b64 exec, -1
s_waitcnt lgkmcnt(0)
v_readfirstlane_b32 s72, v25
s_cmp_lg_u32 s72, 3
s_cbranch_scc1 {lnf}
s_lshl_b32 s73, s2, 7
s_add_u32 s73, s73, {WS_FX}""")
flag_store("s73")
a.label(lnf)
mark(2)

a.label("L_p0_join")
ACC = 16; AF = [48, 112]; BF = [80, 144]
a(f"""s_lshr_b32 s84, s30, 3
s_lshr_b32 s72, s29, 1
s_lshl_b32 s72, s72, 2
s_add_u32 s84, s84, s72
s_and_b32 s85, s30, 7
s_and_b32 s72, s29, 1
s_lshl_b32 s72, s72, 3
s_add_u32 s85, s85, s72
v_mov_b32 v214, {OOB}
v_mov_b32 v215, {OOB}
v_mov_b32 v234, {OOB}
s_mul_i32 s88, s85, 224
s_and_b32 s94, s85, 1
s_lshr_b32 s86, s28, 1
s_and_b32 s87, s28, 1
s_lshr_b32 s72, s85, 1
s_lshl_b32 s72, s72, 1
s_add_u32 s72, s72, s87
s_mul_i32 s31, s72, 56
s_mul_i32 s72, s86, 14
s_add_u32 s31, s31, s72
s_lshl_b32 s31, s31, 11
s_add_u32 s31, s31, {WS_W2P}
v_add_u32 v10, 1, v2
v_and_b32 v11, 3, v10
v_mul_u32_u24 v11, {KC_STRIDE}, v11
v_lshrrev_b32 v10, 2, v10
v_lshl_add_u32 v10, v10, 3, v11
v_lshlrev_b32 v11, 4, v3
v_sub_u32 v10, v10, v11
s_lshl_b32 s72, s79, 7
s_add_u32 s73, s80, s72
s_add_u32 s73, s73, 48
v_add_u32 v10, s73, v10
v_lshl_add_u32 v11, v2, 5, v11
s_add_u32 s73, s82, {480-64}
s_sub_u32 s73, s73, s72
v_add_u32 v11, s73, v11
v_lshlrev_b32 v13, 6, v2
v_lshl_add_u32 v13, v3, 4, v13
s_lshl_b32 s72, s28, 10
s_add_u32 s72, s72, {L_XS}
v_add_u32 v13, s72, v13
s_lshl_b32 s72, s83, 2
s_add_u32 s14, s14, s72
s_addc_u32 s15, s15, 0
s_load_dword s93, s[14:15], 0""")
a("s_waitcnt lgkmcnt(0)")
for i in range(32): a(f"v_mov_b32 v{ACC+i}, 0")
if STOP <= 0: a("s_branch L_fin")
a("s_barrier")
mark(4)
a("s_cmp_gt_u32 s28, 3\ns_cbranch_scc1 L_conv_t\ns_cmp_eq_u32 s28, 3\ns_cbranch_scc1 L_conv_w3")
if not OPT.get("pke", 0):
    a("s_cmp_eq_u32 s28, 0\ns_cbranch_scc1 L_conv_go")
    PKL, PKO = 192, 216
    a(f"""v_lshrrev_b32 v208, 5, v1
    v_and_b32 v209, 31, v1
    v_lshlrev_b32 v212, 12, v208
    v_lshl_add_u32 v212, v209, 2, v212
    v_lshrrev_b32 v213, 4, v209
    v_mul_u32_u24 v213, {56*2048}, v213
    v_and_b32 v209, 15, v209
    v_lshl_add_u32 v213, v209, 4, v213
    v_lshl_add_u32 v213, v208, 8, v213
    v_mov_b32 v214, {OOB}
    v_mov_b32 v215, {OOB}
    s_mov_b32 s95, 0
    """)
    a("s_mul_i32 s89, s2, 3\ns_add_u32 s89, s89, s28\ns_sub_u32 s89, s89, 1")
    lx = a.new("Lpkx")
    for u in range(2):
        if u == 1:
            a(f"s_add_u32 s89, s89, 1\ns_add_u32 s72, s2, 768\ns_cmp_eq_u32 s28, 1\ns_cselect_b32 s89, s72, s89\ns_cmp_ge_u32 s89, 896\ns_cbranch_scc1 {lx}\ns_mov_b32 s95, 1")
        a(f"""s_mul_i32 s73, s89, 2341
        s_lshr_b32 s73, s73, 18
        s_mul_i32 s72, s73, 112
        s_sub_u32 s72, s89, s72
        s_and_b32 s77, s72, 1
        s_lshr_b32 s72, s72, 1
        s_lshl_b32 s90, s72, 15
        s_lshl_b32 s91, s73, 7
        s_add_u32 s90, s90, s91
        s_lshl_b32 s91, s77, 13
        s_add_u32 s90, s90, s91""")
        for i in range(8):
            if i == 4: a("s_add_u32 s90, s90, 16384")
            a(f"buffer_load_dword v{PKL+8*u+i}, v212, {W2}, s90 offen offset:{(i&3)*1024}{NT}")
        a(f"""s_mul_i32 s73, s73, 112
        s_add_u32 s73, s73, s72
        s_lshl_b32 s73, s73, 11
        s_lshl_b32 s77, s77, 9
        s_add_u32 s73, s73, s77
        v_add_u32 v{214+u}, s73, v213""")
    a.label(lx)

a("s_branch L_conv_go")
a.label("L_conv_w3")
a(f"s_mov_b32 s73, {WS_FX}")
polln("s73", 4)
a(f"s_lshl_b32 s73, s83, 13\ns_add_u32 s73, s73, {WS_XD}\ns_mov_b32 m0, {L_XS}\ns_nop 0")
for q in range(4): a(f"buffer_load_dwordx4 v5, {WS}, s73 offen offset:{1024*q}{LD} lds")
a(f"s_add_u32 s73, s73, 4096\ns_mov_b32 m0, {L_XS+4096}\ns_nop 0")
for q in range(4): a(f"buffer_load_dwordx4 v5, {WS}, s73 offen offset:{1024*q}{LD} lds")
a(f"s_mov_b32 s73, {WS_ST}\ns_mov_b32 m0, {L_ST}\ns_nop 0")
for q in range(4): a(f"buffer_load_dwordx4 v5, {WS}, s73 offen offset:{1024*q}{LD} lds")
a(f"s_mov_b32 s73, {WS_ST+4096}\ns_mov_b32 m0, {L_ST+4096}\ns_nop 0")
for q in range(4): a(f"buffer_load_dwordx4 v5, {WS}, s73 offen offset:{1024*q}{LD} lds")
a("s_branch L_conv_go")
a.label("L_conv_t")
a(f"""s_mul_i32 s89, s30, 57344
s_mul_i32 s72, s79, 14336
s_add_u32 s89, s89, s72
s_and_b32 s72, s29, 1
s_mul_i32 s72, s72, 1792
s_add_u32 s89, s89, s72
v_mul_u32_u24 v234, 3584, v3
v_min_u32 v235, 13, v2
v_lshl_add_u32 v234, v235, 7, v234
""")
a.label("L_conv_go")
def reads(ph, T):
    return [f"ds_read_b64 v[{AF[ph]+4*T}:{AF[ph]+4*T+1}], v10 offset:{512*T+64*ph}",
            f"ds_read_b64 v[{AF[ph]+4*T+2}:{AF[ph]+4*T+3}], v10 offset:{512*T+64*ph+8}",
            f"ds_read_b128 v[{BF[ph]+4*T}:{BF[ph]+4*T+3}], v11 offset:{512*T+64*(1-ph)}"]
allreads = [r for ph in range(2) for T in range(8) for r in reads(ph, T)]
st = {"i": 0}
def issue(k):
    for _ in range(k):
        if st["i"] < len(allreads): a(allreads[st["i"]]); st["i"] += 1
issue(15)
for ph in range(2):
    for T in range(8):
        need = (ph * 8 + T + 1) * 3
        TP = {(0, 0): (4, 0), (0, 5): (5, 0), (1, 0): (6, 0), (1, 5): (7, 0)}
        if (ph, T) in TP:
            w_, r_ = TP[(ph, T)]; lk = a.new("Ltk")
            a(f"s_cmp_lg_u32 s28, {w_}\ns_cbranch_scc1 {lk}\ns_add_u32 s72, s89, {8192*r_}\nbuffer_load_dword v{232+r_}, v234, {W1}, s72 offen\n{lk}:")
        a(f"s_waitcnt lgkmcnt({st['i'] - need})")
        for i in range(T + 1):
            a(f"v_mfma_f32_16x16x32_bf16 v[{ACC+4*T}:{ACC+4*T+3}], v[{AF[ph]+4*i}:{AF[ph]+4*i+3}], v[{BF[ph]+4*(T-i)}:{BF[ph]+4*(T-i)+3}], v[{ACC+4*T}:{ACC+4*T+3}]")
            if i < 3 and st["i"] - need < 15: issue(1)
if not OPT.get("pke", 0):
    a("s_sub_u32 s72, s28, 1\ns_cmp_gt_u32 s72, 1\ns_cbranch_scc1 L_conv_red")
    a(f"""s_mov_b32 s75, 0x05040100
    s_mov_b32 s76, 0x07060302
    s_mov_b32 s90, {WS_W2P}
    s_mov_b32 s91, {WS_W2P+1024}
    s_waitcnt vmcnt(0)""")
    for u in range(2):
        if u == 1: a(f"s_cmp_eq_u32 s95, 0\ns_cbranch_scc1 L_conv_red")
        for c in range(2):
            for q in range(4):
                a(f"v_perm_b32 v{PKO+8*u+4*c+q}, v{PKL+8*u+2*q+1}, v{PKL+8*u+2*q}, s{75+c}")
        a(f"buffer_store_dwordx4 v[{PKO+8*u}:{PKO+3+8*u}], v{214+u}, {WS}, s90 offen sc1")
        a(f"buffer_store_dwordx4 v[{PKO+4+8*u}:{PKO+7+8*u}], v{214+u}, {WS}, s91 offen sc1")

a.label("L_conv_red")
mark(5)
mode_read(183); mode_get(183)
a(f"""s_lshl_b32 s72, s28, 13
s_add_u32 s72, s72, {L_RED}
v_add_u32 v184, s72, v5""")
for T in range(8):
    if T == 7: a("s_nop 5")
    a(f"ds_write_b128 v184, v[{ACC+4*T}:{ACC+4*T+3}] offset:{1024*T}")
a(f"""s_lshl_b32 s72, s28, 10
s_add_u32 s72, s72, {L_RED}
v_add_u32 v186, s72, v5
v_lshlrev_b32 v185, 5, v2
v_lshrrev_b32 v4, 1, v3
v_lshl_add_u32 v185, v4, 4, v185
v_and_b32 v4, 1, v3
v_lshlrev_b32 v4, 3, v4
v_sub_u32 v185, v185, v4
s_lshl_b32 s72, s28, 9
s_add_u32 s72, s72, {L_U[0]+512+8}
v_add_u32 v185, s72, v185
ds_read_b64 v[176:177], v185
ds_read_b64 v[178:179], v185 offset:{L_U[1]-L_U[0]}
s_lshl_b32 s76, s93, 16
s_and_b32 s77, s93, 0xffff0000
v_lshrrev_b32 v187, 1, v2
v_lshlrev_b32 v187, 15, v187
v_lshl_add_u32 v187, v4, 3, v187
v_lshrrev_b32 v4, 1, v3
v_lshl_add_u32 v187, v4, 4, v187
v_and_b32 v4, 1, v2
v_lshl_add_u32 v187, v4, 5, v187
s_lshl_b32 s90, s83, 7
s_lshl_b32 s73, s28, 18
s_add_u32 s90, s90, s73
s_add_u32 s90, s90, {WS_HT}
s_lshl_b32 s73, s28, 8
s_add_u32 s73, s73, s83
s_lshl_b32 s91, s73, 7
s_add_u32 s91, s91, {WS_F2}
s_cmp_gt_u32 s28, 3
s_cbranch_scc1 L_nvw
s_waitcnt vmcnt(0)
L_nvw:
s_waitcnt lgkmcnt(0)
s_barrier""")
mark(6)
P = 48; KV, XP, LN, Y, STT = 120, 128, 136, 144, 152
a(f"ds_read_b128 v[116:119], v13 offset:{L_ST-L_XS}\nds_read_b128 v[112:115], v13")
for w in range(8): a(f"ds_read_b128 v[{P+4*w}:{P+4*w+3}], v186 offset:{8192*w}")
for c in range(2):
    d0, d1 = 176 + 2*c, 177 + 2*c
    a(f"v_lshlrev_b32 v{KV+6+c}, 16, v{d0}\nv_and_b32 v{KV+4+c}, 0xffff0000, v{d0}\nv_lshlrev_b32 v{KV+2+c}, 16, v{d1}\nv_and_b32 v{KV+c}, 0xffff0000, v{d1}")
a("s_waitcnt lgkmcnt(8)")
for r in range(4): a(f"v_and_b32 v{STT+r}, 0xffff0000, v{116+r}")
for r in range(4): a(f"v_rcp_f32 v{STT+r}, v{STT+r}")
for r in range(4): a(f"v_lshlrev_b32 v{STT+4+r}, 16, v{116+r}\nv_lshlrev_b32 v{XP+2*r}, 16, v{112+r}\nv_and_b32 v{XP+1+2*r}, 0xffff0000, v{112+r}")
for r in range(4):
    for c in range(2): a(f"v_sub_f32 v{LN+2*r+c}, v{XP+2*r+c}, v{STT+4+r}")
for r in range(4):
    for c in range(2): a(f"v_mul_f32 v{LN+2*r+c}, v{LN+2*r+c}, v{STT+r}")
a("s_waitcnt lgkmcnt(0)")
for c in range(2):
    b = P + 16*c
    for h in range(2):
        a(f"v_pk_add_f32 v[{b+2*h}:{b+2*h+1}], v[{b+2*h}:{b+2*h+1}], v[{b+4+2*h}:{b+5+2*h}]")
        a(f"v_pk_add_f32 v[{b+8+2*h}:{b+9+2*h}], v[{b+8+2*h}:{b+9+2*h}], v[{b+12+2*h}:{b+13+2*h}]")
    for r in range(4): a(f"v_add_f32 v{Y+2*r+c}, v{b+r}, v{b+8+r}")
for r in range(4): a(f"v_pk_fma_f32 v[{Y+2*r}:{Y+1+2*r}], v[{KV+2*r}:{KV+1+2*r}], s[76:77], v[{Y+2*r}:{Y+1+2*r}]")
for r in range(4): a(f"v_pk_fma_f32 v[{Y+2*r}:{Y+1+2*r}], v[{LN+2*r}:{LN+1+2*r}], v[{Y+2*r}:{Y+1+2*r}], v[{XP+2*r}:{XP+1+2*r}]")
a(f"""v_cvt_pk_bf16_f32 v160, v{Y}, v{Y+2}
v_cvt_pk_bf16_f32 v161, v{Y+4}, v{Y+6}
v_cvt_pk_bf16_f32 v162, v{Y+1}, v{Y+3}
v_cvt_pk_bf16_f32 v163, v{Y+5}, v{Y+7}
s_nop 1
v_permlane16_swap_b32 v160, v162
v_permlane16_swap_b32 v161, v163
s_nop 1
buffer_store_dwordx4 v[160:163], v187, {WS}, s90 offen sc1
s_waitcnt vmcnt(0)""")
flag_store("s91")
mark(7)
if STOP <= 1: a("s_branch L_fin")
a("s_barrier")
lw7, lw7d = a.new("Lw7"), a.new("Lw7d")
a(f"s_cmp_eq_u32 s28, 7\ns_cbranch_scc1 {lw7}")
KPRE = OPT.get("kpre", 8)
w1_pattern(133, "s28")
a("s_lshl_b32 s95, s28, 10")
def w1dma(ks): return f"s_add_u32 m0, s95, {ks*7168}\ns_add_u32 s72, s88, {ks*114688}\nbuffer_load_dwordx4 v133, {W1}, s72 offen lds"
for ks in range(KPRE): a(w1dma(ks))
a(f"s_branch {lw7d}")
a.label(lw7)
a(f"s_lshr_b32 s73, s84, 1\ns_lshl_b32 s73, s73, 15\ns_add_u32 s73, s73, {WS_F2}")
polln("s73", 4)
a.label(lw7d)
GA, ONE, CSH = 16, 56, 60
HFR = [64, 72]
WF = [80, 96]
a(f"""v_lshrrev_b32 v8, 1, v3
v_lshlrev_b32 v8, 4, v8
v_and_b32 v4, 1, v3
v_lshl_add_u32 v8, v4, 2, v8
v_lshrrev_b32 v4, 2, v2
v_add_u32 v8, v8, v4
v_and_b32 v4, 3, v2
v_lshlrev_b32 v4, 3, v4
v_and_b32 v9, 7, v8
v_lshl_add_u32 v9, v9, 5, v4
v_lshrrev_b32 v190, 1, v3
v_lshl_add_u32 v9, v190, 10, v9
v_lshrrev_b32 v190, 5, v1
v_lshlrev_b32 v190, 9, v190
v_bfe_u32 v191, v1, 1, 3
v_lshl_add_u32 v190, v191, 6, v190
v_bfe_u32 v191, v1, 4, 1
v_lshl_add_u32 v190, v191, 5, v190
v_and_b32 v191, 1, v1
v_lshl_add_u32 v190, v191, 4, v190
v_mul_u32_u24 v8, 224, v8
v_add_u32 v8, v8, v4
s_mul_i32 s92, s79, 12288
s_add_u32 s92, s92, {L_HR}
v_add_u32 v9, s92, v9
s_lshl_b32 s72, s94, 5
s_lshl_b32 s73, s78, 7
s_add_u32 s72, s72, s73
v_add_u32 v10, s72, v8
v_add_u32 v11, 57344, v10
s_mul_i32 s73, s94, 192
s_sub_u32 s73, 192, s73
v_add_u32 v12, s73, v8
v_add_u32 v13, 57344, v12
s_add_u32 s72, s28, s94
s_lshl_b32 s72, s72, 5
s_cmp_eq_u32 s28, 6
s_cselect_b32 s72, s73, s72
v_add_u32 v188, s72, v8
v_add_u32 v189, 57344, v188
s_lshl_b32 s90, s84, 3
s_lshl_b32 s72, s79, 1
s_add_u32 s90, s90, s72
s_lshl_b32 s91, s90, 14
s_add_u32 s91, s91, {WS_HT}""")
for i in range(40): a(f"v_mov_b32 v{GA+i}, 0")
for i in range(4): a(f"v_mov_b32 v{ONE+i}, 0x3f803f80")
a("s_waitcnt vmcnt(0)")
mark(8)
a("s_barrier")
mark(9)
def hdma(ks): return f"s_add_u32 m0, s92, {(ks % 6)*2048}\ns_add_u32 s74, s91, {ks*2048}\nbuffer_load_dwordx4 v190, {WS}, s74 offen{LD} lds\nbuffer_load_dwordx4 v190, {WS}, s74 offen offset:1024{LD} lds"
a(f"""s_lshl_b32 s73, s84, 17
s_and_b32 s72, s30, 7
s_lshl_b32 s72, s72, 14
s_add_u32 s73, s73, s72
s_and_b32 s72, s28, 1
s_lshl_b32 s72, s72, 13
s_add_u32 s73, s73, s72
s_add_u32 s73, s73, {WS_HT}
s_cmp_lt_u32 s28, 6
s_cbranch_scc1 L_noht
buffer_load_dword v135, v14, {WS}, s73 offen
L_noht:
s_mul_i32 s89, s30, 28672
s_lshl_b32 s72, s79, 13
s_min_u32 s72, s72, 20480
s_add_u32 s89, s89, s72
s_and_b32 s72, s29, 1
s_mul_i32 s72, s72, 917504
s_add_u32 s89, s89, s72
s_add_u32 s89, s89, {WS_W2P}""")
a("s_cmp_eq_u32 s78, 1\ns_cbranch_scc1 L_nohp")
for ks in range(6): a(hdma(ks))
a.label("L_nohp")
lcs = a.new("Lcs")
a(f"s_cmp_eq_u32 s28, 7\ns_cbranch_scc1 {lcs}")
CF = 80
def csrd(ks):
    for hq in range(2): a(f"ds_read_b64_tr_b16 v[{CF+4*(ks%7)+2*hq}:{CF+4*(ks%7)+2*hq+1}], v{188+(ks>>3)} offset:{(ks%8)*7168 + hq*1792}")
for ks in range(min(7, KPRE)): csrd(ks)
for ks in range(KPRE):
    a(f"s_waitcnt lgkmcnt({2*min(6, KPRE-1-ks)})")
    a(f"v_mfma_f32_16x16x32_bf16 v[{CSH}:{CSH+3}], v[{CF+4*(ks%7)}:{CF+4*(ks%7)+3}], v[{ONE}:{ONE+3}], {'0' if ks == 0 else f'v[{CSH}:{CSH+3}]'}")
    if ks + 7 < KPRE: csrd(ks + 7)
a.label(lcs)
a("s_cmp_eq_u32 s78, 1\ns_cbranch_scc1 L_g1_b")
def gemm1(fh):
    ns = 4 if fh == 0 else 3
    def rdw(ks):
        o = []; hi = ks >= 8
        for sl in range(ns):
            for hq in range(2):
                six = (fh == 1 and sl == 2)
                base = (12 + hi) if six else (10 + hi)
                off = (ks - 8*hi)*7168 + hq*1792 + (0 if six else sl*32)
                r = WF[ks & 1] + 4*sl + 2*hq
                o.append(f"ds_read_b64_tr_b16 v[{r}:{r+1}], v{base} offset:{off}")
        return o
    def rdh(ks):
        o = []
        for t in range(2):
            for hq in range(2):
                r = HFR[ks & 1] + 4*t + 2*hq
                o.append(f"ds_read_b64_tr_b16 v[{r}:{r+1}], v9 offset:{(ks % 6)*2048 + t*256 + hq*512}")
        return o
    W2L = w2_loads(0, 14)
    vm = [x for k in range(6) for x in (("h0", k), ("h", k))] if fh == 0 else []
    def vmw(tag): return len(vm) - 1 - vm.index(tag)
    for x in rdw(0): a(x)
    if fh == 0: a(f"s_waitcnt vmcnt({vmw(('h', 1))})")
    a("s_barrier")
    for x in rdh(0): a(x)
    wi = 0
    for ks in range(16):
        fill = []
        if ks % 2 == 1 and ks < 15:
            if fh == 0: fill.append(("wait", ("h", ks + 2), None))
            if KPRE <= ks + 2 and KPRE < 16: fill.append(("wait", ("d", min(15, ks + 2)), None))
            fill.append(("x", None, "s_barrier"))
            for k2 in (ks + 5, ks + 6):
                if k2 < 16 and fh == 0: fill.append(("vm2", ("h", k2), hdma(k2)))
        if ks < 15: fill += [("x", None, x) for x in rdh(ks + 1) + rdw(ks + 1)]
        nd = (16 - KPRE + 3) // 4
        for k2 in range(KPRE + nd*ks, min(16, KPRE + nd*(ks+1))):
            lk = a.new("Lw1")
            fill.append(("vm", ("d", k2), (f"s_cmp_eq_u32 s28, 7\ns_cbranch_scc1 {lk}\n" if fh == 1 else "") + w1dma(k2) + (f"\n{lk}:" if fh == 1 else "")))
        if ks + 1 >= KPRE and ks < 15:
            for hq in range(2): fill.append(("x", None, f"ds_read_b64_tr_b16 v[{112+4*((ks+1)&1)+2*hq}:{113+4*((ks+1)&1)+2*hq}], v{188+((ks+1)>>3)} offset:{((ks+1)%8)*7168 + hq*1792}"))
        kt = OPT.get("kt", 1)
        if fh == 1 and kt <= ks < kt + 8 and (ks - kt) % 2 == 0:
            j = (ks - kt) // 2; lk = a.new("Ltg")
            fill.append(("vm", ("t", j), f"s_cmp_eq_u32 s79, {j & 3}\ns_cselect_b32 s72, s89, {OOB}\nbuffer_load_dword v134, v14, {WS}, s72 offen"))
        for _ in range(OPT.get("pk", 3)):
            if wi < OPT.get("nl", 18) and ks >= (OPT.get("k0", 10) if fh == 0 else OPT.get("k1", 10)): fill.append(("vm", ("w", wi), W2L[wi])); wi += 1
        mf = []
        for sl in range(ns):
            for t in range(2):
                ac = GA + (sl*2 + t)*4; h = HFR[ks & 1] + 4*t
                mf.append(f"v_mfma_f32_16x16x32_bf16 v[{ac}:{ac+3}], v[{WF[ks&1]+4*sl}:{WF[ks&1]+4*sl+3}], v[{h}:{h+3}], v[{ac}:{ac+3}]")
        if fh == 1:
            for t in range(2):
                h = HFR[ks & 1] + 4*t
                mf.append(f"v_mfma_f32_16x16x32_bf16 v[{40+4*t}:{43+4*t}], v[{h}:{h+3}], v[{h}:{h+3}], v[{40+4*t}:{43+4*t}]")
                mf.append(f"v_mfma_f32_16x16x32_bf16 v[{48+4*t}:{51+4*t}], v[{ONE}:{ONE+3}], v[{h}:{h+3}], v[{48+4*t}:{51+4*t}]")
        if ks >= KPRE: mf.append(f"v_mfma_f32_16x16x32_bf16 v[{CSH}:{CSH+3}], v[{112+4*(ks&1)}:{115+4*(ks&1)}], v[{ONE}:{ONE+3}], v[{CSH}:{CSH+3}]")
        a("s_waitcnt lgkmcnt(0)")
        if OPT.get("g1m") and ks in (0, 4, 8, 12): mark({0: 1, 4: 2, 8: 3, 12: 14}[ks])
        k = 0
        per = (len(fill) + len(mf) - 1) // len(mf)
        for m, x in enumerate(mf):
            a(x)
            tgt = min(len(fill), per*(m+1))
            while k < tgt:
                kind, tag, txt = fill[k]; k += 1
                if kind == "vm": a(txt); vm.append(tag)
                elif kind == "vm2": a(txt); vm.append(("h0", tag[1])); vm.append(tag)
                elif kind == "wait": a(f"s_waitcnt vmcnt({vmw(tag)})")
                else: a(txt)
    mark(10)
    for _ in range(28 - wi):
        a(W2L[wi]); wi += 1
    a("s_barrier")
    if OPT.get("e1m"): mark(1)
    lc2 = a.new("Lc2")
    a(f"""v_lshlrev_b32 v10, 4, v3
    s_lshl_b32 s72, s28, 6
    v_add_u32 v4, s72, v10
    s_mov_b32 exec_lo, 0x00010001
    s_mov_b32 exec_hi, 0x00010001
    ds_write_b128 v4, v[{CSH}:{CSH+3}] offset:{L_CS}
    s_mov_b64 exec, -1
    s_lshl_b32 s72, s79, 8
    v_lshlrev_b32 v11, 3, v2
    v_add_u32 v11, s72, v11""")
    if fh == 1:
        a(f"""v_and_b32 v4, 3, v2
        v_cmp_eq_u32 s[72:73], 1, v4
        v_cmp_eq_u32 s[74:75], 2, v4
        v_cmp_eq_u32 s[76:77], 3, v4
        v_lshrrev_b32 v4, 2, v2
        v_cmp_eq_u32 vcc, v4, v3""")
        for t in range(2):
            g = 40 + 4*t
            a(f"""v_cndmask_b32_e64 v{g}, v{g}, v{g+1}, s[72:73]
            v_cndmask_b32_e64 v{g}, v{g}, v{g+2}, s[74:75]
            v_cndmask_b32_e64 v{g+1}, v{g}, v{g+3}, s[76:77]
            v_mov_b32 v{g}, v{48+4*t}""")
        a(f"""s_mov_b64 exec, vcc
        ds_write_b64 v11, v[40:41] offset:{L_SX}
        ds_write_b64 v11, v[44:45] offset:{L_SX+128}
        s_mov_b64 exec, -1""")
    CSR = 80
    a(f"""s_mul_i32 s72, s90, 57344
    s_add_u32 s72, s72, {WS_HP}
    s_mul_i32 s73, s85, 7
    s_add_u32 s74, s73, s94
    s_lshr_b32 s74, s74, 1
    s_lshl_b32 s74, s74, 10
    s_add_u32 s74, s74, s72
    s_mul_i32 s75, s94, 6
    s_sub_u32 s75, 6, s75
    s_add_u32 s75, s75, s73
    s_lshr_b32 s75, s75, 1
    s_lshl_b32 s75, s75, 10
    s_add_u32 s75, s75, s72
    s_lshl_b32 s76, s94, 3
    s_add_u32 s75, s75, s76
    v_add_u32 v12, 57344, v5
    s_waitcnt lgkmcnt(0)
    s_barrier
    ds_read_b64 v[64:65], v11 offset:{L_SX}
    ds_read_b64 v[66:67], v11 offset:{L_SX+128}""")
    for sl in range(ns): a(f"ds_read_b128 v[{CSR+4*sl}:{CSR+4*sl+3}], v10 offset:{L_CS + 64*(sl + 4*fh)}")
    a(f"s_waitcnt lgkmcnt({ns})")
    for t in range(2):
        s_, q_ = 64 + 2*t, 65 + 2*t
        a(f"""v_mul_f32 v{s_}, 0x3b000000, v{s_}
        v_mul_f32 v{q_}, 0x3b000000, v{q_}
        v_fma_f32 v{q_}, -v{s_}, v{s_}, v{q_}
        v_max_f32 v{q_}, 0, v{q_}
        v_cvt_pk_bf16_f32 v{s_}, v{s_}, v{q_}
        v_lshlrev_b32 v{70+4*t}, 16, v{s_}
        v_lshlrev_b32 v{71+4*t}, 16, v{s_}
        v_and_b32 v{q_}, 0xffff0000, v{s_}
        v_add_f32 v{q_}, 0x3727c5ac, v{q_}
        v_cvt_pk_bf16_f32 v{q_}, v{q_}, v{q_}
        v_and_b32 v{q_}, 0xffff0000, v{q_}
        v_sqrt_f32 v{q_}, v{q_}""")
    for t in range(2):
        q_ = 65 + 2*t
        a(f"""v_cvt_pk_bf16_f32 v{q_}, v{q_}, v{q_}
        v_and_b32 v{q_}, 0xffff0000, v{q_}
        v_rcp_f32 v{68+4*t}, v{q_}
        v_rcp_f32 v{69+4*t}, v{q_}""")
    a("s_waitcnt lgkmcnt(0)")
    TT = 96
    if OPT.get("e1m"): mark(2)
    for t in range(2): a(f"v_mul_f32 v{128+2*t}, 0xbfb8aa3b, v{68+4*t}\nv_mul_f32 v{129+2*t}, 0xbfb8aa3b, v{68+4*t}")
    a("v_mov_b32 v132, 1.0\nv_mov_b32 v133, 1.0")
    groups = [(0, 1), (2, 3)] if fh == 0 else [(0, 1), (2,)]
    for gi, grp in enumerate(groups):
        prs = [(sl, t, h) for sl in grp for t in range(2) for h in range(2)]
        def AC(sl, t, h): return GA + (sl*2+t)*4 + 2*h
        def T_(i): return TT + 16*gi + 2*i
        for i, (sl, t, h) in enumerate(prs):
            ac = AC(sl, t, h)
            a(f"v_pk_fma_f32 v[{ac}:{ac+1}], v[{CSR+4*sl+2*h}:{CSR+4*sl+2*h+1}], v[{70+4*t}:{71+4*t}], v[{ac}:{ac+1}] neg_lo:[0,1,0] neg_hi:[0,1,0]")
        for i, (sl, t, h) in enumerate(prs):
            ac = AC(sl, t, h)
            a(f"v_pk_mul_f32 v[{T_(i)}:{T_(i)+1}], v[{ac}:{ac+1}], v[{128+2*t}:{129+2*t}]")
        for i, (sl, t, h) in enumerate(prs):
            ac = AC(sl, t, h)
            a(f"v_exp_f32 v{T_(i)}, v{T_(i)}\nv_exp_f32 v{T_(i)+1}, v{T_(i)+1}\nv_pk_mul_f32 v[{ac}:{ac+1}], v[{ac}:{ac+1}], v[{68+4*t}:{69+4*t}]")
        for i in range(len(prs)): a(f"v_pk_add_f32 v[{T_(i)}:{T_(i)+1}], v[{T_(i)}:{T_(i)+1}], v[132:133]")
        for i in range(len(prs)): a(f"v_rcp_f32 v{T_(i)}, v{T_(i)}\nv_rcp_f32 v{T_(i)+1}, v{T_(i)+1}")
        a("s_nop 0")
        for i, (sl, t, h) in enumerate(prs):
            ac = AC(sl, t, h)
            a(f"v_pk_mul_f32 v[{ac}:{ac+1}], v[{ac}:{ac+1}], v[{T_(i)}:{T_(i)+1}]")
        for t in range(2):
            o = TT + 16*gi + 4*t
            for j, sl in enumerate(grp):
                ac = AC(sl, t, 0)
                a(f"v_cvt_pk_bf16_f32 v{o+2*j}, v{ac}, v{ac+1}\nv_cvt_pk_bf16_f32 v{o+2*j+1}, v{ac+2}, v{ac+3}")
            if len(grp) == 2: a(f"buffer_store_dwordx4 v[{o}:{o+3}], v{5 if t == 0 else 12}, {WS}, s74 offen offset:{1024*(gi + 2*fh)} sc1")
            else: a(f"buffer_store_dwordx2 v[{o}:{o+1}], v{5 if t == 0 else 12}, {WS}, s75 offen sc1")

    return wi
WI = gemm1(0); a("s_branch L_g1_done")
a.label("L_g1_b"); gemm1(1)
a.label("L_g1_done")
if OPT.get("e1m"): mark(3)
A3 = 16; HF = [64, 96]
a(f"""s_lshl_b32 s73, s84, 1
s_lshr_b32 s72, s79, 1
s_add_u32 s73, s73, s72
s_lshl_b32 s73, s73, 4
s_add_u32 s73, s73, s85
s_lshl_b32 s73, s73, 2
s_and_b32 s72, s79, 1
s_lshl_b32 s72, s72, 1
s_add_u32 s73, s73, s72
s_add_u32 s73, s73, s78
s_lshl_b32 s73, s73, 7
s_add_u32 s73, s73, {WS_F3}
s_lshl_b32 s90, s84, 1
s_add_u32 s90, s90, s94
s_lshl_b32 s89, s90, 13
s_add_u32 s89, s89, {WS_F3}
s_lshl_b32 s90, s90, 2
s_mul_i32 s91, s86, 14
s_add_u32 s91, s91, s87
s_lshl_b32 s91, s91, 10
s_add_u32 s91, s91, {WS_HP}""")
for u in range(4):
    a(f"""s_add_u32 s72, s86, {u}
    s_and_b32 s72, s72, 3
    s_add_u32 s72, s72, s90
    s_mul_i32 s72, s72, 57344
    s_add_u32 s{40+u}, s72, s91""")
a(f"""s_lshl_b32 s92, s86, 13
s_lshl_b32 s72, s87, 12
s_add_u32 s93, s92, s72
v_add_u32 v10, s92, v5
s_add_u32 s90, s90, s86
s_lshr_b32 s95, s90, 1
s_lshl_b32 s95, s95, 15
s_and_b32 s72, s90, 1
s_lshl_b32 s72, s72, 5
s_add_u32 s95, s95, s72
s_lshr_b32 s72, s85, 1
s_lshl_b32 s72, s72, 1
s_add_u32 s72, s72, s87
s_lshl_b32 s72, s72, 11
s_add_u32 s95, s95, s72
s_add_u32 s95, s95, {WS_HT}
v_lshlrev_b32 v11, 9, v3
v_lshl_add_u32 v11, v2, 1, v11
v_add_u32 v12, 65536, v10
v_add_u32 v13, 0x20000, v10
s_waitcnt vmcnt(0)""")
flag_store("s73")
for x in w2_loads(0, 14)[WI:]: a(x)
mark(11)
if STOP <= 2: a("s_branch L_fin")
for e in range(4):
    a(f"buffer_load_short_d16 v{128+e}, v11, {WS}, s95 offen offset:{128*e} sc1\nbuffer_load_short_d16_hi v{132+e}, v11, {WS}, s95 offen offset:{128*e+64} sc1")
for i in range(32): a(f"v_mov_b32 v{A3+i}, 0")
lnp = a.new("Lnp3")
a(f"s_cmp_lg_u32 s28, 7\ns_cbranch_scc1 {lnp}")
polln("s89", 1)
a.label(lnp)
a("s_barrier")
mark(12)
def stage_dma(s):
    return [f"s_add_u32 m0, s93, {(s % 5)*32768 + u*1024}\ns_add_u32 s72, s{40+u}, {2048*s}\nbuffer_load_dwordx4 v5, {WS}, s72 offen{LD} lds" for u in range(4)]
for s in range(5):
    for x in stage_dma(s): a(x)
for s in range(7):
    issued = min(7, max(5, s + 4))
    a(f"s_waitcnt vmcnt({4*(issued - s - 1)})\ns_barrier")
    if s >= 1 and s + 4 <= 6:
        for x in stage_dma(s + 4): a(x)
    sl = s % 5
    base = 10 + [0, 0, 2, 2, 3][sl]; off0 = [0, 32768, 0, 32768, 0][sl]
    hf = HF[s & 1]
    for j in range(8): a(f"ds_read_b128 v[{hf+4*j}:{hf+4*j+3}], v{base} offset:{off0 + 1024*j}")
    for k2 in range(2):
        kk = 2*s + k2; b = w2reg(kk)
        for u in range(4):
            a(f"s_waitcnt lgkmcnt({7 - (k2*4+u)})")
            for t in range(2):
                ac = A3 + (u*2+t)*4
                a(f"v_mfma_f32_16x16x32_bf16 v[{ac}:{ac+3}], v[{b+4*t}:{b+4*t+3}], v[{hf+16*k2+4*u}:{hf+16*k2+4*u+3}], v[{ac}:{ac+3}]")
mark(13)
a("s_barrier")
for u in range(1, 4):
    a(f"""s_add_u32 s72, s86, {u}
    s_and_b32 s72, s72, 3
    s_lshl_b32 s73, s87, 2
    s_add_u32 s72, s72, s73
    s_mul_i32 s72, s72, 6144
    s_add_u32 s72, s72, {(u-1)*2048}
    v_add_u32 v{10+u}, s72, v5""")
a("""s_lshl_b32 s73, s87, 2
s_add_u32 s72, s86, s73
s_mul_i32 s72, s72, 6144
v_add_u32 v10, s72, v5""")
for u in range(1, 4):
    for t in range(2):
        ac = A3 + (u*2+t)*4
        a(f"ds_write_b128 v{10+u}, v[{ac}:{ac+3}] offset:{1024*t}")
a("""s_lshl_b32 s72, s90, 14
s_lshr_b32 s73, s85, 1
s_lshl_b32 s73, s73, 7
s_add_u32 s72, s72, s73
s_lshl_b32 s73, s87, 6
s_add_u32 s72, s72, s73
v_lshlrev_b32 v9, 10, v2
v_lshl_add_u32 v9, v3, 4, v9""")
for e in range(4): a(f"v_lshlrev_b32 v{96+e}, 16, v{128+e}\nv_and_b32 v{100+e}, 0xffff0000, v{132+e}")
a("s_waitcnt lgkmcnt(0)\ns_barrier")
for j in range(6): a(f"ds_read_b128 v[{64+4*j}:{67+4*j}], v10 offset:{1024*j}")
for t in range(2):
    ac = A3 + t*4
    for h in range(2): a(f"v_pk_add_f32 v[{ac+2*h}:{ac+2*h+1}], v[{ac+2*h}:{ac+2*h+1}], v[{96+4*t+2*h}:{97+4*t+2*h}]")
a("s_waitcnt lgkmcnt(0)")
for t in range(2):
    ac = A3 + t*4
    for h in range(2):
        a(f"v_pk_add_f32 v[{ac+2*h}:{ac+2*h+1}], v[{ac+2*h}:{ac+2*h+1}], v[{64+4*t+2*h}:{65+4*t+2*h}]")
        a(f"v_pk_add_f32 v[{72+4*t+2*h}:{73+4*t+2*h}], v[{72+4*t+2*h}:{73+4*t+2*h}], v[{80+4*t+2*h}:{81+4*t+2*h}]")
for t in range(2):
    ac = A3 + t*4
    for h in range(2): a(f"v_pk_add_f32 v[{ac+2*h}:{ac+2*h+1}], v[{ac+2*h}:{ac+2*h+1}], v[{72+4*t+2*h}:{73+4*t+2*h}]")
for r in range(4): a(f"v_cvt_pk_bf16_f32 v{104+r}, v{A3+r}, v{A3+4+r}")
a(f"buffer_store_dwordx4 v[104:107], v9, {OUT}, s72 offen")
a.label("L_fin")
if OPT.get("dbg"):
    a(f"""s_waitcnt vmcnt(0)
    s_memrealtime s[98:99]
    s_waitcnt lgkmcnt(0)
    s_and_b32 s72, s2, 31
    s_or_b32 s72, s72, s28
    s_cmp_lg_u32 s72, 0
    s_cbranch_scc1 L_end
    s_not_b32 s96, s96
    v_mov_b32 v16, s96
    v_mov_b32 v17, s98
    v_mov_b32 v4, 16
    s_mov_b64 exec, 1
    buffer_atomic_umax v16, v4, {DBG}, 0 offen
    buffer_atomic_umax v17, v4, {DBG}, 0 offen offset:4
    s_mov_b64 exec, -1""")
if STAMP:
    a(f"""s_mov_b64 exec, -1
    s_waitcnt vmcnt(0) lgkmcnt(0)
    s_memrealtime s[98:99]
    s_waitcnt lgkmcnt(0)
    v_writelane_b32 v15, s96, 0
    v_writelane_b32 v15, s98, 15
    s_lshl_b32 s72, s2, 9
    s_lshl_b32 s73, s28, 6
    s_add_u32 s72, s72, s73
    s_add_u32 s72, s72, {WS_STAMP}
    v_lshlrev_b32 v4, 2, v1
    s_mov_b64 exec, 0xffff
    buffer_store_dword v15, v4, {WS}, s72 offen
    s_add_u32 s72, s72, {0x100000 - 64}
    s_mov_b32 exec_lo, 0xffff0000
    buffer_store_dword v15, v4, {WS}, s72 offen""")
a.label("L_end")
a("s_endpgm")
a.raw(f""".section .rodata,"a"
.p2align 6
.amdhsa_kernel {NAME}
  .amdhsa_next_free_vgpr 256
  .amdhsa_next_free_sgpr 102
  .amdhsa_accum_offset 256
  .amdhsa_group_segment_fixed_size 0
  .amdhsa_kernarg_size 96
  .amdhsa_user_sgpr_count 2
  .amdhsa_user_sgpr_kernarg_segment_ptr 1
  .amdhsa_system_sgpr_workgroup_id_x 1
.end_amdhsa_kernel""")
HEADER = open("sequential_preLN__ssm_conv_h3__dense_activation_silu__prompt.s.ref").read().split("; Override launch")[0]
print(HEADER + f"; @launch grid=(256,1,1) block=(512,1,1) lds={LDS_BYTES}\n" + '.amdgcn_target "amdgcn-amd-amdhsa--gfx950"\n.text\n' + a.text())
```

```python
import sys
STAMP = "stamp" in sys.argv[1:]
STOP = 99
OPT = {"nt": 1, "fast": 0}
for x in sys.argv[1:]:
    if x.startswith("stop="): STOP = int(x[5:])
    elif "=" in x: k, v = x.split("="); OPT[k] = int(v)
NT = " nt" if OPT["nt"] else ""

WS_KVT = 0
WS_XD  = 2 << 20
WS_ST  = 4 << 20
WS_HT  = 6 << 20
WS_W2P = 10 << 20
WS_HP  = 12 << 20
WS_F1  = 20 << 20
WS_FX  = WS_F1 + 0x20000
WS_FC  = WS_F1 + 0x30000
WS_F2  = WS_F1 + 0x40000
WS_F3  = WS_F1 + 0x80000
WS_STAMP = 0x4000000
WS_BYTES = 268435456
OOB = 0x7FF00000
SPIN = 40000

W1_EARLY = 0
L_RED = 28672
L_XS = L_RED + 65536
L_ST = L_XS + 8192
L_U = [114688, 114688 + 4608]
L_KC = [123904, 123904 + 16640]
KC_STRIDE = 4160
L_CNT = 157184
L_MODE = 157188
L_HR = 114688
L_CS = 0
L_SX = 1024
LDS_BYTES = 163840
NAME = "sequential_preLN__ssm_conv_h3__dense_activation_silu__prompt_kernel"

class A:
    def __init__(s): s.l = []; s.uid = 0
    def __call__(s, txt):
        for ln in txt.strip("\n").split("\n"):
            if ln.strip(): s.l.append(("    " + ln.strip()) if not ln.strip().endswith(":") else ln.strip())
    def label(s, n): s.l.append(n + ":")
    def raw(s, t): s.l.append(t)
    def new(s, p="L"): s.uid += 1; return f"{p}_{s.uid}"
    def text(s): return "\n".join(s.l) + "\n"
a = A()
def srd(d, b, n):
    a(f"s_mov_b32 s{d}, s{b}\ns_mov_b32 s{d+1}, s{b+1}\ns_mov_b32 s{d+2}, {n}\ns_mov_b32 s{d+3}, 0x00020000")
def mark(i):
    if STAMP: a(f"s_memrealtime s[98:99]\ns_memtime s[100:101]\ns_waitcnt lgkmcnt(0)\nv_writelane_b32 v15, s98, {i}\nv_writelane_b32 v15, s100, {16+i}")
X, K, V, SK, SSM, W1, W2, OUT, DBG, WS = [f"s[{32+4*i}:{35+4*i}]" for i in range(10)]

def tag_load():
    a(f"v_mov_b32 v4, 0\nbuffer_load_dwordx2 v[6:7], v4, {DBG}, 0 offen sc1")
def tag_check():
    l0, l1 = a.new("Ltag"), a.new("Ltagd")
    a(f"s_mov_b32 s72, {SPIN}")
    a.label(l0)
    a(f"""v_readfirstlane_b32 s73, v6
    s_cmp_lg_u32 s73, 0
    s_cbranch_scc1 {l1}
    s_sub_u32 s72, s72, 1
    s_cmp_eq_u32 s72, 0
    s_cbranch_scc1 {l1}
    v_mov_b32 v4, 0
    buffer_load_dwordx2 v[6:7], v4, {DBG}, 0 offen sc1
    s_waitcnt vmcnt(0)
    s_branch {l0}""")
    a.label(l1)
def flag_store(soff):
    a(f"""v_mov_b32 v4, 0
    s_mov_b64 exec, 1
    buffer_store_dwordx2 v[6:7], v4, {WS}, {soff} offen sc1
    s_mov_b64 exec, -1""")
def polln(sbase, n, vt=184, preissued=False, nowait=0):
    M = ["s[4:5]", "s[6:7]", "s[8:9]", "s[16:17]"]
    l0, l1, l2 = a.new("Lpn"), a.new("Lpnd"), a.new("Lpnc")
    for i in range(n): a(f"s_mov_b64 {M[i]}, -1")
    a(f"s_mov_b32 s72, {SPIN}")
    if preissued: a(f"s_branch {l2}")
    a.label(l0)
    for i in range(n):
        sk = a.new("Lsk")
        a(f"s_mov_b64 exec, {M[i]}\ns_add_u32 s77, {sbase}, {8192*i}\ns_cbranch_execz {sk}\nbuffer_load_dwordx2 v[{vt+2*i}:{vt+2*i+1}], v14, {WS}, s77 offen sc1")
        a.label(sk)
    a("s_mov_b64 exec, -1")
    a.label(l2)
    a("s_waitcnt vmcnt(0)")
    for i in range(n):
        a(f"v_cmp_ne_u64 vcc, v[{vt+2*i}:{vt+2*i+1}], v[6:7]\ns_and_b64 {M[i]}, {M[i]}, vcc")
    a(f"s_mov_b64 s[10:11], {M[0]}")
    for i in range(1, n): a(f"s_or_b64 s[10:11], s[10:11], {M[i]}")
    a(f"""s_sub_u32 s72, s72, 1
    s_cmp_eq_u32 s72, 0
    s_cbranch_scc1 {l1}
    s_cmp_lg_u64 s[10:11], 0
    s_cbranch_scc1 {l0}""")
    a.label(l1)
def polln_pre(sbase, n, vt=184):
    for i in range(n): a(f"s_add_u32 s77, {sbase}, {8192*i}\nbuffer_load_dwordx2 v[{vt+2*i}:{vt+2*i+1}], v14, {WS}, s77 offen sc1")

def mode_read(vt):
    a(f"v_mov_b32 v{vt}, {L_MODE}\nds_read_b32 v{vt}, v{vt}")
def mode_get(vt):
    a(f"s_waitcnt lgkmcnt(0)\nv_readfirstlane_b32 s3, v{vt}")
def dual(stores):
    lf, ld = a.new("Lfast"), a.new("Ldual")
    a(f"s_cmp_eq_u32 s3, 1\ns_cbranch_scc1 {lf}")
    for x in stores: a(x + (" sc1" if x.startswith("buffer_store") else ""))
    a(f"s_branch {ld}")
    a.label(lf)
    for x in stores: a(x)
    a.label(ld)
W2A, W2B = 192, 136
def w2reg(kk): return W2A + 8*kk if kk < 8 else W2B + 8*(kk-8)
def w2_loads(k0, k1):
    L = []
    for kk in range(k0, k1):
        b = w2reg(kk)
        for t in range(2):
            L.append(f"s_add_u32 s74, s31, {(kk>>1)*4096}\nbuffer_load_dwordx4 v[{b+4*t}:{b+4*t+3}], v5, {WS}, s74 offen offset:{(kk&1)*2048 + t*1024}" + ("" if OPT.get("plain", 1) else " sc1"))
    return L
def w1_pattern(vd, sp):
    a(f"s_lshl_b32 s77, {sp}, 6\nv_add_u32 v{vd}, s77, v1\nv_mul_u32_u24 v4, 4682, v{vd}\nv_lshrrev_b32 v4, 16, v4\nv_lshlrev_b32 v{vd}, 4, v{vd}\ns_movk_i32 s77, 3360\nv_mad_u32_u24 v{vd}, v4, s77, v{vd}")

def kc_build():
    lnf = a.new("Lnofix")
    a(f"""s_lshl_b32 s72, s79, 10
    s_add_u32 s72, s72, s80
    v_add_u32 v40, s72, v5
    ds_write_b128 v40, v[16:19] offset:32
    v_alignbit_b32 v24, v17, v16, 16
    v_alignbit_b32 v25, v18, v17, 16
    v_alignbit_b32 v26, v19, v18, 16
    v_alignbit_b32 v27, v20, v19, 16
    v_mov_b32 v28, v17
    v_mov_b32 v29, v18
    v_mov_b32 v30, v19
    v_mov_b32 v31, v20
    ds_write_b128 v40, v[24:27] offset:{32+KC_STRIDE}
    v_mov_b32 v32, v25
    v_mov_b32 v33, v26
    v_mov_b32 v34, v27
    v_alignbit_b32 v35, v21, v20, 16
    ds_write_b128 v40, v[28:31] offset:{32+2*KC_STRIDE}
    ds_write_b128 v40, v[32:35] offset:{32+3*KC_STRIDE}
    s_cmp_lg_u32 s79, 0
    s_cbranch_scc1 {lnf}
    s_mov_b64 exec, 1
    v_lshlrev_b32 v37, 16, v16
    v_mov_b32 v36, 0
    v_mov_b32 v38, 0
    v_mov_b32 v39, v16
    v_mov_b32 v42, v37
    v_mov_b32 v43, v24
    ds_write_b64 v40, v[36:37] offset:{24+KC_STRIDE}
    ds_write_b64 v40, v[38:39] offset:{24+2*KC_STRIDE}
    ds_write_b64 v40, v[42:43] offset:{24+3*KC_STRIDE}
    s_mov_b64 exec, -1""")
    a.label(lnf)
def ssm_load():
    a(f"buffer_load_dwordx4 v[16:19], v5, {SSM}, s81 offen{NT}\nbuffer_load_dwordx2 v[20:21], v5, {SSM}, s81 offen offset:16{NT}")
def zero_pads():
    lnz = a.new("Lnz")
    a(f"""s_cmp_lg_u32 s79, 0
    s_cbranch_scc1 {lnz}
    v_mov_b32 v44, 0
    v_mov_b32 v45, 0
    v_mov_b32 v46, 0
    v_mov_b32 v47, 0
    s_mov_b32 exec_hi, 0
    v_add_u32 v43, s82, v5
    ds_write_b128 v43, v[44:47]
    s_mov_b64 exec, 0xff
    v_lshrrev_b32 v42, 1, v1
    v_mul_u32_u24 v42, {KC_STRIDE}, v42
    v_and_b32 v4, 1, v1
    v_lshl_add_u32 v42, v4, 4, v42
    v_add_u32 v42, s80, v42
    ds_write_b128 v42, v[44:47]
    v_mov_b32 v42, {L_CNT}
    ds_write_b64 v42, v[44:45]
    s_mov_b64 exec, -1""")
    a.label(lnz)

a.raw(f".globl {NAME}\n.p2align 8\n.type {NAME},@function\n{NAME}:")
a("""s_cmp_ge_u32 s2, 256
s_cbranch_scc1 L_end
s_load_dwordx16 s[4:19], s[0:1], 0
s_load_dwordx8 s[20:27], s[0:1], 64""")
if STAMP: a("v_mov_b32 v15, 0\ns_memrealtime s[96:97]")
if OPT.get("dbg"): a("s_memrealtime s[96:97]")
a(f"""v_lshrrev_b32 v4, 6, v0
v_and_b32 v1, 63, v0
v_readfirstlane_b32 s28, v4
v_and_b32 v2, 15, v0
v_bfe_u32 v3, v0, 4, 2
v_lshlrev_b32 v5, 4, v1
v_lshlrev_b32 v14, 7, v1
s_and_b32 s29, s2, 7
s_lshr_b32 s30, s2, 3
v_and_b32 v10, 31, v0
v_bfe_u32 v11, v0, 5, 3
s_lshl_b32 s72, s30, 16
s_lshl_b32 s73, s29, 7
s_add_u32 s72, s72, s73
v_lshlrev_b32 v12, 13, v11
v_lshl_add_u32 v12, v10, 2, v12
v_add_u32 v12, s72, v12
s_movk_i32 s74, 4096
s_lshr_b32 s78, s28, 2
s_and_b32 s79, s28, 3
s_mul_i32 s80, s78, {L_KC[1]-L_KC[0]}
s_add_u32 s80, s80, {L_KC[0]}
s_mul_i32 s82, s78, {L_U[1]-L_U[0]}
s_add_u32 s82, s82, {L_U[0]}
s_lshl_b32 s83, s29, 5
s_add_u32 s83, s83, s30
s_lshl_b32 s81, s83, 1
s_add_u32 s81, s81, s78
s_lshl_b32 s81, s81, 12
s_lshl_b32 s72, s79, 10
s_add_u32 s81, s81, s72
s_cmp_ge_u32 s28, 4
s_cbranch_scc1 L_aux""")
LD = "" if OPT.get("plain", 1) else " sc1"
a(f"""v_subrev_u32 v13, 3072, v12
v_mov_b32 v4, {OOB}
v_cmp_gt_i32 vcc, 0, v13
s_lshl_b32 s75, s29, 9
v_lshlrev_b32 v24, 4, v10
v_cndmask_b32 v13, v13, v4, vcc
s_waitcnt lgkmcnt(0)""")
srd(36, 6, 2097152); srd(64, 24, 256)
lnt = a.new("Lnotag")
a(f"""s_or_b32 s72, s2, s28
s_cmp_lg_u32 s72, 0
s_cbranch_scc1 {lnt}
s_memrealtime s[72:73]
s_waitcnt lgkmcnt(0)
s_or_b32 s72, s72, 1
v_mov_b32 v6, s72
v_mov_b32 v7, s73
v_mov_b32 v4, 0
s_mov_b64 exec, 1
buffer_store_dwordx2 v[6:7], v4, {DBG}, 0 offen sc1
s_mov_b64 exec, -1""")
a.label(lnt)
KR, VR = 48, 60
for r in range(3): a(f"buffer_load_dword v{KR+r}, v13, {K}, 0 offen offset:{1024*r}{NT}")
for r in range(8): a(f"buffer_load_dword v{KR+3+r}, v12, {K}, {'0' if r<4 else 's74'} offen offset:{1024*(r%4)}{NT}")
srd(44, 10, 4096)
a(f"buffer_load_dwordx4 v[76:79], v24, {SK}, s75 offen")
srd(40, 8, 2097152)
for r in range(8): a(f"buffer_load_dword v{VR+r}, v12, {V}, {'0' if r<4 else 's74'} offen offset:{1024*(r%4)}{NT}")
srd(48, 12, 2097152); srd(68, 26, WS_BYTES)
ssm_load()
srd(52, 18, 1835008); srd(60, 22, 2097152); srd(56, 20, 1835008)
zero_pads()
a(f"""v_and_b32 v4, 7, v10
v_xor_b32 v4, v4, v11
v_lshlrev_b32 v22, 8, v10
v_lshl_add_u32 v22, v4, 4, v22
v_add_u32 v22, {L_RED}, v22
v_lshrrev_b32 v23, 3, v1
v_lshrrev_b32 v4, 4, v1
v_and_b32 v13, 7, v1
v_xor_b32 v4, v4, v13
v_lshlrev_b32 v4, 4, v4
v_lshl_add_u32 v4, v23, 7, v4
v_lshlrev_b32 v13, 4, v13
v_lshl_add_u32 v13, v23, 12, v13
s_lshl_b32 s72, s28, 11
s_add_u32 s72, s72, {L_RED}
v_add_u32 v23, s72, v4
v_xor_b32 v12, 64, v23
s_lshl_b32 s72, s29, 18
s_lshl_b32 s73, s30, 7
s_add_u32 s90, s72, s73
s_lshl_b32 s72, s28, 16
s_add_u32 s90, s90, s72
s_add_u32 s90, s90, {WS_KVT}
s_add_u32 s91, s90, 32768
s_getreg_b32 s95, hwreg(HW_REG_XCC_ID)
s_and_b32 s95, s95, 0xff""")
mark(1)
a("s_waitcnt vmcnt(10)")
tag_load()
WPp = 80
for j in range(4):
    s0, s1 = 76 + (j >> 1), 78 + (j >> 1)
    if j & 1: a(f"v_and_b32 v{WPp+2*j}, 0xffff0000, v{s0}\nv_and_b32 v{WPp+1+2*j}, 0xffff0000, v{s1}")
    else:     a(f"v_lshlrev_b32 v{WPp+2*j}, 16, v{s0}\nv_lshlrev_b32 v{WPp+1+2*j}, 16, v{s1}")
KU = 88
for r in range(11): a(f"v_lshlrev_b32 v{KU+2*r}, 16, v{KR+r}\nv_and_b32 v{KU+2*r+1}, 0xffff0000, v{KR+r}")
O = 112
for st in range(4):
    for r in range(8):
        o = O + 2*r; ku = KU + 2*(r + st); w = WPp + 2*(3 - st)
        if st == 0: a(f"v_pk_mul_f32 v[{o}:{o+1}], v[{ku}:{ku+1}], v[{w}:{w+1}]")
        else: a(f"v_pk_fma_f32 v[{o}:{o+1}], v[{ku}:{ku+1}], v[{w}:{w+1}], v[{o}:{o+1}]")
a("s_waitcnt vmcnt(3)")
for r in range(8):
    a(f"v_lshlrev_b32 v{KU+2*r}, 16, v{VR+r}\nv_and_b32 v{KU+2*r+1}, 0xffff0000, v{VR+r}")
for r in range(8):
    o = O + 2*r
    a(f"v_pk_mul_f32 v[{o}:{o+1}], v[{o}:{o+1}], v[{KU+2*r}:{KU+2*r+1}]")
for c in range(2):
    for q in range(4):
        a(f"v_cvt_pk_bf16_f32 v{128+4*c+q}, v{O+2*(7-2*q)+c}, v{O+2*(6-2*q)+c}")
a(f"""ds_write_b128 v22, v[128:131]
ds_write_b128 v22, v[132:135] offset:128
s_waitcnt lgkmcnt(0)
s_barrier
ds_read_b128 v[128:131], v23
ds_read_b128 v[132:135], v12 offset:1024
v_mov_b32 v8, s95
v_mov_b32 v9, 0
s_waitcnt lgkmcnt(1)
buffer_store_dwordx4 v[128:131], v13, {WS}, s90 offen sc1
s_waitcnt lgkmcnt(0)
buffer_store_dwordx4 v[132:135], v13, {WS}, s91 offen sc1
s_waitcnt vmcnt(3)""")
kc_build()
a(f"""s_lshl_b32 s89, s83, 7
s_add_u32 s89, s89, {WS_F1}
v_mov_b32 v24, {L_MODE}
v_mov_b32 v25, 1
s_waitcnt vmcnt(0)
s_mov_b64 exec, 1
ds_add_rtn_u32 v25, v24, v25
s_mov_b64 exec, -1""")
tag_check()
lf1 = a.new("Lnf1")
a(f"""s_waitcnt lgkmcnt(0)
v_readfirstlane_b32 s72, v25
s_cmp_lg_u32 s72, 3
s_cbranch_scc1 {lf1}""")
flag_store("s89")
a.label(lf1)
mark(2)
a(f"s_cmp_lg_u32 s28, 0\ns_cbranch_scc1 L_bg")
lp, lpd = a.new("Lf1"), a.new("Lf1d")
a(f"""s_lshl_b32 s73, s29, 12
s_add_u32 s73, s73, {WS_F1}
s_mov_b32 s72, {SPIN}
s_mov_b32 exec_hi, 0
{lp}:
buffer_load_dwordx2 v[184:185], v14, {WS}, s73 offen sc1
s_waitcnt vmcnt(0)
v_cmp_ne_u64 vcc, v[184:185], v[6:7]
s_sub_u32 s72, s72, 1
s_cmp_eq_u32 s72, 0
s_cbranch_scc1 {lpd}
s_and_b64 exec, exec, vcc
s_cbranch_scc1 {lp}
{lpd}:
s_mov_b64 exec, -1""")
mark(3)
a(f"s_lshl_b32 s73, s83, 13\ns_add_u32 s73, s73, {WS_KVT}")
for c in range(2):
    a(f"s_mov_b32 m0, {L_U[c]+512}\ns_nop 0")
    for q in range(4): a(f"buffer_load_dwordx4 v5, {WS}, s73 offen offset:{1024*q}{LD} lds")
    if c == 0: a("s_add_u32 s73, s73, 4096")
if OPT.get("fx0", 0):
    a(f"s_mov_b32 s73, {WS_FX}")
    polln("s73", 4, nowait=8)
    a(f"s_lshl_b32 s73, s83, 13\ns_add_u32 s73, s73, {WS_XD}\ns_mov_b32 m0, {L_XS}\ns_nop 0")
    for q in range(4): a(f"buffer_load_dwordx4 v5, {WS}, s73 offen offset:{1024*q}{LD} lds")
    a(f"s_add_u32 s73, s73, 4096\ns_mov_b32 m0, {L_XS+4096}\ns_nop 0")
    for q in range(4): a(f"buffer_load_dwordx4 v5, {WS}, s73 offen offset:{1024*q}{LD} lds")
    a(f"s_mov_b32 s73, {WS_ST}\ns_mov_b32 m0, {L_ST}\ns_nop 0")
    for q in range(4): a(f"buffer_load_dwordx4 v5, {WS}, s73 offen offset:{1024*q}{LD} lds")
    a(f"s_mov_b32 s73, {WS_ST+4096}\ns_mov_b32 m0, {L_ST+4096}\ns_nop 0")
    for q in range(4): a(f"buffer_load_dwordx4 v5, {WS}, s73 offen offset:{1024*q}{LD} lds")

    a("s_waitcnt vmcnt(16)\ns_branch L_p0_join")
else:
    a("s_waitcnt vmcnt(0)\ns_branch L_p0_join")
a.label("L_bg")
if OPT.get("pke", 0):
    a("s_cmp_eq_u32 s28, 3\ns_cbranch_scc1 L_p0_join")
    PKL, PKO = 192, 216
    a(f"""v_lshrrev_b32 v208, 5, v1
    v_and_b32 v209, 31, v1
    v_lshlrev_b32 v212, 12, v208
    v_lshl_add_u32 v212, v209, 2, v212
    v_lshrrev_b32 v213, 4, v209
    v_mul_u32_u24 v213, {56*2048}, v213
    v_and_b32 v209, 15, v209
    v_lshl_add_u32 v213, v209, 4, v213
    v_lshl_add_u32 v213, v208, 8, v213
    v_mov_b32 v214, {OOB}
    v_mov_b32 v215, {OOB}
    s_mov_b32 s95, 0
    """)
    a("s_mul_i32 s89, s2, 3\ns_add_u32 s89, s89, s28\ns_sub_u32 s89, s89, 1")
    lx = a.new("Lpkx")
    for u in range(2):
        if u == 1:
            a(f"s_add_u32 s89, s89, 1\ns_add_u32 s72, s2, 768\ns_cmp_eq_u32 s28, 1\ns_cselect_b32 s89, s72, s89\ns_cmp_ge_u32 s89, 896\ns_cbranch_scc1 {lx}\ns_mov_b32 s95, 1")
        a(f"""s_mul_i32 s73, s89, 2341
        s_lshr_b32 s73, s73, 18
        s_mul_i32 s72, s73, 112
        s_sub_u32 s72, s89, s72
        s_and_b32 s77, s72, 1
        s_lshr_b32 s72, s72, 1
        s_lshl_b32 s90, s72, 15
        s_lshl_b32 s91, s73, 7
        s_add_u32 s90, s90, s91
        s_lshl_b32 s91, s77, 13
        s_add_u32 s90, s90, s91""")
        for i in range(8):
            if i == 4: a("s_add_u32 s90, s90, 16384")
            a(f"buffer_load_dword v{PKL+8*u+i}, v212, {W2}, s90 offen offset:{(i&3)*1024}{NT}")
        a(f"""s_mul_i32 s73, s73, 112
        s_add_u32 s73, s73, s72
        s_lshl_b32 s73, s73, 11
        s_lshl_b32 s77, s77, 9
        s_add_u32 s73, s73, s77
        v_add_u32 v{214+u}, s73, v213""")
    a.label(lx)
    a(f"""s_mov_b32 s75, 0x05040100
    s_mov_b32 s76, 0x07060302
    s_mov_b32 s90, {WS_W2P}
    s_mov_b32 s91, {WS_W2P+1024}
    s_waitcnt vmcnt(0)""")
    for u in range(2):
        if u == 1: a(f"s_cmp_eq_u32 s95, 0\ns_cbranch_scc1 L_p0_join")
        for c in range(2):
            for q in range(4):
                a(f"v_perm_b32 v{PKO+8*u+4*c+q}, v{PKL+8*u+2*q+1}, v{PKL+8*u+2*q}, s{75+c}")
        a(f"buffer_store_dwordx4 v[{PKO+8*u}:{PKO+3+8*u}], v{214+u}, {WS}, s90 offen sc1")
        a(f"buffer_store_dwordx4 v[{PKO+4+8*u}:{PKO+7+8*u}], v{214+u}, {WS}, s91 offen sc1")

a("s_branch L_p0_join")
a.label("L_aux")
a(f"""v_lshrrev_b32 v24, 3, v1
v_lshlrev_b32 v24, 10, v24
v_and_b32 v4, 7, v1
v_lshl_add_u32 v24, v4, 4, v24
s_lshl_b32 s72, s2, 13
s_waitcnt lgkmcnt(0)""")
srd(32, 4, 2097152)
XR, XS = 48, 64
for r in range(8): a(f"buffer_load_dword v{XR+r}, v12, {X}, {'0' if r<4 else 's74'} offen offset:{1024*(r%4)}{NT}")
srd(48, 12, 2097152)
ssm_load()
ls = a.new("Lnst")
a(f"s_cmp_lg_u32 s28, 4\ns_cbranch_scc1 {ls}")
for i in range(8): a(f"buffer_load_dwordx4 v[{XS+4*i}:{XS+4*i+3}], v24, {X}, s72 offen offset:{128*i}{NT}")
a.label(ls)
srd(56, 20, 1835008); srd(52, 18, 1835008); srd(64, 24, 256); srd(68, 26, WS_BYTES); srd(60, 22, 2097152)
zero_pads()
XSTG = L_RED + 8192
a(f"""v_and_b32 v4, 7, v10
v_lshlrev_b32 v13, 1, v11
v_xor_b32 v4, v4, v13
v_lshlrev_b32 v22, 8, v10
v_lshl_add_u32 v22, v4, 4, v22
v_add_u32 v22, {XSTG}, v22
v_xor_b32 v12, 16, v22
v_lshrrev_b32 v23, 4, v1
v_and_b32 v13, 15, v1
v_xor_b32 v4, v23, v13
v_lshlrev_b32 v4, 4, v4
v_lshl_add_u32 v4, v23, 8, v4
v_lshlrev_b32 v13, 4, v13
v_lshl_add_u32 v13, v23, 13, v13
s_lshl_b32 s72, s79, 11
s_add_u32 s72, s72, {XSTG}
v_add_u32 v23, s72, v4
v_xor_b32 v11, 64, v23
s_lshl_b32 s72, s29, 18
s_lshl_b32 s73, s30, 8
s_add_u32 s90, s72, s73
s_lshl_b32 s72, s79, 16
s_add_u32 s90, s90, s72
s_add_u32 s90, s90, {WS_XD}
s_add_u32 s91, s90, 32768
s_mov_b32 s75, 0x3f803f80""")
mark(1)
a(f"""s_cmp_eq_u32 s28, 4
s_cbranch_scc1 L_w4a
s_waitcnt vmcnt(2)
s_branch L_w4b
L_w4a:
s_waitcnt vmcnt(10)
L_w4b:""")
tag_load()
a(f"""ds_write_b128 v22, v[{XR}:{XR+3}]
ds_write_b128 v12, v[{XR+4}:{XR+7}]
s_waitcnt lgkmcnt(0)
s_barrier
ds_read_b128 v[128:131], v23
ds_read_b128 v[132:135], v11 offset:1024
s_waitcnt lgkmcnt(1)
buffer_store_dwordx4 v[128:131], v13, {WS}, s90 offen sc1
s_waitcnt lgkmcnt(0)
buffer_store_dwordx4 v[132:135], v13, {WS}, s91 offen sc1
s_waitcnt vmcnt(3)
s_cmp_lg_u32 s28, 4
s_cbranch_scc1 L_aux_pub""")
for i in range(4): a(f"v_mov_b32 v{100+i}, 0")
for i in range(32): a(f"v_dot2_f32_bf16 v{100+(i&3)}, v{XS+i}, s75, v{100+(i&3)}")
a("s_nop 2\nv_add_f32 v100, v100, v101\nv_add_f32 v102, v102, v103\nv_add_f32 v100, v100, v102")
def red8(v):
    for m in ("quad_perm:[1,0,3,2]", "quad_perm:[2,3,0,1]", "row_half_mirror"):
        a(f"s_nop 1\nv_add_f32_dpp v{v}, v{v}, v{v} {m} row_mask:0xf bank_mask:0xf")
red8(100)
a("v_mul_f32 v100, 0x3b000000, v100\nv_mov_b32 v101, v100")
for i in range(4): a(f"v_mov_b32 v{102+i}, 0")
for i in range(32):
    t = 106 + 2*(i & 3); ac = 102 + 2*(i & 1)
    a(f"v_lshlrev_b32 v{t}, 16, v{XS+i}\nv_and_b32 v{t+1}, 0xffff0000, v{XS+i}")
    a(f"v_pk_add_f32 v[{t}:{t+1}], v[{t}:{t+1}], v[100:101] neg_lo:[0,1] neg_hi:[0,1]")
    a(f"v_pk_fma_f32 v[{ac}:{ac+1}], v[{t}:{t+1}], v[{t}:{t+1}], v[{ac}:{ac+1}]")
a("v_add_f32 v102, v102, v103\nv_add_f32 v104, v104, v105\nv_add_f32 v102, v102, v104")
red8(102)
a(f"""v_mul_f32 v102, 0x3b000000, v102
v_cvt_pk_bf16_f32 v104, v100, v102
v_and_b32 v105, 0xffff0000, v104
v_add_f32 v105, 0x3727c5ac, v105
v_cvt_pk_bf16_f32 v105, v105, v105
v_and_b32 v105, 0xffff0000, v105
v_sqrt_f32 v105, v105
s_nop 0
v_cvt_pk_bf16_f32 v105, v104, v105
v_and_b32 v104, 0xffff, v104
v_and_b32 v105, 0xffff0000, v105
v_or_b32 v104, v104, v105
v_lshrrev_b32 v24, 3, v1
v_lshlrev_b32 v24, 2, v24
s_lshl_b32 s72, s2, 5
s_add_u32 s72, s72, {WS_ST}
s_mov_b32 exec_lo, 0x01010101
s_mov_b32 exec_hi, 0x01010101
buffer_store_dword v104, v24, {WS}, s72 offen sc1
s_mov_b64 exec, -1""")
a.label("L_aux_pub")
kc_build()
a("s_waitcnt vmcnt(0)")
tag_check()
lnf = a.new("Lnfx")
a(f"""v_mov_b32 v24, {L_CNT}
v_mov_b32 v25, 1
s_mov_b64 exec, 1
ds_add_rtn_u32 v25, v24, v25
s_mov_b64 exec, -1
s_waitcnt lgkmcnt(0)
v_readfirstlane_b32 s72, v25
s_cmp_lg_u32 s72, 3
s_cbranch_scc1 {lnf}
s_lshl_b32 s73, s2, 7
s_add_u32 s73, s73, {WS_FX}""")
flag_store("s73")
a.label(lnf)
mark(2)

a.label("L_p0_join")
ACC = 16; AF = [48, 112]; BF = [80, 144]
a(f"""s_lshr_b32 s84, s30, 3
s_lshr_b32 s72, s29, 1
s_lshl_b32 s72, s72, 2
s_add_u32 s84, s84, s72
s_and_b32 s85, s30, 7
s_and_b32 s72, s29, 1
s_lshl_b32 s72, s72, 3
s_add_u32 s85, s85, s72
v_mov_b32 v214, {OOB}
v_mov_b32 v215, {OOB}
v_mov_b32 v234, {OOB}
s_mul_i32 s88, s85, 224
s_and_b32 s94, s85, 1
s_lshr_b32 s86, s28, 1
s_and_b32 s87, s28, 1
s_lshr_b32 s72, s85, 1
s_lshl_b32 s72, s72, 1
s_add_u32 s72, s72, s87
s_mul_i32 s31, s72, 56
s_mul_i32 s72, s86, 14
s_add_u32 s31, s31, s72
s_lshl_b32 s31, s31, 11
s_add_u32 s31, s31, {WS_W2P}
v_add_u32 v10, 1, v2
v_and_b32 v11, 3, v10
v_mul_u32_u24 v11, {KC_STRIDE}, v11
v_lshrrev_b32 v10, 2, v10
v_lshl_add_u32 v10, v10, 3, v11
v_lshlrev_b32 v11, 4, v3
v_sub_u32 v10, v10, v11
s_lshl_b32 s72, s79, 7
s_add_u32 s73, s80, s72
s_add_u32 s73, s73, 48
v_add_u32 v10, s73, v10
v_lshl_add_u32 v11, v2, 5, v11
s_add_u32 s73, s82, {480-64}
s_sub_u32 s73, s73, s72
v_add_u32 v11, s73, v11
v_lshlrev_b32 v13, 6, v2
v_lshl_add_u32 v13, v3, 4, v13
s_lshl_b32 s72, s28, 10
s_add_u32 s72, s72, {L_XS}
v_add_u32 v13, s72, v13
s_lshl_b32 s72, s83, 2
s_add_u32 s14, s14, s72
s_addc_u32 s15, s15, 0
s_load_dword s93, s[14:15], 0""")
a("s_waitcnt lgkmcnt(0)")
for i in range(32): a(f"v_mov_b32 v{ACC+i}, 0")
if STOP <= 0: a("s_branch L_fin")
a("s_barrier")
mark(4)
a("s_cmp_gt_u32 s28, 3\ns_cbranch_scc1 L_conv_t\ns_cmp_eq_u32 s28, 3\ns_cbranch_scc1 L_conv_w3")
if not OPT.get("pke", 0):
    a("s_cmp_eq_u32 s28, 0\ns_cbranch_scc1 L_conv_go")
    PKL, PKO = 192, 216
    a(f"""v_lshrrev_b32 v208, 5, v1
    v_and_b32 v209, 31, v1
    v_lshlrev_b32 v212, 12, v208
    v_lshl_add_u32 v212, v209, 2, v212
    v_lshrrev_b32 v213, 4, v209
    v_mul_u32_u24 v213, {56*2048}, v213
    v_and_b32 v209, 15, v209
    v_lshl_add_u32 v213, v209, 4, v213
    v_lshl_add_u32 v213, v208, 8, v213
    v_mov_b32 v214, {OOB}
    v_mov_b32 v215, {OOB}
    s_mov_b32 s95, 0
    """)
    a("s_mul_i32 s89, s2, 3\ns_add_u32 s89, s89, s28\ns_sub_u32 s89, s89, 1")
    lx = a.new("Lpkx")
    for u in range(2):
        if u == 1:
            a(f"s_add_u32 s89, s89, 1\ns_add_u32 s72, s2, 768\ns_cmp_eq_u32 s28, 1\ns_cselect_b32 s89, s72, s89\ns_cmp_ge_u32 s89, 896\ns_cbranch_scc1 {lx}\ns_mov_b32 s95, 1")
        a(f"""s_mul_i32 s73, s89, 2341
        s_lshr_b32 s73, s73, 18
        s_mul_i32 s72, s73, 112
        s_sub_u32 s72, s89, s72
        s_and_b32 s77, s72, 1
        s_lshr_b32 s72, s72, 1
        s_lshl_b32 s90, s72, 15
        s_lshl_b32 s91, s73, 7
        s_add_u32 s90, s90, s91
        s_lshl_b32 s91, s77, 13
        s_add_u32 s90, s90, s91""")
        for i in range(8):
            if i == 4: a("s_add_u32 s90, s90, 16384")
            a(f"buffer_load_dword v{PKL+8*u+i}, v212, {W2}, s90 offen offset:{(i&3)*1024}{NT}")
        a(f"""s_mul_i32 s73, s73, 112
        s_add_u32 s73, s73, s72
        s_lshl_b32 s73, s73, 11
        s_lshl_b32 s77, s77, 9
        s_add_u32 s73, s73, s77
        v_add_u32 v{214+u}, s73, v213""")
    a.label(lx)

a("s_branch L_conv_go")
a.label("L_conv_w3")
if not OPT.get("fx0", 0):
    a(f"s_mov_b32 s73, {WS_FX}")
    polln("s73", 4)
    a(f"s_lshl_b32 s73, s83, 13\ns_add_u32 s73, s73, {WS_XD}\ns_mov_b32 m0, {L_XS}\ns_nop 0")
    for q in range(4): a(f"buffer_load_dwordx4 v5, {WS}, s73 offen offset:{1024*q}{LD} lds")
    a(f"s_add_u32 s73, s73, 4096\ns_mov_b32 m0, {L_XS+4096}\ns_nop 0")
    for q in range(4): a(f"buffer_load_dwordx4 v5, {WS}, s73 offen offset:{1024*q}{LD} lds")
    a(f"s_mov_b32 s73, {WS_ST}\ns_mov_b32 m0, {L_ST}\ns_nop 0")
    for q in range(4): a(f"buffer_load_dwordx4 v5, {WS}, s73 offen offset:{1024*q}{LD} lds")
    a(f"s_mov_b32 s73, {WS_ST+4096}\ns_mov_b32 m0, {L_ST+4096}\ns_nop 0")
    for q in range(4): a(f"buffer_load_dwordx4 v5, {WS}, s73 offen offset:{1024*q}{LD} lds")

a("s_branch L_conv_go")
a.label("L_conv_t")
a(f"""s_mul_i32 s89, s30, 57344
s_mul_i32 s72, s79, 14336
s_add_u32 s89, s89, s72
s_and_b32 s72, s29, 1
s_mul_i32 s72, s72, 1792
s_add_u32 s89, s89, s72
v_mul_u32_u24 v234, 3584, v3
v_min_u32 v235, 13, v2
v_lshl_add_u32 v234, v235, 7, v234
""")
a.label("L_conv_go")
def reads(ph, T):
    return [f"ds_read_b64 v[{AF[ph]+4*T}:{AF[ph]+4*T+1}], v10 offset:{512*T+64*ph}",
            f"ds_read_b64 v[{AF[ph]+4*T+2}:{AF[ph]+4*T+3}], v10 offset:{512*T+64*ph+8}",
            f"ds_read_b128 v[{BF[ph]+4*T}:{BF[ph]+4*T+3}], v11 offset:{512*T+64*(1-ph)}"]
allreads = [r for ph in range(2) for T in range(8) for r in reads(ph, T)]
st = {"i": 0}
def issue(k):
    for _ in range(k):
        if st["i"] < len(allreads): a(allreads[st["i"]]); st["i"] += 1
issue(15)
for ph in range(2):
    for T in range(8):
        need = (ph * 8 + T + 1) * 3
        TP = {(0, 0): (4, 0), (0, 5): (5, 0), (1, 0): (6, 0), (1, 5): (7, 0)}
        if (ph, T) in TP:
            w_, r_ = TP[(ph, T)]; lk = a.new("Ltk")
            a(f"s_cmp_lg_u32 s28, {w_}\ns_cbranch_scc1 {lk}\ns_add_u32 s72, s89, {8192*r_}\nbuffer_load_dword v{232+r_}, v234, {W1}, s72 offen\n{lk}:")
        a(f"s_waitcnt lgkmcnt({st['i'] - need})")
        for i in range(T + 1):
            a(f"v_mfma_f32_16x16x32_bf16 v[{ACC+4*T}:{ACC+4*T+3}], v[{AF[ph]+4*i}:{AF[ph]+4*i+3}], v[{BF[ph]+4*(T-i)}:{BF[ph]+4*(T-i)+3}], v[{ACC+4*T}:{ACC+4*T+3}]")
            if i < 3 and st["i"] - need < 15: issue(1)
if not OPT.get("pke", 0):
    a("s_sub_u32 s72, s28, 1\ns_cmp_gt_u32 s72, 1\ns_cbranch_scc1 L_conv_red")
    a(f"""s_mov_b32 s75, 0x05040100
    s_mov_b32 s76, 0x07060302
    s_mov_b32 s90, {WS_W2P}
    s_mov_b32 s91, {WS_W2P+1024}
    s_waitcnt vmcnt(0)""")
    for u in range(2):
        if u == 1: a(f"s_cmp_eq_u32 s95, 0\ns_cbranch_scc1 L_conv_red")
        for c in range(2):
            for q in range(4):
                a(f"v_perm_b32 v{PKO+8*u+4*c+q}, v{PKL+8*u+2*q+1}, v{PKL+8*u+2*q}, s{75+c}")
        a(f"buffer_store_dwordx4 v[{PKO+8*u}:{PKO+3+8*u}], v{214+u}, {WS}, s90 offen sc1")
        a(f"buffer_store_dwordx4 v[{PKO+4+8*u}:{PKO+7+8*u}], v{214+u}, {WS}, s91 offen sc1")

a.label("L_conv_red")
mark(5)

a(f"""s_lshl_b32 s72, s28, 13
s_add_u32 s72, s72, {L_RED}
v_add_u32 v184, s72, v5""")
for T in range(8):
    if T == 7: a("s_nop 5")
    a(f"ds_write_b128 v184, v[{ACC+4*T}:{ACC+4*T+3}] offset:{1024*T}")
a(f"""s_lshl_b32 s72, s28, 10
s_add_u32 s72, s72, {L_RED}
v_add_u32 v186, s72, v5
v_lshlrev_b32 v185, 5, v2
v_lshrrev_b32 v4, 1, v3
v_lshl_add_u32 v185, v4, 4, v185
v_and_b32 v4, 1, v3
v_lshlrev_b32 v4, 3, v4
v_sub_u32 v185, v185, v4
s_lshl_b32 s72, s28, 9
s_add_u32 s72, s72, {L_U[0]+512+8}
v_add_u32 v185, s72, v185
ds_read_b64 v[176:177], v185
ds_read_b64 v[178:179], v185 offset:{L_U[1]-L_U[0]}
s_lshl_b32 s76, s93, 16
s_and_b32 s77, s93, 0xffff0000
v_lshrrev_b32 v187, 1, v2
v_lshlrev_b32 v187, 15, v187
v_lshl_add_u32 v187, v4, 3, v187
v_lshrrev_b32 v4, 1, v3
v_lshl_add_u32 v187, v4, 4, v187
v_and_b32 v4, 1, v2
v_lshl_add_u32 v187, v4, 5, v187
s_lshl_b32 s90, s83, 7
s_lshl_b32 s73, s28, 18
s_add_u32 s90, s90, s73
s_add_u32 s90, s90, {WS_HT}
s_lshl_b32 s73, s28, 8
s_add_u32 s73, s73, s83
s_lshl_b32 s91, s73, 7
s_add_u32 s91, s91, {WS_F2}
s_cmp_gt_u32 s28, 3
s_cbranch_scc1 L_nvw
s_waitcnt vmcnt(0)
L_nvw:
s_waitcnt lgkmcnt(0)
s_barrier""")
mark(6)
P = 48; KV, XP, LN, Y, STT = 120, 128, 136, 144, 152
a(f"ds_read_b128 v[116:119], v13 offset:{L_ST-L_XS}\nds_read_b128 v[112:115], v13")
for w in range(8): a(f"ds_read_b128 v[{P+4*w}:{P+4*w+3}], v186 offset:{8192*w}")
for c in range(2):
    d0, d1 = 176 + 2*c, 177 + 2*c
    a(f"v_lshlrev_b32 v{KV+6+c}, 16, v{d0}\nv_and_b32 v{KV+4+c}, 0xffff0000, v{d0}\nv_lshlrev_b32 v{KV+2+c}, 16, v{d1}\nv_and_b32 v{KV+c}, 0xffff0000, v{d1}")
a("s_waitcnt lgkmcnt(8)")
for r in range(4): a(f"v_and_b32 v{STT+r}, 0xffff0000, v{116+r}")
for r in range(4): a(f"v_rcp_f32 v{STT+r}, v{STT+r}")
for r in range(4): a(f"v_lshlrev_b32 v{STT+4+r}, 16, v{116+r}\nv_lshlrev_b32 v{XP+2*r}, 16, v{112+r}\nv_and_b32 v{XP+1+2*r}, 0xffff0000, v{112+r}")
for r in range(4):
    for c in range(2): a(f"v_sub_f32 v{LN+2*r+c}, v{XP+2*r+c}, v{STT+4+r}")
for r in range(4):
    for c in range(2): a(f"v_mul_f32 v{LN+2*r+c}, v{LN+2*r+c}, v{STT+r}")
a("s_waitcnt lgkmcnt(0)")
for c in range(2):
    b = P + 16*c
    for h in range(2):
        a(f"v_pk_add_f32 v[{b+2*h}:{b+2*h+1}], v[{b+2*h}:{b+2*h+1}], v[{b+4+2*h}:{b+5+2*h}]")
        a(f"v_pk_add_f32 v[{b+8+2*h}:{b+9+2*h}], v[{b+8+2*h}:{b+9+2*h}], v[{b+12+2*h}:{b+13+2*h}]")
    for r in range(4): a(f"v_add_f32 v{Y+2*r+c}, v{b+r}, v{b+8+r}")
for r in range(4): a(f"v_pk_fma_f32 v[{Y+2*r}:{Y+1+2*r}], v[{KV+2*r}:{KV+1+2*r}], s[76:77], v[{Y+2*r}:{Y+1+2*r}]")
for r in range(4): a(f"v_pk_fma_f32 v[{Y+2*r}:{Y+1+2*r}], v[{LN+2*r}:{LN+1+2*r}], v[{Y+2*r}:{Y+1+2*r}], v[{XP+2*r}:{XP+1+2*r}]")
a(f"""v_cvt_pk_bf16_f32 v160, v{Y}, v{Y+2}
v_cvt_pk_bf16_f32 v161, v{Y+4}, v{Y+6}
v_cvt_pk_bf16_f32 v162, v{Y+1}, v{Y+3}
v_cvt_pk_bf16_f32 v163, v{Y+5}, v{Y+7}
s_nop 1
v_permlane16_swap_b32 v160, v162
v_permlane16_swap_b32 v161, v163
s_nop 1
buffer_store_dwordx4 v[160:163], v187, {WS}, s90 offen sc1
s_waitcnt vmcnt(0)""")
flag_store("s91")
mark(7)
if STOP <= 1: a("s_branch L_fin")
a("s_barrier")
lw7, lw7d = a.new("Lw7"), a.new("Lw7d")
a(f"s_cmp_eq_u32 s28, 7\ns_cbranch_scc1 {lw7}")
KPRE = OPT.get("kpre", 8)
w1_pattern(133, "s28")
a("s_lshl_b32 s95, s28, 10")
def w1dma(ks): return f"s_add_u32 m0, s95, {ks*7168}\ns_add_u32 s72, s88, {ks*114688}\nbuffer_load_dwordx4 v133, {W1}, s72 offen lds"
for ks in range(KPRE): a(w1dma(ks))
a(f"s_branch {lw7d}")
a.label(lw7)
a(f"s_lshr_b32 s73, s84, 1\ns_lshl_b32 s73, s73, 15\ns_add_u32 s73, s73, {WS_F2}")
polln("s73", 4)
a.label(lw7d)
GA, ONE, CSH = 16, 56, 60
HFR = [64, 72]
WF = [80, 96]
a(f"""v_lshrrev_b32 v8, 1, v3
v_lshlrev_b32 v8, 4, v8
v_and_b32 v4, 1, v3
v_lshl_add_u32 v8, v4, 2, v8
v_lshrrev_b32 v4, 2, v2
v_add_u32 v8, v8, v4
v_and_b32 v4, 3, v2
v_lshlrev_b32 v4, 3, v4
v_and_b32 v9, 7, v8
v_lshl_add_u32 v9, v9, 5, v4
v_lshrrev_b32 v190, 1, v3
v_lshl_add_u32 v9, v190, 10, v9
v_lshrrev_b32 v190, 5, v1
v_lshlrev_b32 v190, 9, v190
v_bfe_u32 v191, v1, 1, 3
v_lshl_add_u32 v190, v191, 6, v190
v_bfe_u32 v191, v1, 4, 1
v_lshl_add_u32 v190, v191, 5, v190
v_and_b32 v191, 1, v1
v_lshl_add_u32 v190, v191, 4, v190
v_mul_u32_u24 v8, 224, v8
v_add_u32 v8, v8, v4
s_mul_i32 s92, s79, 12288
s_add_u32 s92, s92, {L_HR}
v_add_u32 v9, s92, v9
s_lshl_b32 s72, s94, 5
s_lshl_b32 s73, s78, 7
s_add_u32 s72, s72, s73
v_add_u32 v10, s72, v8
v_add_u32 v11, 57344, v10
s_mul_i32 s73, s94, 192
s_sub_u32 s73, 192, s73
v_add_u32 v12, s73, v8
v_add_u32 v13, 57344, v12
s_add_u32 s72, s28, s94
s_lshl_b32 s72, s72, 5
s_cmp_eq_u32 s28, 6
s_cselect_b32 s72, s73, s72
v_add_u32 v188, s72, v8
v_add_u32 v189, 57344, v188
s_lshl_b32 s90, s84, 3
s_lshl_b32 s72, s79, 1
s_add_u32 s90, s90, s72
s_lshl_b32 s91, s90, 14
s_add_u32 s91, s91, {WS_HT}""")
for i in range(40): a(f"v_mov_b32 v{GA+i}, 0")
for i in range(4): a(f"v_mov_b32 v{ONE+i}, 0x3f803f80")
a("s_waitcnt vmcnt(0)")
mark(8)
a("s_barrier")
mark(9)
def hdma(ks): return f"s_add_u32 m0, s92, {(ks % 6)*2048}\ns_add_u32 s74, s91, {ks*2048}\nbuffer_load_dwordx4 v190, {WS}, s74 offen{LD} lds\nbuffer_load_dwordx4 v190, {WS}, s74 offen offset:1024{LD} lds"
a(f"""s_lshl_b32 s73, s84, 17
s_and_b32 s72, s30, 7
s_lshl_b32 s72, s72, 14
s_add_u32 s73, s73, s72
s_and_b32 s72, s28, 1
s_lshl_b32 s72, s72, 13
s_add_u32 s73, s73, s72
s_add_u32 s73, s73, {WS_HT}
s_cmp_lt_u32 s28, 6
s_cbranch_scc1 L_noht
buffer_load_dword v135, v14, {WS}, s73 offen
L_noht:
s_mul_i32 s89, s30, 28672
s_lshl_b32 s72, s79, 13
s_min_u32 s72, s72, 20480
s_add_u32 s89, s89, s72
s_and_b32 s72, s29, 1
s_mul_i32 s72, s72, 917504
s_add_u32 s89, s89, s72
s_add_u32 s89, s89, {WS_W2P}""")
a("s_cmp_eq_u32 s78, 1\ns_cbranch_scc1 L_nohp")
for ks in range(6): a(hdma(ks))
a.label("L_nohp")
lcs = a.new("Lcs")
a(f"s_cmp_eq_u32 s28, 7\ns_cbranch_scc1 {lcs}")
CF = 80
def csrd(ks):
    for hq in range(2): a(f"ds_read_b64_tr_b16 v[{CF+4*(ks%7)+2*hq}:{CF+4*(ks%7)+2*hq+1}], v{188+(ks>>3)} offset:{(ks%8)*7168 + hq*1792}")
for ks in range(min(7, KPRE)): csrd(ks)
for ks in range(KPRE):
    a(f"s_waitcnt lgkmcnt({2*min(6, KPRE-1-ks)})")
    a(f"v_mfma_f32_16x16x32_bf16 v[{CSH}:{CSH+3}], v[{CF+4*(ks%7)}:{CF+4*(ks%7)+3}], v[{ONE}:{ONE+3}], {'0' if ks == 0 else f'v[{CSH}:{CSH+3}]'}")
    if ks + 7 < KPRE: csrd(ks + 7)
a.label(lcs)
a("s_cmp_eq_u32 s78, 1\ns_cbranch_scc1 L_g1_b")
def gemm1(fh):
    ns = 4 if fh == 0 else 3
    def rdw(ks):
        o = []; hi = ks >= 8
        for sl in range(ns):
            for hq in range(2):
                six = (fh == 1 and sl == 2)
                base = (12 + hi) if six else (10 + hi)
                off = (ks - 8*hi)*7168 + hq*1792 + (0 if six else sl*32)
                r = WF[ks & 1] + 4*sl + 2*hq
                o.append(f"ds_read_b64_tr_b16 v[{r}:{r+1}], v{base} offset:{off}")
        return o
    def rdh(ks):
        o = []
        for t in range(2):
            for hq in range(2):
                r = HFR[ks & 1] + 4*t + 2*hq
                o.append(f"ds_read_b64_tr_b16 v[{r}:{r+1}], v9 offset:{(ks % 6)*2048 + t*256 + hq*512}")
        return o
    W2L = w2_loads(0, 14)
    vm = [x for k in range(6) for x in (("h0", k), ("h", k))] if fh == 0 else []
    def vmw(tag): return len(vm) - 1 - vm.index(tag)
    for x in rdw(0): a(x)
    if fh == 0: a(f"s_waitcnt vmcnt({vmw(('h', 1))})")
    a("s_barrier")
    for x in rdh(0): a(x)
    wi = 0
    for ks in range(16):
        fill = []
        if ks % 2 == 1 and ks < 15:
            if fh == 0: fill.append(("wait", ("h", ks + 2), None))
            if KPRE <= ks + 2 and KPRE < 16: fill.append(("wait", ("d", min(15, ks + 2)), None))
            fill.append(("x", None, "s_barrier"))
            for k2 in (ks + 5, ks + 6):
                if k2 < 16 and fh == 0: fill.append(("vm2", ("h", k2), hdma(k2)))
        if ks < 15: fill += [("x", None, x) for x in rdh(ks + 1) + rdw(ks + 1)]
        nd = (16 - KPRE + 3) // 4
        for k2 in range(KPRE + nd*ks, min(16, KPRE + nd*(ks+1))):
            lk = a.new("Lw1")
            fill.append(("vm", ("d", k2), (f"s_cmp_eq_u32 s28, 7\ns_cbranch_scc1 {lk}\n" if fh == 1 else "") + w1dma(k2) + (f"\n{lk}:" if fh == 1 else "")))
        if ks + 1 >= KPRE and ks < 15:
            for hq in range(2): fill.append(("x", None, f"ds_read_b64_tr_b16 v[{112+4*((ks+1)&1)+2*hq}:{113+4*((ks+1)&1)+2*hq}], v{188+((ks+1)>>3)} offset:{((ks+1)%8)*7168 + hq*1792}"))
        kt = OPT.get("kt", 1)
        if fh == 1 and kt <= ks < kt + 8 and (ks - kt) % 2 == 0:
            j = (ks - kt) // 2; lk = a.new("Ltg")
            fill.append(("vm", ("t", j), f"s_cmp_eq_u32 s79, {j & 3}\ns_cselect_b32 s72, s89, {OOB}\nbuffer_load_dword v134, v14, {WS}, s72 offen"))
        for _ in range(OPT.get("pk", 3)):
            if wi < OPT.get("nl", 18) and ks >= (OPT.get("k0", 10) if fh == 0 else OPT.get("k1", 10)): fill.append(("vm", ("w", wi), W2L[wi])); wi += 1
        mf = []
        for sl in range(ns):
            for t in range(2):
                ac = GA + (sl*2 + t)*4; h = HFR[ks & 1] + 4*t
                mf.append(f"v_mfma_f32_16x16x32_bf16 v[{ac}:{ac+3}], v[{WF[ks&1]+4*sl}:{WF[ks&1]+4*sl+3}], v[{h}:{h+3}], v[{ac}:{ac+3}]")
        if fh == 1:
            for t in range(2):
                h = HFR[ks & 1] + 4*t
                mf.append(f"v_mfma_f32_16x16x32_bf16 v[{40+4*t}:{43+4*t}], v[{h}:{h+3}], v[{h}:{h+3}], v[{40+4*t}:{43+4*t}]")
                mf.append(f"v_mfma_f32_16x16x32_bf16 v[{48+4*t}:{51+4*t}], v[{ONE}:{ONE+3}], v[{h}:{h+3}], v[{48+4*t}:{51+4*t}]")
        if ks >= KPRE: mf.append(f"v_mfma_f32_16x16x32_bf16 v[{CSH}:{CSH+3}], v[{112+4*(ks&1)}:{115+4*(ks&1)}], v[{ONE}:{ONE+3}], v[{CSH}:{CSH+3}]")
        a("s_waitcnt lgkmcnt(0)")
        if OPT.get("g1m") and ks in (0, 4, 8, 12): mark({0: 1, 4: 2, 8: 3, 12: 14}[ks])
        k = 0
        per = (len(fill) + len(mf) - 1) // len(mf)
        for m, x in enumerate(mf):
            a(x)
            tgt = min(len(fill), per*(m+1))
            while k < tgt:
                kind, tag, txt = fill[k]; k += 1
                if kind == "vm": a(txt); vm.append(tag)
                elif kind == "vm2": a(txt); vm.append(("h0", tag[1])); vm.append(tag)
                elif kind == "wait": a(f"s_waitcnt vmcnt({vmw(tag)})")
                else: a(txt)
    mark(10)
    for _ in range(28 - wi):
        a(W2L[wi]); wi += 1
    a("s_barrier")
    if OPT.get("e1m"): mark(1)
    lc2 = a.new("Lc2")
    a(f"""v_lshlrev_b32 v10, 4, v3
    s_lshl_b32 s72, s28, 6
    v_add_u32 v4, s72, v10
    s_mov_b32 exec_lo, 0x00010001
    s_mov_b32 exec_hi, 0x00010001
    ds_write_b128 v4, v[{CSH}:{CSH+3}] offset:{L_CS}
    s_mov_b64 exec, -1
    s_lshl_b32 s72, s79, 8
    v_lshlrev_b32 v11, 3, v2
    v_add_u32 v11, s72, v11""")
    if fh == 1:
        a(f"""v_and_b32 v4, 3, v2
        v_cmp_eq_u32 s[72:73], 1, v4
        v_cmp_eq_u32 s[74:75], 2, v4
        v_cmp_eq_u32 s[76:77], 3, v4
        v_lshrrev_b32 v4, 2, v2
        v_cmp_eq_u32 vcc, v4, v3""")
        for t in range(2):
            g = 40 + 4*t
            a(f"""v_cndmask_b32_e64 v{g}, v{g}, v{g+1}, s[72:73]
            v_cndmask_b32_e64 v{g}, v{g}, v{g+2}, s[74:75]
            v_cndmask_b32_e64 v{g+1}, v{g}, v{g+3}, s[76:77]
            v_mov_b32 v{g}, v{48+4*t}""")
        a(f"""s_mov_b64 exec, vcc
        ds_write_b64 v11, v[40:41] offset:{L_SX}
        ds_write_b64 v11, v[44:45] offset:{L_SX+128}
        s_mov_b64 exec, -1""")
    CSR = 80
    a(f"""s_mul_i32 s72, s90, 57344
    s_add_u32 s72, s72, {WS_HP}
    s_mul_i32 s73, s85, 7
    s_add_u32 s74, s73, s94
    s_lshr_b32 s74, s74, 1
    s_lshl_b32 s74, s74, 10
    s_add_u32 s74, s74, s72
    s_mul_i32 s75, s94, 6
    s_sub_u32 s75, 6, s75
    s_add_u32 s75, s75, s73
    s_lshr_b32 s75, s75, 1
    s_lshl_b32 s75, s75, 10
    s_add_u32 s75, s75, s72
    s_lshl_b32 s76, s94, 3
    s_add_u32 s75, s75, s76
    v_add_u32 v12, 57344, v5
    s_waitcnt lgkmcnt(0)
    s_barrier
    ds_read_b64 v[64:65], v11 offset:{L_SX}
    ds_read_b64 v[66:67], v11 offset:{L_SX+128}""")
    for sl in range(ns): a(f"ds_read_b128 v[{CSR+4*sl}:{CSR+4*sl+3}], v10 offset:{L_CS + 64*(sl + 4*fh)}")
    a(f"s_waitcnt lgkmcnt({ns})")
    for t in range(2):
        s_, q_ = 64 + 2*t, 65 + 2*t
        a(f"""v_mul_f32 v{s_}, 0x3b000000, v{s_}
        v_mul_f32 v{q_}, 0x3b000000, v{q_}
        v_fma_f32 v{q_}, -v{s_}, v{s_}, v{q_}
        v_max_f32 v{q_}, 0, v{q_}
        v_cvt_pk_bf16_f32 v{s_}, v{s_}, v{q_}
        v_lshlrev_b32 v{70+4*t}, 16, v{s_}
        v_lshlrev_b32 v{71+4*t}, 16, v{s_}
        v_and_b32 v{q_}, 0xffff0000, v{s_}
        v_add_f32 v{q_}, 0x3727c5ac, v{q_}
        v_cvt_pk_bf16_f32 v{q_}, v{q_}, v{q_}
        v_and_b32 v{q_}, 0xffff0000, v{q_}
        v_sqrt_f32 v{q_}, v{q_}""")
    for t in range(2):
        q_ = 65 + 2*t
        a(f"""v_cvt_pk_bf16_f32 v{q_}, v{q_}, v{q_}
        v_and_b32 v{q_}, 0xffff0000, v{q_}
        v_rcp_f32 v{68+4*t}, v{q_}
        v_rcp_f32 v{69+4*t}, v{q_}""")
    a("s_waitcnt lgkmcnt(0)")
    TT = 96
    if OPT.get("e1m"): mark(2)
    for t in range(2): a(f"v_mul_f32 v{128+2*t}, 0xbfb8aa3b, v{68+4*t}\nv_mul_f32 v{129+2*t}, 0xbfb8aa3b, v{68+4*t}")
    a("v_mov_b32 v132, 1.0\nv_mov_b32 v133, 1.0")
    groups = [(0, 1), (2, 3)] if fh == 0 else [(0, 1), (2,)]
    for gi, grp in enumerate(groups):
        prs = [(sl, t, h) for sl in grp for t in range(2) for h in range(2)]
        def AC(sl, t, h): return GA + (sl*2+t)*4 + 2*h
        def T_(i): return TT + 16*gi + 2*i
        for i, (sl, t, h) in enumerate(prs):
            ac = AC(sl, t, h)
            a(f"v_pk_fma_f32 v[{ac}:{ac+1}], v[{CSR+4*sl+2*h}:{CSR+4*sl+2*h+1}], v[{70+4*t}:{71+4*t}], v[{ac}:{ac+1}] neg_lo:[0,1,0] neg_hi:[0,1,0]")
        for i, (sl, t, h) in enumerate(prs):
            ac = AC(sl, t, h)
            a(f"v_pk_mul_f32 v[{T_(i)}:{T_(i)+1}], v[{ac}:{ac+1}], v[{128+2*t}:{129+2*t}]")
        for i, (sl, t, h) in enumerate(prs):
            ac = AC(sl, t, h)
            a(f"v_exp_f32 v{T_(i)}, v{T_(i)}\nv_exp_f32 v{T_(i)+1}, v{T_(i)+1}\nv_pk_mul_f32 v[{ac}:{ac+1}], v[{ac}:{ac+1}], v[{68+4*t}:{69+4*t}]")
        for i in range(len(prs)): a(f"v_pk_add_f32 v[{T_(i)}:{T_(i)+1}], v[{T_(i)}:{T_(i)+1}], v[132:133]")
        for i in range(len(prs)): a(f"v_rcp_f32 v{T_(i)}, v{T_(i)}\nv_rcp_f32 v{T_(i)+1}, v{T_(i)+1}")
        a("s_nop 0")
        for i, (sl, t, h) in enumerate(prs):
            ac = AC(sl, t, h)
            a(f"v_pk_mul_f32 v[{ac}:{ac+1}], v[{ac}:{ac+1}], v[{T_(i)}:{T_(i)+1}]")
        for t in range(2):
            o = TT + 16*gi + 4*t
            for j, sl in enumerate(grp):
                ac = AC(sl, t, 0)
                a(f"v_cvt_pk_bf16_f32 v{o+2*j}, v{ac}, v{ac+1}\nv_cvt_pk_bf16_f32 v{o+2*j+1}, v{ac+2}, v{ac+3}")
            if len(grp) == 2: a(f"buffer_store_dwordx4 v[{o}:{o+3}], v{5 if t == 0 else 12}, {WS}, s74 offen offset:{1024*(gi + 2*fh)} sc1")
            else: a(f"buffer_store_dwordx2 v[{o}:{o+1}], v{5 if t == 0 else 12}, {WS}, s75 offen sc1")

    return wi
WI = gemm1(0); a("s_branch L_g1_done")
a.label("L_g1_b"); gemm1(1)
a.label("L_g1_done")
if OPT.get("e1m"): mark(3)
A3 = 16; HF = [64, 96]
a(f"""s_lshl_b32 s73, s84, 1
s_lshr_b32 s72, s79, 1
s_add_u32 s73, s73, s72
s_lshl_b32 s73, s73, 4
s_add_u32 s73, s73, s85
s_lshl_b32 s73, s73, 2
s_and_b32 s72, s79, 1
s_lshl_b32 s72, s72, 1
s_add_u32 s73, s73, s72
s_add_u32 s73, s73, s78
s_lshl_b32 s73, s73, 7
s_add_u32 s73, s73, {WS_F3}
s_lshl_b32 s90, s84, 1
s_add_u32 s90, s90, s94
s_lshl_b32 s89, s90, 13
s_add_u32 s89, s89, {WS_F3}
s_lshl_b32 s90, s90, 2
s_mul_i32 s91, s86, 14
s_add_u32 s91, s91, s87
s_lshl_b32 s91, s91, 10
s_add_u32 s91, s91, {WS_HP}""")
for u in range(4):
    a(f"""s_add_u32 s72, s86, {u}
    s_and_b32 s72, s72, 3
    s_add_u32 s72, s72, s90
    s_mul_i32 s72, s72, 57344
    s_add_u32 s{40+u}, s72, s91""")
a(f"""s_lshl_b32 s92, s86, 13
s_lshl_b32 s72, s87, 12
s_add_u32 s93, s92, s72
v_add_u32 v10, s92, v5
s_add_u32 s90, s90, s86
s_lshr_b32 s95, s90, 1
s_lshl_b32 s95, s95, 15
s_and_b32 s72, s90, 1
s_lshl_b32 s72, s72, 5
s_add_u32 s95, s95, s72
s_lshr_b32 s72, s85, 1
s_lshl_b32 s72, s72, 1
s_add_u32 s72, s72, s87
s_lshl_b32 s72, s72, 11
s_add_u32 s95, s95, s72
s_add_u32 s95, s95, {WS_HT}
v_lshlrev_b32 v11, 9, v3
v_lshl_add_u32 v11, v2, 1, v11
v_add_u32 v12, 65536, v10
v_add_u32 v13, 0x20000, v10
s_waitcnt vmcnt(0)""")
flag_store("s73")
for x in w2_loads(0, 14)[WI:]: a(x)
mark(11)
if STOP <= 2: a("s_branch L_fin")
for e in range(4):
    a(f"buffer_load_short_d16 v{128+e}, v11, {WS}, s95 offen offset:{128*e} sc1\nbuffer_load_short_d16_hi v{132+e}, v11, {WS}, s95 offen offset:{128*e+64} sc1")
for i in range(32): a(f"v_mov_b32 v{A3+i}, 0")
lnp = a.new("Lnp3")
a(f"s_cmp_lg_u32 s28, 7\ns_cbranch_scc1 {lnp}")
polln("s89", 1)
a.label(lnp)
a("s_barrier")
mark(12)
def stage_dma(s):
    return [f"s_add_u32 m0, s93, {(s % 5)*32768 + u*1024}\ns_add_u32 s72, s{40+u}, {2048*s}\nbuffer_load_dwordx4 v5, {WS}, s72 offen{LD} lds" for u in range(4)]
for s in range(5):
    for x in stage_dma(s): a(x)
for s in range(7):
    issued = min(7, max(5, s + 4))
    a(f"s_waitcnt vmcnt({4*(issued - s - 1)})\ns_barrier")
    if s >= 1 and s + 4 <= 6:
        for x in stage_dma(s + 4): a(x)
    sl = s % 5
    base = 10 + [0, 0, 2, 2, 3][sl]; off0 = [0, 32768, 0, 32768, 0][sl]
    hf = HF[s & 1]
    for j in range(8): a(f"ds_read_b128 v[{hf+4*j}:{hf+4*j+3}], v{base} offset:{off0 + 1024*j}")
    for k2 in range(2):
        kk = 2*s + k2; b = w2reg(kk)
        for u in range(4):
            a(f"s_waitcnt lgkmcnt({7 - (k2*4+u)})")
            for t in range(2):
                ac = A3 + (u*2+t)*4
                a(f"v_mfma_f32_16x16x32_bf16 v[{ac}:{ac+3}], v[{b+4*t}:{b+4*t+3}], v[{hf+16*k2+4*u}:{hf+16*k2+4*u+3}], v[{ac}:{ac+3}]")
mark(13)
a("s_barrier")
for u in range(1, 4):
    a(f"""s_add_u32 s72, s86, {u}
    s_and_b32 s72, s72, 3
    s_lshl_b32 s73, s87, 2
    s_add_u32 s72, s72, s73
    s_mul_i32 s72, s72, 6144
    s_add_u32 s72, s72, {(u-1)*2048}
    v_add_u32 v{10+u}, s72, v5""")
a("""s_lshl_b32 s73, s87, 2
s_add_u32 s72, s86, s73
s_mul_i32 s72, s72, 6144
v_add_u32 v10, s72, v5""")
for u in range(1, 4):
    for t in range(2):
        ac = A3 + (u*2+t)*4
        a(f"ds_write_b128 v{10+u}, v[{ac}:{ac+3}] offset:{1024*t}")
a("""s_lshl_b32 s72, s90, 14
s_lshr_b32 s73, s85, 1
s_lshl_b32 s73, s73, 7
s_add_u32 s72, s72, s73
s_lshl_b32 s73, s87, 6
s_add_u32 s72, s72, s73
v_lshlrev_b32 v9, 10, v2
v_lshl_add_u32 v9, v3, 4, v9""")
for e in range(4): a(f"v_lshlrev_b32 v{96+e}, 16, v{128+e}\nv_and_b32 v{100+e}, 0xffff0000, v{132+e}")
a("s_waitcnt lgkmcnt(0)\ns_barrier")
for j in range(6): a(f"ds_read_b128 v[{64+4*j}:{67+4*j}], v10 offset:{1024*j}")
for t in range(2):
    ac = A3 + t*4
    for h in range(2): a(f"v_pk_add_f32 v[{ac+2*h}:{ac+2*h+1}], v[{ac+2*h}:{ac+2*h+1}], v[{96+4*t+2*h}:{97+4*t+2*h}]")
a("s_waitcnt lgkmcnt(0)")
for t in range(2):
    ac = A3 + t*4
    for h in range(2):
        a(f"v_pk_add_f32 v[{ac+2*h}:{ac+2*h+1}], v[{ac+2*h}:{ac+2*h+1}], v[{64+4*t+2*h}:{65+4*t+2*h}]")
        a(f"v_pk_add_f32 v[{72+4*t+2*h}:{73+4*t+2*h}], v[{72+4*t+2*h}:{73+4*t+2*h}], v[{80+4*t+2*h}:{81+4*t+2*h}]")
for t in range(2):
    ac = A3 + t*4
    for h in range(2): a(f"v_pk_add_f32 v[{ac+2*h}:{ac+2*h+1}], v[{ac+2*h}:{ac+2*h+1}], v[{72+4*t+2*h}:{73+4*t+2*h}]")
for r in range(4): a(f"v_cvt_pk_bf16_f32 v{104+r}, v{A3+r}, v{A3+4+r}")
a(f"buffer_store_dwordx4 v[104:107], v9, {OUT}, s72 offen" + ["", " nt", " sc1", " sc0 sc1"][OPT.get("ost", 0)])
a.label("L_fin")
if OPT.get("dbg"):
    a(f"""s_waitcnt vmcnt(0)
    s_memrealtime s[98:99]
    s_waitcnt lgkmcnt(0)
    s_and_b32 s72, s2, 31
    s_or_b32 s72, s72, s28
    s_cmp_lg_u32 s72, 0
    s_cbranch_scc1 L_end
    s_not_b32 s96, s96
    v_mov_b32 v16, s96
    v_mov_b32 v17, s98
    v_mov_b32 v4, 16
    s_mov_b64 exec, 1
    buffer_atomic_umax v16, v4, {DBG}, 0 offen
    buffer_atomic_umax v17, v4, {DBG}, 0 offen offset:4
    s_mov_b64 exec, -1""")
if STAMP:
    a(f"""s_mov_b64 exec, -1
    s_waitcnt vmcnt(0) lgkmcnt(0)
    s_memrealtime s[98:99]
    s_waitcnt lgkmcnt(0)
    v_writelane_b32 v15, s96, 0
    v_writelane_b32 v15, s98, 15
    s_lshl_b32 s72, s2, 9
    s_lshl_b32 s73, s28, 6
    s_add_u32 s72, s72, s73
    s_add_u32 s72, s72, {WS_STAMP}
    v_lshlrev_b32 v4, 2, v1
    s_mov_b64 exec, 0xffff
    buffer_store_dword v15, v4, {WS}, s72 offen
    s_add_u32 s72, s72, {0x100000 - 64}
    s_mov_b32 exec_lo, 0xffff0000
    buffer_store_dword v15, v4, {WS}, s72 offen""")
a.label("L_end")
a("s_endpgm")
a.raw(f""".section .rodata,"a"
.p2align 6
.amdhsa_kernel {NAME}
  .amdhsa_next_free_vgpr 256
  .amdhsa_next_free_sgpr 102
  .amdhsa_accum_offset 256
  .amdhsa_group_segment_fixed_size 0
  .amdhsa_kernarg_size 96
  .amdhsa_user_sgpr_count 2
  .amdhsa_user_sgpr_kernarg_segment_ptr 1
  .amdhsa_system_sgpr_workgroup_id_x 1
.end_amdhsa_kernel""")
HEADER = open("sequential_preLN__ssm_conv_h3__dense_activation_silu__prompt.s.ref").read().split("; Override launch")[0]
print(HEADER + f"; @launch grid=(256,1,1) block=(512,1,1) lds={LDS_BYTES}\n" + '.amdgcn_target "amdgcn-amd-amdhsa--gfx950"\n.text\n' + a.text())
```

```python
import sys
STAMP = "stamp" in sys.argv[1:]
STOP = 99
OPT = {"nt": 1, "fast": 0}
for x in sys.argv[1:]:
    if x.startswith("stop="): STOP = int(x[5:])
    elif "=" in x: k, v = x.split("="); OPT[k] = int(v)
NT = " nt" if OPT["nt"] else ""

WS_KVT = 0
WS_XD  = 2 << 20
WS_ST  = 4 << 20
WS_HT  = 6 << 20
WS_W2P = 10 << 20
WS_HP  = 12 << 20
WS_F1  = 20 << 20
WS_FX  = WS_F1 + 0x20000
WS_FC  = WS_F1 + 0x30000
WS_F2  = WS_F1 + 0x40000
WS_F3  = WS_F1 + 0x80000
WS_STAMP = 0x4000000
WS_BYTES = 268435456
OOB = 0x7FF00000
SPIN = 40000

W1_EARLY = 0
L_RED = 28672
L_XS = L_RED + 65536
L_ST = L_XS + 8192
L_U = [114688, 114688 + 4608]
L_KC = [123904, 123904 + 16640]
KC_STRIDE = 4160
L_CNT = 157184
L_MODE = 157188
L_HR = 114688
L_CS = 0
L_SX = 1024
LDS_BYTES = 163840
NAME = "sequential_preLN__ssm_conv_h3__dense_activation_silu__prompt_kernel"

class A:
    def __init__(s): s.l = []; s.uid = 0
    def __call__(s, txt):
        for ln in txt.strip("\n").split("\n"):
            if ln.strip(): s.l.append(("    " + ln.strip()) if not ln.strip().endswith(":") else ln.strip())
    def label(s, n): s.l.append(n + ":")
    def raw(s, t): s.l.append(t)
    def new(s, p="L"): s.uid += 1; return f"{p}_{s.uid}"
    def text(s): return "\n".join(s.l) + "\n"
a = A()
def srd(d, b, n):
    a(f"s_mov_b32 s{d}, s{b}\ns_mov_b32 s{d+1}, s{b+1}\ns_mov_b32 s{d+2}, {n}\ns_mov_b32 s{d+3}, 0x00020000")
def mark(i):
    if STAMP: a(f"s_memrealtime s[98:99]\ns_memtime s[100:101]\ns_waitcnt lgkmcnt(0)\nv_writelane_b32 v15, s98, {i}\nv_writelane_b32 v15, s100, {16+i}")
X, K, V, SK, SSM, W1, W2, OUT, DBG, WS = [f"s[{32+4*i}:{35+4*i}]" for i in range(10)]

def tag_load():
    a(f"v_mov_b32 v4, 0\nbuffer_load_dwordx2 v[6:7], v4, {DBG}, 0 offen sc1")
def tag_check():
    l0, l1 = a.new("Ltag"), a.new("Ltagd")
    a(f"s_mov_b32 s72, {SPIN}")
    a.label(l0)
    a(f"""v_readfirstlane_b32 s73, v6
    s_cmp_lg_u32 s73, 0
    s_cbranch_scc1 {l1}
    s_sub_u32 s72, s72, 1
    s_cmp_eq_u32 s72, 0
    s_cbranch_scc1 {l1}
    v_mov_b32 v4, 0
    buffer_load_dwordx2 v[6:7], v4, {DBG}, 0 offen sc1
    s_waitcnt vmcnt(0)
    s_branch {l0}""")
    a.label(l1)
def flag_store(soff):
    a(f"""v_mov_b32 v4, 0
    s_mov_b64 exec, 1
    buffer_store_dwordx2 v[6:7], v4, {WS}, {soff} offen sc1
    s_mov_b64 exec, -1""")
def polln(sbase, n, vt=184, preissued=False, nowait=0):
    M = ["s[4:5]", "s[6:7]", "s[8:9]", "s[16:17]"]
    l0, l1, l2 = a.new("Lpn"), a.new("Lpnd"), a.new("Lpnc")
    for i in range(n): a(f"s_mov_b64 {M[i]}, -1")
    a(f"s_mov_b32 s72, {SPIN}")
    if preissued: a(f"s_branch {l2}")
    a.label(l0)
    for i in range(n):
        sk = a.new("Lsk")
        a(f"s_mov_b64 exec, {M[i]}\ns_add_u32 s77, {sbase}, {8192*i}\ns_cbranch_execz {sk}\nbuffer_load_dwordx2 v[{vt+2*i}:{vt+2*i+1}], v14, {WS}, s77 offen sc1")
        a.label(sk)
    a("s_mov_b64 exec, -1")
    a.label(l2)
    a("s_waitcnt vmcnt(0)")
    for i in range(n):
        a(f"v_cmp_ne_u64 vcc, v[{vt+2*i}:{vt+2*i+1}], v[6:7]\ns_and_b64 {M[i]}, {M[i]}, vcc")
    a(f"s_mov_b64 s[10:11], {M[0]}")
    for i in range(1, n): a(f"s_or_b64 s[10:11], s[10:11], {M[i]}")
    a(f"""s_sub_u32 s72, s72, 1
    s_cmp_eq_u32 s72, 0
    s_cbranch_scc1 {l1}
    s_cmp_eq_u64 s[10:11], 0
    s_cbranch_scc1 {l1}""")
    if OPT.get("slp", 0): a(f"s_sleep {OPT['slp']}")
    a(f"s_branch {l0}")
    a.label(l1)
def polln_pre(sbase, n, vt=184):
    for i in range(n): a(f"s_add_u32 s77, {sbase}, {8192*i}\nbuffer_load_dwordx2 v[{vt+2*i}:{vt+2*i+1}], v14, {WS}, s77 offen sc1")

def mode_read(vt):
    a(f"v_mov_b32 v{vt}, {L_MODE}\nds_read_b32 v{vt}, v{vt}")
def mode_get(vt):
    a(f"s_waitcnt lgkmcnt(0)\nv_readfirstlane_b32 s3, v{vt}")
def dual(stores):
    lf, ld = a.new("Lfast"), a.new("Ldual")
    a(f"s_cmp_eq_u32 s3, 1\ns_cbranch_scc1 {lf}")
    for x in stores: a(x + (" sc1" if x.startswith("buffer_store") else ""))
    a(f"s_branch {ld}")
    a.label(lf)
    for x in stores: a(x)
    a.label(ld)
W2A, W2B = 192, 136
def w2reg(kk): return W2A + 8*kk if kk < 8 else W2B + 8*(kk-8)
def w2_loads(k0, k1):
    L = []
    for kk in range(k0, k1):
        b = w2reg(kk)
        for t in range(2):
            L.append(f"s_add_u32 s74, s31, {(kk>>1)*4096}\nbuffer_load_dwordx4 v[{b+4*t}:{b+4*t+3}], v5, {WS}, s74 offen offset:{(kk&1)*2048 + t*1024}" + ("" if OPT.get("plain", 1) else " sc1"))
    return L
def w1_pattern(vd, sp):
    a(f"s_lshl_b32 s77, {sp}, 6\nv_add_u32 v{vd}, s77, v1\nv_mul_u32_u24 v4, 4682, v{vd}\nv_lshrrev_b32 v4, 16, v4\nv_lshlrev_b32 v{vd}, 4, v{vd}\ns_movk_i32 s77, 3360\nv_mad_u32_u24 v{vd}, v4, s77, v{vd}")

def kc_build():
    lnf = a.new("Lnofix")
    a(f"""s_lshl_b32 s72, s79, 10
    s_add_u32 s72, s72, s80
    v_add_u32 v40, s72, v5
    ds_write_b128 v40, v[16:19] offset:32
    v_alignbit_b32 v24, v17, v16, 16
    v_alignbit_b32 v25, v18, v17, 16
    v_alignbit_b32 v26, v19, v18, 16
    v_alignbit_b32 v27, v20, v19, 16
    v_mov_b32 v28, v17
    v_mov_b32 v29, v18
    v_mov_b32 v30, v19
    v_mov_b32 v31, v20
    ds_write_b128 v40, v[24:27] offset:{32+KC_STRIDE}
    v_mov_b32 v32, v25
    v_mov_b32 v33, v26
    v_mov_b32 v34, v27
    v_alignbit_b32 v35, v21, v20, 16
    ds_write_b128 v40, v[28:31] offset:{32+2*KC_STRIDE}
    ds_write_b128 v40, v[32:35] offset:{32+3*KC_STRIDE}
    s_cmp_lg_u32 s79, 0
    s_cbranch_scc1 {lnf}
    s_mov_b64 exec, 1
    v_lshlrev_b32 v37, 16, v16
    v_mov_b32 v36, 0
    v_mov_b32 v38, 0
    v_mov_b32 v39, v16
    v_mov_b32 v42, v37
    v_mov_b32 v43, v24
    ds_write_b64 v40, v[36:37] offset:{24+KC_STRIDE}
    ds_write_b64 v40, v[38:39] offset:{24+2*KC_STRIDE}
    ds_write_b64 v40, v[42:43] offset:{24+3*KC_STRIDE}
    s_mov_b64 exec, -1""")
    a.label(lnf)
def ssm_load():
    a(f"buffer_load_dwordx4 v[16:19], v5, {SSM}, s81 offen{NT}\nbuffer_load_dwordx2 v[20:21], v5, {SSM}, s81 offen offset:16{NT}")
def zero_pads():
    lnz = a.new("Lnz")
    a(f"""s_cmp_lg_u32 s79, 0
    s_cbranch_scc1 {lnz}
    v_mov_b32 v44, 0
    v_mov_b32 v45, 0
    v_mov_b32 v46, 0
    v_mov_b32 v47, 0
    s_mov_b32 exec_hi, 0
    v_add_u32 v43, s82, v5
    ds_write_b128 v43, v[44:47]
    s_mov_b64 exec, 0xff
    v_lshrrev_b32 v42, 1, v1
    v_mul_u32_u24 v42, {KC_STRIDE}, v42
    v_and_b32 v4, 1, v1
    v_lshl_add_u32 v42, v4, 4, v42
    v_add_u32 v42, s80, v42
    ds_write_b128 v42, v[44:47]
    v_mov_b32 v42, {L_CNT}
    ds_write_b64 v42, v[44:45]
    s_mov_b64 exec, -1""")
    a.label(lnz)

a.raw(f".globl {NAME}\n.p2align 8\n.type {NAME},@function\n{NAME}:")
a("""s_cmp_ge_u32 s2, 256
s_cbranch_scc1 L_end
s_load_dwordx16 s[4:19], s[0:1], 0
s_load_dwordx8 s[20:27], s[0:1], 64""")
if STAMP: a("v_mov_b32 v15, 0\ns_memrealtime s[96:97]")
if OPT.get("dbg"): a("s_memrealtime s[96:97]")
a(f"""v_lshrrev_b32 v4, 6, v0
v_and_b32 v1, 63, v0
v_readfirstlane_b32 s28, v4
v_and_b32 v2, 15, v0
v_bfe_u32 v3, v0, 4, 2
v_lshlrev_b32 v5, 4, v1
v_lshlrev_b32 v14, 7, v1
s_and_b32 s29, s2, 7
s_lshr_b32 s30, s2, 3
v_and_b32 v10, 31, v0
v_bfe_u32 v11, v0, 5, 3
s_lshl_b32 s72, s30, 16
s_lshl_b32 s73, s29, 7
s_add_u32 s72, s72, s73
v_lshlrev_b32 v12, 13, v11
v_lshl_add_u32 v12, v10, 2, v12
v_add_u32 v12, s72, v12
s_movk_i32 s74, 4096
s_lshr_b32 s78, s28, 2
s_and_b32 s79, s28, 3
s_mul_i32 s80, s78, {L_KC[1]-L_KC[0]}
s_add_u32 s80, s80, {L_KC[0]}
s_mul_i32 s82, s78, {L_U[1]-L_U[0]}
s_add_u32 s82, s82, {L_U[0]}
s_lshl_b32 s83, s29, 5
s_add_u32 s83, s83, s30
s_lshl_b32 s81, s83, 1
s_add_u32 s81, s81, s78
s_lshl_b32 s81, s81, 12
s_lshl_b32 s72, s79, 10
s_add_u32 s81, s81, s72
s_cmp_ge_u32 s28, 4
s_cbranch_scc1 L_aux""")
LD = "" if OPT.get("plain", 1) else " sc1"
a(f"""v_subrev_u32 v13, 3072, v12
v_mov_b32 v4, {OOB}
v_cmp_gt_i32 vcc, 0, v13
s_lshl_b32 s75, s29, 9
v_lshlrev_b32 v24, 4, v10
v_cndmask_b32 v13, v13, v4, vcc
s_waitcnt lgkmcnt(0)""")
srd(36, 6, 2097152); srd(64, 24, 256)
lnt = a.new("Lnotag")
a(f"""s_or_b32 s72, s2, s28
s_cmp_lg_u32 s72, 0
s_cbranch_scc1 {lnt}
s_memrealtime s[72:73]
s_waitcnt lgkmcnt(0)
s_or_b32 s72, s72, 1
v_mov_b32 v6, s72
v_mov_b32 v7, s73
v_mov_b32 v4, 0
s_mov_b64 exec, 1
buffer_store_dwordx2 v[6:7], v4, {DBG}, 0 offen sc1
s_mov_b64 exec, -1""")
a.label(lnt)
KR, VR = 48, 60
for r in range(3): a(f"buffer_load_dword v{KR+r}, v13, {K}, 0 offen offset:{1024*r}{NT}")
for r in range(8): a(f"buffer_load_dword v{KR+3+r}, v12, {K}, {'0' if r<4 else 's74'} offen offset:{1024*(r%4)}{NT}")
srd(44, 10, 4096)
a(f"buffer_load_dwordx4 v[76:79], v24, {SK}, s75 offen")
srd(40, 8, 2097152)
for r in range(8): a(f"buffer_load_dword v{VR+r}, v12, {V}, {'0' if r<4 else 's74'} offen offset:{1024*(r%4)}{NT}")
srd(48, 12, 2097152); srd(68, 26, WS_BYTES)
ssm_load()
srd(52, 18, 1835008); srd(60, 22, 2097152); srd(56, 20, 1835008)
zero_pads()
a(f"""v_and_b32 v4, 7, v10
v_xor_b32 v4, v4, v11
v_lshlrev_b32 v22, 8, v10
v_lshl_add_u32 v22, v4, 4, v22
v_add_u32 v22, {L_RED}, v22
v_lshrrev_b32 v23, 3, v1
v_lshrrev_b32 v4, 4, v1
v_and_b32 v13, 7, v1
v_xor_b32 v4, v4, v13
v_lshlrev_b32 v4, 4, v4
v_lshl_add_u32 v4, v23, 7, v4
v_lshlrev_b32 v13, 4, v13
v_lshl_add_u32 v13, v23, 12, v13
s_lshl_b32 s72, s28, 11
s_add_u32 s72, s72, {L_RED}
v_add_u32 v23, s72, v4
v_xor_b32 v12, 64, v23
s_lshl_b32 s72, s29, 18
s_lshl_b32 s73, s30, 7
s_add_u32 s90, s72, s73
s_lshl_b32 s72, s28, 16
s_add_u32 s90, s90, s72
s_add_u32 s90, s90, {WS_KVT}
s_add_u32 s91, s90, 32768
s_getreg_b32 s95, hwreg(HW_REG_XCC_ID)
s_and_b32 s95, s95, 0xff""")
mark(1)
a("s_waitcnt vmcnt(10)")
tag_load()
WPp = 80
for j in range(4):
    s0, s1 = 76 + (j >> 1), 78 + (j >> 1)
    if j & 1: a(f"v_and_b32 v{WPp+2*j}, 0xffff0000, v{s0}\nv_and_b32 v{WPp+1+2*j}, 0xffff0000, v{s1}")
    else:     a(f"v_lshlrev_b32 v{WPp+2*j}, 16, v{s0}\nv_lshlrev_b32 v{WPp+1+2*j}, 16, v{s1}")
KU = 88
for r in range(11): a(f"v_lshlrev_b32 v{KU+2*r}, 16, v{KR+r}\nv_and_b32 v{KU+2*r+1}, 0xffff0000, v{KR+r}")
O = 112
for st in range(4):
    for r in range(8):
        o = O + 2*r; ku = KU + 2*(r + st); w = WPp + 2*(3 - st)
        if st == 0: a(f"v_pk_mul_f32 v[{o}:{o+1}], v[{ku}:{ku+1}], v[{w}:{w+1}]")
        else: a(f"v_pk_fma_f32 v[{o}:{o+1}], v[{ku}:{ku+1}], v[{w}:{w+1}], v[{o}:{o+1}]")
a("s_waitcnt vmcnt(3)")
for r in range(8):
    a(f"v_lshlrev_b32 v{KU+2*r}, 16, v{VR+r}\nv_and_b32 v{KU+2*r+1}, 0xffff0000, v{VR+r}")
for r in range(8):
    o = O + 2*r
    a(f"v_pk_mul_f32 v[{o}:{o+1}], v[{o}:{o+1}], v[{KU+2*r}:{KU+2*r+1}]")
for c in range(2):
    for q in range(4):
        a(f"v_cvt_pk_bf16_f32 v{128+4*c+q}, v{O+2*(7-2*q)+c}, v{O+2*(6-2*q)+c}")
a(f"""ds_write_b128 v22, v[128:131]
ds_write_b128 v22, v[132:135] offset:128
s_waitcnt lgkmcnt(0)
s_barrier
ds_read_b128 v[128:131], v23
ds_read_b128 v[132:135], v12 offset:1024
v_mov_b32 v8, s95
v_mov_b32 v9, 0
s_waitcnt lgkmcnt(1)
buffer_store_dwordx4 v[128:131], v13, {WS}, s90 offen sc1
s_waitcnt lgkmcnt(0)
buffer_store_dwordx4 v[132:135], v13, {WS}, s91 offen sc1
s_waitcnt vmcnt(3)""")
kc_build()
a(f"""s_lshl_b32 s89, s83, 7
s_add_u32 s89, s89, {WS_F1}
v_mov_b32 v24, {L_MODE}
v_mov_b32 v25, 1
s_waitcnt vmcnt(0)
s_mov_b64 exec, 1
ds_add_rtn_u32 v25, v24, v25
s_mov_b64 exec, -1""")
tag_check()
lf1 = a.new("Lnf1")
a(f"""s_waitcnt lgkmcnt(0)
v_readfirstlane_b32 s72, v25
s_cmp_lg_u32 s72, 3
s_cbranch_scc1 {lf1}""")
flag_store("s89")
a.label(lf1)
mark(2)
a(f"s_cmp_lg_u32 s28, 0\ns_cbranch_scc1 L_bg")
lp, lpd = a.new("Lf1"), a.new("Lf1d")
a(f"""s_lshl_b32 s73, s29, 12
s_add_u32 s73, s73, {WS_F1}
s_mov_b32 s72, {SPIN}
s_mov_b32 exec_hi, 0
{lp}:
buffer_load_dwordx2 v[184:185], v14, {WS}, s73 offen sc1
s_waitcnt vmcnt(0)
v_cmp_ne_u64 vcc, v[184:185], v[6:7]
s_sub_u32 s72, s72, 1
s_cmp_eq_u32 s72, 0
s_cbranch_scc1 {lpd}
s_and_b64 exec, exec, vcc
s_cbranch_scc1 {lp}
{lpd}:
s_mov_b64 exec, -1""")
mark(3)
a(f"s_lshl_b32 s73, s83, 13\ns_add_u32 s73, s73, {WS_KVT}")
for c in range(2):
    a(f"s_mov_b32 m0, {L_U[c]+512}\ns_nop 0")
    for q in range(4): a(f"buffer_load_dwordx4 v5, {WS}, s73 offen offset:{1024*q}{LD} lds")
    if c == 0: a("s_add_u32 s73, s73, 4096")
if OPT.get("fx0", 0):
    a(f"s_mov_b32 s73, {WS_FX}")
    polln("s73", 4, nowait=8)
    a(f"s_lshl_b32 s73, s83, 13\ns_add_u32 s73, s73, {WS_XD}\ns_mov_b32 m0, {L_XS}\ns_nop 0")
    for q in range(4): a(f"buffer_load_dwordx4 v5, {WS}, s73 offen offset:{1024*q}{LD} lds")
    a(f"s_add_u32 s73, s73, 4096\ns_mov_b32 m0, {L_XS+4096}\ns_nop 0")
    for q in range(4): a(f"buffer_load_dwordx4 v5, {WS}, s73 offen offset:{1024*q}{LD} lds")
    a(f"s_mov_b32 s73, {WS_ST}\ns_mov_b32 m0, {L_ST}\ns_nop 0")
    for q in range(4): a(f"buffer_load_dwordx4 v5, {WS}, s73 offen offset:{1024*q}{LD} lds")
    a(f"s_mov_b32 s73, {WS_ST+4096}\ns_mov_b32 m0, {L_ST+4096}\ns_nop 0")
    for q in range(4): a(f"buffer_load_dwordx4 v5, {WS}, s73 offen offset:{1024*q}{LD} lds")

    a("s_waitcnt vmcnt(16)\ns_branch L_p0_join")
else:
    a("s_waitcnt vmcnt(0)\ns_branch L_p0_join")
a.label("L_bg")
if OPT.get("pke", 0):
    a("s_cmp_eq_u32 s28, 3\ns_cbranch_scc1 L_p0_join")
    PKL, PKO = 192, 216
    a(f"""v_lshrrev_b32 v208, 5, v1
    v_and_b32 v209, 31, v1
    v_lshlrev_b32 v212, 12, v208
    v_lshl_add_u32 v212, v209, 2, v212
    v_lshrrev_b32 v213, 4, v209
    v_mul_u32_u24 v213, {56*2048}, v213
    v_and_b32 v209, 15, v209
    v_lshl_add_u32 v213, v209, 4, v213
    v_lshl_add_u32 v213, v208, 8, v213
    v_mov_b32 v214, {OOB}
    v_mov_b32 v215, {OOB}
    s_mov_b32 s95, 0
    """)
    a("s_mul_i32 s89, s2, 3\ns_add_u32 s89, s89, s28\ns_sub_u32 s89, s89, 1")
    lx = a.new("Lpkx")
    for u in range(2):
        if u == 1:
            a(f"s_add_u32 s89, s89, 1\ns_add_u32 s72, s2, 768\ns_cmp_eq_u32 s28, 1\ns_cselect_b32 s89, s72, s89\ns_cmp_ge_u32 s89, 896\ns_cbranch_scc1 {lx}\ns_mov_b32 s95, 1")
        a(f"""s_mul_i32 s73, s89, 2341
        s_lshr_b32 s73, s73, 18
        s_mul_i32 s72, s73, 112
        s_sub_u32 s72, s89, s72
        s_and_b32 s77, s72, 1
        s_lshr_b32 s72, s72, 1
        s_lshl_b32 s90, s72, 15
        s_lshl_b32 s91, s73, 7
        s_add_u32 s90, s90, s91
        s_lshl_b32 s91, s77, 13
        s_add_u32 s90, s90, s91""")
        for i in range(8):
            if i == 4: a("s_add_u32 s90, s90, 16384")
            a(f"buffer_load_dword v{PKL+8*u+i}, v212, {W2}, s90 offen offset:{(i&3)*1024}{NT}")
        a(f"""s_mul_i32 s73, s73, 112
        s_add_u32 s73, s73, s72
        s_lshl_b32 s73, s73, 11
        s_lshl_b32 s77, s77, 9
        s_add_u32 s73, s73, s77
        v_add_u32 v{214+u}, s73, v213""")
    a.label(lx)
    a(f"""s_mov_b32 s75, 0x05040100
    s_mov_b32 s76, 0x07060302
    s_mov_b32 s90, {WS_W2P}
    s_mov_b32 s91, {WS_W2P+1024}
    s_waitcnt vmcnt(0)""")
    for u in range(2):
        if u == 1: a(f"s_cmp_eq_u32 s95, 0\ns_cbranch_scc1 L_p0_join")
        for c in range(2):
            for q in range(4):
                a(f"v_perm_b32 v{PKO+8*u+4*c+q}, v{PKL+8*u+2*q+1}, v{PKL+8*u+2*q}, s{75+c}")
        a(f"buffer_store_dwordx4 v[{PKO+8*u}:{PKO+3+8*u}], v{214+u}, {WS}, s90 offen sc1")
        a(f"buffer_store_dwordx4 v[{PKO+4+8*u}:{PKO+7+8*u}], v{214+u}, {WS}, s91 offen sc1")

a("s_branch L_p0_join")
a.label("L_aux")
a(f"""v_lshrrev_b32 v24, 3, v1
v_lshlrev_b32 v24, 10, v24
v_and_b32 v4, 7, v1
v_lshl_add_u32 v24, v4, 4, v24
s_lshl_b32 s72, s2, 13
s_waitcnt lgkmcnt(0)""")
srd(32, 4, 2097152)
XR, XS = 48, 64
for r in range(8): a(f"buffer_load_dword v{XR+r}, v12, {X}, {'0' if r<4 else 's74'} offen offset:{1024*(r%4)}{NT}")
srd(48, 12, 2097152)
ssm_load()
ls = a.new("Lnst")
a(f"s_cmp_lg_u32 s28, 4\ns_cbranch_scc1 {ls}")
for i in range(8): a(f"buffer_load_dwordx4 v[{XS+4*i}:{XS+4*i+3}], v24, {X}, s72 offen offset:{128*i}{NT}")
a.label(ls)
srd(56, 20, 1835008); srd(52, 18, 1835008); srd(64, 24, 256); srd(68, 26, WS_BYTES); srd(60, 22, 2097152)
zero_pads()
XSTG = L_RED + 8192
a(f"""v_and_b32 v4, 7, v10
v_lshlrev_b32 v13, 1, v11
v_xor_b32 v4, v4, v13
v_lshlrev_b32 v22, 8, v10
v_lshl_add_u32 v22, v4, 4, v22
v_add_u32 v22, {XSTG}, v22
v_xor_b32 v12, 16, v22
v_lshrrev_b32 v23, 4, v1
v_and_b32 v13, 15, v1
v_xor_b32 v4, v23, v13
v_lshlrev_b32 v4, 4, v4
v_lshl_add_u32 v4, v23, 8, v4
v_lshlrev_b32 v13, 4, v13
v_lshl_add_u32 v13, v23, 13, v13
s_lshl_b32 s72, s79, 11
s_add_u32 s72, s72, {XSTG}
v_add_u32 v23, s72, v4
v_xor_b32 v11, 64, v23
s_lshl_b32 s72, s29, 18
s_lshl_b32 s73, s30, 8
s_add_u32 s90, s72, s73
s_lshl_b32 s72, s79, 16
s_add_u32 s90, s90, s72
s_add_u32 s90, s90, {WS_XD}
s_add_u32 s91, s90, 32768
s_mov_b32 s75, 0x3f803f80""")
mark(1)
a(f"""s_cmp_eq_u32 s28, 4
s_cbranch_scc1 L_w4a
s_waitcnt vmcnt(2)
s_branch L_w4b
L_w4a:
s_waitcnt vmcnt(10)
L_w4b:""")
tag_load()
a(f"""ds_write_b128 v22, v[{XR}:{XR+3}]
ds_write_b128 v12, v[{XR+4}:{XR+7}]
s_waitcnt lgkmcnt(0)
s_barrier
ds_read_b128 v[128:131], v23
ds_read_b128 v[132:135], v11 offset:1024
s_waitcnt lgkmcnt(1)
buffer_store_dwordx4 v[128:131], v13, {WS}, s90 offen sc1
s_waitcnt lgkmcnt(0)
buffer_store_dwordx4 v[132:135], v13, {WS}, s91 offen sc1
s_waitcnt vmcnt(3)
s_cmp_lg_u32 s28, 4
s_cbranch_scc1 L_aux_pub""")
for i in range(4): a(f"v_mov_b32 v{100+i}, 0")
for i in range(32): a(f"v_dot2_f32_bf16 v{100+(i&3)}, v{XS+i}, s75, v{100+(i&3)}")
a("s_nop 2\nv_add_f32 v100, v100, v101\nv_add_f32 v102, v102, v103\nv_add_f32 v100, v100, v102")
def red8(v):
    for m in ("quad_perm:[1,0,3,2]", "quad_perm:[2,3,0,1]", "row_half_mirror"):
        a(f"s_nop 1\nv_add_f32_dpp v{v}, v{v}, v{v} {m} row_mask:0xf bank_mask:0xf")
red8(100)
a("v_mul_f32 v100, 0x3b000000, v100\nv_mov_b32 v101, v100")
for i in range(4): a(f"v_mov_b32 v{102+i}, 0")
for i in range(32):
    t = 106 + 2*(i & 3); ac = 102 + 2*(i & 1)
    a(f"v_lshlrev_b32 v{t}, 16, v{XS+i}\nv_and_b32 v{t+1}, 0xffff0000, v{XS+i}")
    a(f"v_pk_add_f32 v[{t}:{t+1}], v[{t}:{t+1}], v[100:101] neg_lo:[0,1] neg_hi:[0,1]")
    a(f"v_pk_fma_f32 v[{ac}:{ac+1}], v[{t}:{t+1}], v[{t}:{t+1}], v[{ac}:{ac+1}]")
a("v_add_f32 v102, v102, v103\nv_add_f32 v104, v104, v105\nv_add_f32 v102, v102, v104")
red8(102)
a(f"""v_mul_f32 v102, 0x3b000000, v102
v_cvt_pk_bf16_f32 v104, v100, v102
v_and_b32 v105, 0xffff0000, v104
v_add_f32 v105, 0x3727c5ac, v105
v_cvt_pk_bf16_f32 v105, v105, v105
v_and_b32 v105, 0xffff0000, v105
v_sqrt_f32 v105, v105
s_nop 0
v_cvt_pk_bf16_f32 v105, v104, v105
v_and_b32 v104, 0xffff, v104
v_and_b32 v105, 0xffff0000, v105
v_or_b32 v104, v104, v105
v_lshrrev_b32 v24, 3, v1
v_lshlrev_b32 v24, 2, v24
s_lshl_b32 s72, s2, 5
s_add_u32 s72, s72, {WS_ST}
s_mov_b32 exec_lo, 0x01010101
s_mov_b32 exec_hi, 0x01010101
buffer_store_dword v104, v24, {WS}, s72 offen sc1
s_mov_b64 exec, -1""")
a.label("L_aux_pub")
kc_build()
a("s_waitcnt vmcnt(0)")
tag_check()
lnf = a.new("Lnfx")
a(f"""v_mov_b32 v24, {L_CNT}
v_mov_b32 v25, 1
s_mov_b64 exec, 1
ds_add_rtn_u32 v25, v24, v25
s_mov_b64 exec, -1
s_waitcnt lgkmcnt(0)
v_readfirstlane_b32 s72, v25
s_cmp_lg_u32 s72, 3
s_cbranch_scc1 {lnf}
s_lshl_b32 s73, s2, 7
s_add_u32 s73, s73, {WS_FX}""")
flag_store("s73")
a.label(lnf)
mark(2)

a.label("L_p0_join")
ACC = 16; AF = [48, 112]; BF = [80, 144]
a(f"""s_lshr_b32 s84, s30, 3
s_lshr_b32 s72, s29, 1
s_lshl_b32 s72, s72, 2
s_add_u32 s84, s84, s72
s_and_b32 s85, s30, 7
s_and_b32 s72, s29, 1
s_lshl_b32 s72, s72, 3
s_add_u32 s85, s85, s72
v_mov_b32 v214, {OOB}
v_mov_b32 v215, {OOB}
v_mov_b32 v234, {OOB}
s_mul_i32 s88, s85, 224
s_and_b32 s94, s85, 1
s_lshr_b32 s86, s28, 1
s_and_b32 s87, s28, 1
s_lshr_b32 s72, s85, 1
s_lshl_b32 s72, s72, 1
s_add_u32 s72, s72, s87
s_mul_i32 s31, s72, 56
s_mul_i32 s72, s86, 14
s_add_u32 s31, s31, s72
s_lshl_b32 s31, s31, 11
s_add_u32 s31, s31, {WS_W2P}
v_add_u32 v10, 1, v2
v_and_b32 v11, 3, v10
v_mul_u32_u24 v11, {KC_STRIDE}, v11
v_lshrrev_b32 v10, 2, v10
v_lshl_add_u32 v10, v10, 3, v11
v_lshlrev_b32 v11, 4, v3
v_sub_u32 v10, v10, v11
s_lshl_b32 s72, s79, 7
s_add_u32 s73, s80, s72
s_add_u32 s73, s73, 48
v_add_u32 v10, s73, v10
v_lshl_add_u32 v11, v2, 5, v11
s_add_u32 s73, s82, {480-64}
s_sub_u32 s73, s73, s72
v_add_u32 v11, s73, v11
v_lshlrev_b32 v13, 6, v2
v_lshl_add_u32 v13, v3, 4, v13
s_lshl_b32 s72, s28, 10
s_add_u32 s72, s72, {L_XS}
v_add_u32 v13, s72, v13
s_lshl_b32 s72, s83, 2
s_add_u32 s14, s14, s72
s_addc_u32 s15, s15, 0
s_load_dword s93, s[14:15], 0""")
a("s_waitcnt lgkmcnt(0)")
for i in range(32): a(f"v_mov_b32 v{ACC+i}, 0")
if STOP <= 0: a("s_branch L_fin")
a("s_barrier")
mark(4)
a("s_cmp_gt_u32 s28, 3\ns_cbranch_scc1 L_conv_t\ns_cmp_eq_u32 s28, 3\ns_cbranch_scc1 L_conv_w3")
if not OPT.get("pke", 0):
    a("s_cmp_eq_u32 s28, 0\ns_cbranch_scc1 L_conv_go")
    PKL, PKO = 192, 216
    a(f"""v_lshrrev_b32 v208, 5, v1
    v_and_b32 v209, 31, v1
    v_lshlrev_b32 v212, 12, v208
    v_lshl_add_u32 v212, v209, 2, v212
    v_lshrrev_b32 v213, 4, v209
    v_mul_u32_u24 v213, {56*2048}, v213
    v_and_b32 v209, 15, v209
    v_lshl_add_u32 v213, v209, 4, v213
    v_lshl_add_u32 v213, v208, 8, v213
    v_mov_b32 v214, {OOB}
    v_mov_b32 v215, {OOB}
    s_mov_b32 s95, 0
    """)
    a("s_mul_i32 s89, s2, 3\ns_add_u32 s89, s89, s28\ns_sub_u32 s89, s89, 1")
    lx = a.new("Lpkx")
    for u in range(2):
        if u == 1:
            a(f"s_add_u32 s89, s89, 1\ns_add_u32 s72, s2, 768\ns_cmp_eq_u32 s28, 1\ns_cselect_b32 s89, s72, s89\ns_cmp_ge_u32 s89, 896\ns_cbranch_scc1 {lx}\ns_mov_b32 s95, 1")
        a(f"""s_mul_i32 s73, s89, 2341
        s_lshr_b32 s73, s73, 18
        s_mul_i32 s72, s73, 112
        s_sub_u32 s72, s89, s72
        s_and_b32 s77, s72, 1
        s_lshr_b32 s72, s72, 1
        s_lshl_b32 s90, s72, 15
        s_lshl_b32 s91, s73, 7
        s_add_u32 s90, s90, s91
        s_lshl_b32 s91, s77, 13
        s_add_u32 s90, s90, s91""")
        for i in range(8):
            if i == 4: a("s_add_u32 s90, s90, 16384")
            a(f"buffer_load_dword v{PKL+8*u+i}, v212, {W2}, s90 offen offset:{(i&3)*1024}{NT}")
        a(f"""s_mul_i32 s73, s73, 112
        s_add_u32 s73, s73, s72
        s_lshl_b32 s73, s73, 11
        s_lshl_b32 s77, s77, 9
        s_add_u32 s73, s73, s77
        v_add_u32 v{214+u}, s73, v213""")
    a.label(lx)

a("s_branch L_conv_go")
a.label("L_conv_w3")
if not OPT.get("fx0", 0):
    a(f"s_mov_b32 s73, {WS_FX}")
    polln("s73", 4)
    a(f"s_lshl_b32 s73, s83, 13\ns_add_u32 s73, s73, {WS_XD}\ns_mov_b32 m0, {L_XS}\ns_nop 0")
    for q in range(4): a(f"buffer_load_dwordx4 v5, {WS}, s73 offen offset:{1024*q}{LD} lds")
    a(f"s_add_u32 s73, s73, 4096\ns_mov_b32 m0, {L_XS+4096}\ns_nop 0")
    for q in range(4): a(f"buffer_load_dwordx4 v5, {WS}, s73 offen offset:{1024*q}{LD} lds")
    a(f"s_mov_b32 s73, {WS_ST}\ns_mov_b32 m0, {L_ST}\ns_nop 0")
    for q in range(4): a(f"buffer_load_dwordx4 v5, {WS}, s73 offen offset:{1024*q}{LD} lds")
    a(f"s_mov_b32 s73, {WS_ST+4096}\ns_mov_b32 m0, {L_ST+4096}\ns_nop 0")
    for q in range(4): a(f"buffer_load_dwordx4 v5, {WS}, s73 offen offset:{1024*q}{LD} lds")

a("s_branch L_conv_go")
a.label("L_conv_t")
a(f"""s_mul_i32 s89, s30, 57344
s_mul_i32 s72, s79, 14336
s_add_u32 s89, s89, s72
s_and_b32 s72, s29, 1
s_mul_i32 s72, s72, 1792
s_add_u32 s89, s89, s72
v_mul_u32_u24 v234, 3584, v3
v_min_u32 v235, 13, v2
v_lshl_add_u32 v234, v235, 7, v234
""")
a.label("L_conv_go")
def reads(ph, T):
    return [f"ds_read_b64 v[{AF[ph]+4*T}:{AF[ph]+4*T+1}], v10 offset:{512*T+64*ph}",
            f"ds_read_b64 v[{AF[ph]+4*T+2}:{AF[ph]+4*T+3}], v10 offset:{512*T+64*ph+8}",
            f"ds_read_b128 v[{BF[ph]+4*T}:{BF[ph]+4*T+3}], v11 offset:{512*T+64*(1-ph)}"]
allreads = [r for ph in range(2) for T in range(8) for r in reads(ph, T)]
st = {"i": 0}
def issue(k):
    for _ in range(k):
        if st["i"] < len(allreads): a(allreads[st["i"]]); st["i"] += 1
issue(15)
for ph in range(2):
    for T in range(8):
        need = (ph * 8 + T + 1) * 3
        TP = {(0, 0): (4, 0), (0, 5): (5, 0), (1, 0): (6, 0), (1, 5): (7, 0)}
        if (ph, T) in TP:
            w_, r_ = TP[(ph, T)]; lk = a.new("Ltk")
            a(f"s_cmp_lg_u32 s28, {w_}\ns_cbranch_scc1 {lk}\ns_add_u32 s72, s89, {8192*r_}\nbuffer_load_dword v{232+r_}, v234, {W1}, s72 offen\n{lk}:")
        a(f"s_waitcnt lgkmcnt({st['i'] - need})")
        for i in range(T + 1):
            a(f"v_mfma_f32_16x16x32_bf16 v[{ACC+4*T}:{ACC+4*T+3}], v[{AF[ph]+4*i}:{AF[ph]+4*i+3}], v[{BF[ph]+4*(T-i)}:{BF[ph]+4*(T-i)+3}], v[{ACC+4*T}:{ACC+4*T+3}]")
            if i < 3 and st["i"] - need < 15: issue(1)
if not OPT.get("pke", 0):
    a("s_sub_u32 s72, s28, 1\ns_cmp_gt_u32 s72, 1\ns_cbranch_scc1 L_conv_red")
    a(f"""s_mov_b32 s75, 0x05040100
    s_mov_b32 s76, 0x07060302
    s_mov_b32 s90, {WS_W2P}
    s_mov_b32 s91, {WS_W2P+1024}
    s_waitcnt vmcnt(0)""")
    for u in range(2):
        if u == 1: a(f"s_cmp_eq_u32 s95, 0\ns_cbranch_scc1 L_conv_red")
        for c in range(2):
            for q in range(4):
                a(f"v_perm_b32 v{PKO+8*u+4*c+q}, v{PKL+8*u+2*q+1}, v{PKL+8*u+2*q}, s{75+c}")
        a(f"buffer_store_dwordx4 v[{PKO+8*u}:{PKO+3+8*u}], v{214+u}, {WS}, s90 offen sc1")
        a(f"buffer_store_dwordx4 v[{PKO+4+8*u}:{PKO+7+8*u}], v{214+u}, {WS}, s91 offen sc1")

a.label("L_conv_red")
mark(5)

a(f"""s_lshl_b32 s72, s28, 13
s_add_u32 s72, s72, {L_RED}
v_add_u32 v184, s72, v5""")
for T in range(8):
    if T == 7: a("s_nop 5")
    a(f"ds_write_b128 v184, v[{ACC+4*T}:{ACC+4*T+3}] offset:{1024*T}")
a(f"""s_lshl_b32 s72, s28, 10
s_add_u32 s72, s72, {L_RED}
v_add_u32 v186, s72, v5
v_lshlrev_b32 v185, 5, v2
v_lshrrev_b32 v4, 1, v3
v_lshl_add_u32 v185, v4, 4, v185
v_and_b32 v4, 1, v3
v_lshlrev_b32 v4, 3, v4
v_sub_u32 v185, v185, v4
s_lshl_b32 s72, s28, 9
s_add_u32 s72, s72, {L_U[0]+512+8}
v_add_u32 v185, s72, v185
ds_read_b64 v[176:177], v185
ds_read_b64 v[178:179], v185 offset:{L_U[1]-L_U[0]}
s_lshl_b32 s76, s93, 16
s_and_b32 s77, s93, 0xffff0000
v_lshrrev_b32 v187, 1, v2
v_lshlrev_b32 v187, 15, v187
v_lshl_add_u32 v187, v4, 3, v187
v_lshrrev_b32 v4, 1, v3
v_lshl_add_u32 v187, v4, 4, v187
v_and_b32 v4, 1, v2
v_lshl_add_u32 v187, v4, 5, v187
s_lshl_b32 s90, s83, 7
s_lshl_b32 s73, s28, 18
s_add_u32 s90, s90, s73
s_add_u32 s90, s90, {WS_HT}
s_lshl_b32 s73, s28, 8
s_add_u32 s73, s73, s83
s_lshl_b32 s91, s73, 7
s_add_u32 s91, s91, {WS_F2}
s_cmp_gt_u32 s28, 3
s_cbranch_scc1 L_nvw
s_waitcnt vmcnt(0)
L_nvw:
s_waitcnt lgkmcnt(0)
s_barrier""")
mark(6)
P = 48; KV, XP, LN, Y, STT = 120, 128, 136, 144, 152
a(f"ds_read_b128 v[116:119], v13 offset:{L_ST-L_XS}\nds_read_b128 v[112:115], v13")
for w in range(8): a(f"ds_read_b128 v[{P+4*w}:{P+4*w+3}], v186 offset:{8192*w}")
for c in range(2):
    d0, d1 = 176 + 2*c, 177 + 2*c
    a(f"v_lshlrev_b32 v{KV+6+c}, 16, v{d0}\nv_and_b32 v{KV+4+c}, 0xffff0000, v{d0}\nv_lshlrev_b32 v{KV+2+c}, 16, v{d1}\nv_and_b32 v{KV+c}, 0xffff0000, v{d1}")
a("s_waitcnt lgkmcnt(8)")
for r in range(4): a(f"v_and_b32 v{STT+r}, 0xffff0000, v{116+r}")
for r in range(4): a(f"v_rcp_f32 v{STT+r}, v{STT+r}")
for r in range(4): a(f"v_lshlrev_b32 v{STT+4+r}, 16, v{116+r}\nv_lshlrev_b32 v{XP+2*r}, 16, v{112+r}\nv_and_b32 v{XP+1+2*r}, 0xffff0000, v{112+r}")
for r in range(4):
    for c in range(2): a(f"v_sub_f32 v{LN+2*r+c}, v{XP+2*r+c}, v{STT+4+r}")
for r in range(4):
    for c in range(2): a(f"v_mul_f32 v{LN+2*r+c}, v{LN+2*r+c}, v{STT+r}")
a("s_waitcnt lgkmcnt(0)")
for c in range(2):
    b = P + 16*c
    for h in range(2):
        a(f"v_pk_add_f32 v[{b+2*h}:{b+2*h+1}], v[{b+2*h}:{b+2*h+1}], v[{b+4+2*h}:{b+5+2*h}]")
        a(f"v_pk_add_f32 v[{b+8+2*h}:{b+9+2*h}], v[{b+8+2*h}:{b+9+2*h}], v[{b+12+2*h}:{b+13+2*h}]")
    for r in range(4): a(f"v_add_f32 v{Y+2*r+c}, v{b+r}, v{b+8+r}")
for r in range(4): a(f"v_pk_fma_f32 v[{Y+2*r}:{Y+1+2*r}], v[{KV+2*r}:{KV+1+2*r}], s[76:77], v[{Y+2*r}:{Y+1+2*r}]")
for r in range(4): a(f"v_pk_fma_f32 v[{Y+2*r}:{Y+1+2*r}], v[{LN+2*r}:{LN+1+2*r}], v[{Y+2*r}:{Y+1+2*r}], v[{XP+2*r}:{XP+1+2*r}]")
a(f"""v_cvt_pk_bf16_f32 v160, v{Y}, v{Y+2}
v_cvt_pk_bf16_f32 v161, v{Y+4}, v{Y+6}
v_cvt_pk_bf16_f32 v162, v{Y+1}, v{Y+3}
v_cvt_pk_bf16_f32 v163, v{Y+5}, v{Y+7}
s_nop 1
v_permlane16_swap_b32 v160, v162
v_permlane16_swap_b32 v161, v163
s_nop 1
buffer_store_dwordx4 v[160:163], v187, {WS}, s90 offen sc1
s_waitcnt vmcnt(0)""")
flag_store("s91")
mark(7)
if STOP <= 1: a("s_branch L_fin")
a("s_barrier")
lw7, lw7d = a.new("Lw7"), a.new("Lw7d")
a(f"s_cmp_eq_u32 s28, 7\ns_cbranch_scc1 {lw7}")
KPRE = OPT.get("kpre", 8)
w1_pattern(133, "s28")
a("s_lshl_b32 s95, s28, 10")
def w1dma(ks): return f"s_add_u32 m0, s95, {ks*7168}\ns_add_u32 s72, s88, {ks*114688}\nbuffer_load_dwordx4 v133, {W1}, s72 offen lds"
for ks in range(KPRE): a(w1dma(ks))
a(f"s_branch {lw7d}")
a.label(lw7)
a(f"s_lshr_b32 s73, s84, 1\ns_lshl_b32 s73, s73, 15\ns_add_u32 s73, s73, {WS_F2}")
polln("s73", 4)
a.label(lw7d)
GA, ONE, CSH = 16, 56, 60
HFR = [64, 72]
WF = [80, 96]
a(f"""v_lshrrev_b32 v8, 1, v3
v_lshlrev_b32 v8, 4, v8
v_and_b32 v4, 1, v3
v_lshl_add_u32 v8, v4, 2, v8
v_lshrrev_b32 v4, 2, v2
v_add_u32 v8, v8, v4
v_and_b32 v4, 3, v2
v_lshlrev_b32 v4, 3, v4
v_and_b32 v9, 7, v8
v_lshl_add_u32 v9, v9, 5, v4
v_lshrrev_b32 v190, 1, v3
v_lshl_add_u32 v9, v190, 10, v9
v_lshrrev_b32 v190, 5, v1
v_lshlrev_b32 v190, 9, v190
v_bfe_u32 v191, v1, 1, 3
v_lshl_add_u32 v190, v191, 6, v190
v_bfe_u32 v191, v1, 4, 1
v_lshl_add_u32 v190, v191, 5, v190
v_and_b32 v191, 1, v1
v_lshl_add_u32 v190, v191, 4, v190
v_mul_u32_u24 v8, 224, v8
v_add_u32 v8, v8, v4
s_mul_i32 s92, s79, 12288
s_add_u32 s92, s92, {L_HR}
v_add_u32 v9, s92, v9
s_lshl_b32 s72, s94, 5
s_lshl_b32 s73, s78, 7
s_add_u32 s72, s72, s73
v_add_u32 v10, s72, v8
v_add_u32 v11, 57344, v10
s_mul_i32 s73, s94, 192
s_sub_u32 s73, 192, s73
v_add_u32 v12, s73, v8
v_add_u32 v13, 57344, v12
s_add_u32 s72, s28, s94
s_lshl_b32 s72, s72, 5
s_cmp_eq_u32 s28, 6
s_cselect_b32 s72, s73, s72
v_add_u32 v188, s72, v8
v_add_u32 v189, 57344, v188
s_lshl_b32 s90, s84, 3
s_lshl_b32 s72, s79, 1
s_add_u32 s90, s90, s72
s_lshl_b32 s91, s90, 14
s_add_u32 s91, s91, {WS_HT}""")
for i in range(40): a(f"v_mov_b32 v{GA+i}, 0")
for i in range(4): a(f"v_mov_b32 v{ONE+i}, 0x3f803f80")
a("s_waitcnt vmcnt(0)")
mark(8)
a("s_barrier")
mark(9)
def hdma(ks): return f"s_add_u32 m0, s92, {(ks % 6)*2048}\ns_add_u32 s74, s91, {ks*2048}\nbuffer_load_dwordx4 v190, {WS}, s74 offen{LD} lds\nbuffer_load_dwordx4 v190, {WS}, s74 offen offset:1024{LD} lds"
a(f"""s_lshl_b32 s73, s84, 17
s_and_b32 s72, s30, 7
s_lshl_b32 s72, s72, 14
s_add_u32 s73, s73, s72
s_and_b32 s72, s28, 1
s_lshl_b32 s72, s72, 13
s_add_u32 s73, s73, s72
s_add_u32 s73, s73, {WS_HT}
s_cmp_lt_u32 s28, 6
s_cbranch_scc1 L_noht
buffer_load_dword v135, v14, {WS}, s73 offen
L_noht:
s_mul_i32 s89, s30, 28672
s_lshl_b32 s72, s79, 13
s_min_u32 s72, s72, 20480
s_add_u32 s89, s89, s72
s_and_b32 s72, s29, 1
s_mul_i32 s72, s72, 917504
s_add_u32 s89, s89, s72
s_add_u32 s89, s89, {WS_W2P}""")
a("s_cmp_eq_u32 s78, 1\ns_cbranch_scc1 L_nohp")
for ks in range(6): a(hdma(ks))
a.label("L_nohp")
lcs = a.new("Lcs")
a(f"s_cmp_eq_u32 s28, 7\ns_cbranch_scc1 {lcs}")
CF = 80
def csrd(ks):
    for hq in range(2): a(f"ds_read_b64_tr_b16 v[{CF+4*(ks%7)+2*hq}:{CF+4*(ks%7)+2*hq+1}], v{188+(ks>>3)} offset:{(ks%8)*7168 + hq*1792}")
for ks in range(min(7, KPRE)): csrd(ks)
for ks in range(KPRE):
    a(f"s_waitcnt lgkmcnt({2*min(6, KPRE-1-ks)})")
    a(f"v_mfma_f32_16x16x32_bf16 v[{CSH}:{CSH+3}], v[{CF+4*(ks%7)}:{CF+4*(ks%7)+3}], v[{ONE}:{ONE+3}], {'0' if ks == 0 else f'v[{CSH}:{CSH+3}]'}")
    if ks + 7 < KPRE: csrd(ks + 7)
a.label(lcs)
a("s_cmp_eq_u32 s78, 1\ns_cbranch_scc1 L_g1_b")
def gemm1(fh):
    ns = 4 if fh == 0 else 3
    def rdw(ks):
        o = []; hi = ks >= 8
        for sl in range(ns):
            for hq in range(2):
                six = (fh == 1 and sl == 2)
                base = (12 + hi) if six else (10 + hi)
                off = (ks - 8*hi)*7168 + hq*1792 + (0 if six else sl*32)
                r = WF[ks & 1] + 4*sl + 2*hq
                o.append(f"ds_read_b64_tr_b16 v[{r}:{r+1}], v{base} offset:{off}")
        return o
    def rdh(ks):
        o = []
        for t in range(2):
            for hq in range(2):
                r = HFR[ks & 1] + 4*t + 2*hq
                o.append(f"ds_read_b64_tr_b16 v[{r}:{r+1}], v9 offset:{(ks % 6)*2048 + t*256 + hq*512}")
        return o
    W2L = w2_loads(0, 14)
    vm = [x for k in range(6) for x in (("h0", k), ("h", k))] if fh == 0 else []
    def vmw(tag): return len(vm) - 1 - vm.index(tag)
    for x in rdw(0): a(x)
    if fh == 0: a(f"s_waitcnt vmcnt({vmw(('h', 1))})")
    a("s_barrier")
    for x in rdh(0): a(x)
    wi = 0
    for ks in range(16):
        fill = []
        if ks % 2 == 1 and ks < 15:
            if fh == 0: fill.append(("wait", ("h", ks + 2), None))
            if KPRE <= ks + 2 and KPRE < 16: fill.append(("wait", ("d", min(15, ks + 2)), None))
            fill.append(("x", None, "s_barrier"))
            for k2 in (ks + 5, ks + 6):
                if k2 < 16 and fh == 0: fill.append(("vm2", ("h", k2), hdma(k2)))
        if ks < 15: fill += [("x", None, x) for x in rdh(ks + 1) + rdw(ks + 1)]
        nd = (16 - KPRE + 3) // 4
        for k2 in range(KPRE + nd*ks, min(16, KPRE + nd*(ks+1))):
            lk = a.new("Lw1")
            fill.append(("vm", ("d", k2), (f"s_cmp_eq_u32 s28, 7\ns_cbranch_scc1 {lk}\n" if fh == 1 else "") + w1dma(k2) + (f"\n{lk}:" if fh == 1 else "")))
        if ks + 1 >= KPRE and ks < 15:
            for hq in range(2): fill.append(("x", None, f"ds_read_b64_tr_b16 v[{112+4*((ks+1)&1)+2*hq}:{113+4*((ks+1)&1)+2*hq}], v{188+((ks+1)>>3)} offset:{((ks+1)%8)*7168 + hq*1792}"))
        kt = OPT.get("kt", 1)
        if fh == 1 and kt <= ks < kt + 8 and (ks - kt) % 2 == 0:
            j = (ks - kt) // 2; lk = a.new("Ltg")
            fill.append(("vm", ("t", j), f"s_cmp_eq_u32 s79, {j & 3}\ns_cselect_b32 s72, s89, {OOB}\nbuffer_load_dword v134, v14, {WS}, s72 offen"))
        for _ in range(OPT.get("pk", 3)):
            if wi < OPT.get("nl", 18) and ks >= (OPT.get("k0", 10) if fh == 0 else OPT.get("k1", 10)): fill.append(("vm", ("w", wi), W2L[wi])); wi += 1
        mf = []
        for sl in range(ns):
            for t in range(2):
                ac = GA + (sl*2 + t)*4; h = HFR[ks & 1] + 4*t
                mf.append(f"v_mfma_f32_16x16x32_bf16 v[{ac}:{ac+3}], v[{WF[ks&1]+4*sl}:{WF[ks&1]+4*sl+3}], v[{h}:{h+3}], v[{ac}:{ac+3}]")
        if fh == 1:
            for t in range(2):
                h = HFR[ks & 1] + 4*t
                mf.append(f"v_mfma_f32_16x16x32_bf16 v[{40+4*t}:{43+4*t}], v[{h}:{h+3}], v[{h}:{h+3}], v[{40+4*t}:{43+4*t}]")
                mf.append(f"v_mfma_f32_16x16x32_bf16 v[{48+4*t}:{51+4*t}], v[{ONE}:{ONE+3}], v[{h}:{h+3}], v[{48+4*t}:{51+4*t}]")
        if ks >= KPRE: mf.append(f"v_mfma_f32_16x16x32_bf16 v[{CSH}:{CSH+3}], v[{112+4*(ks&1)}:{115+4*(ks&1)}], v[{ONE}:{ONE+3}], v[{CSH}:{CSH+3}]")
        a("s_waitcnt lgkmcnt(0)")
        if OPT.get("g1m") and ks in (0, 4, 8, 12): mark({0: 1, 4: 2, 8: 3, 12: 14}[ks])
        k = 0
        per = (len(fill) + len(mf) - 1) // len(mf)
        for m, x in enumerate(mf):
            a(x)
            tgt = min(len(fill), per*(m+1))
            while k < tgt:
                kind, tag, txt = fill[k]; k += 1
                if kind == "vm": a(txt); vm.append(tag)
                elif kind == "vm2": a(txt); vm.append(("h0", tag[1])); vm.append(tag)
                elif kind == "wait": a(f"s_waitcnt vmcnt({vmw(tag)})")
                else: a(txt)
    mark(10)
    for _ in range(28 - wi):
        a(W2L[wi]); wi += 1
    a("s_barrier")
    if OPT.get("e1m"): mark(1)
    lc2 = a.new("Lc2")
    a(f"""v_lshlrev_b32 v10, 4, v3
    s_lshl_b32 s72, s28, 6
    v_add_u32 v4, s72, v10
    s_mov_b32 exec_lo, 0x00010001
    s_mov_b32 exec_hi, 0x00010001
    ds_write_b128 v4, v[{CSH}:{CSH+3}] offset:{L_CS}
    s_mov_b64 exec, -1
    s_lshl_b32 s72, s79, 8
    v_lshlrev_b32 v11, 3, v2
    v_add_u32 v11, s72, v11""")
    if fh == 1:
        a(f"""v_and_b32 v4, 3, v2
        v_cmp_eq_u32 s[72:73], 1, v4
        v_cmp_eq_u32 s[74:75], 2, v4
        v_cmp_eq_u32 s[76:77], 3, v4
        v_lshrrev_b32 v4, 2, v2
        v_cmp_eq_u32 vcc, v4, v3""")
        for t in range(2):
            g = 40 + 4*t
            a(f"""v_cndmask_b32_e64 v{g}, v{g}, v{g+1}, s[72:73]
            v_cndmask_b32_e64 v{g}, v{g}, v{g+2}, s[74:75]
            v_cndmask_b32_e64 v{g+1}, v{g}, v{g+3}, s[76:77]
            v_mov_b32 v{g}, v{48+4*t}""")
        a(f"""s_mov_b64 exec, vcc
        ds_write_b64 v11, v[40:41] offset:{L_SX}
        ds_write_b64 v11, v[44:45] offset:{L_SX+128}
        s_mov_b64 exec, -1""")
    CSR = 80
    a(f"""s_mul_i32 s72, s90, 57344
    s_add_u32 s72, s72, {WS_HP}
    s_mul_i32 s73, s85, 7
    s_add_u32 s74, s73, s94
    s_lshr_b32 s74, s74, 1
    s_lshl_b32 s74, s74, 10
    s_add_u32 s74, s74, s72
    s_mul_i32 s75, s94, 6
    s_sub_u32 s75, 6, s75
    s_add_u32 s75, s75, s73
    s_lshr_b32 s75, s75, 1
    s_lshl_b32 s75, s75, 10
    s_add_u32 s75, s75, s72
    s_lshl_b32 s76, s94, 3
    s_add_u32 s75, s75, s76
    v_add_u32 v12, 57344, v5
    s_waitcnt lgkmcnt(0)
    s_barrier
    ds_read_b64 v[64:65], v11 offset:{L_SX}
    ds_read_b64 v[66:67], v11 offset:{L_SX+128}""")
    for sl in range(ns): a(f"ds_read_b128 v[{CSR+4*sl}:{CSR+4*sl+3}], v10 offset:{L_CS + 64*(sl + 4*fh)}")
    a(f"s_waitcnt lgkmcnt({ns})")
    for t in range(2):
        s_, q_ = 64 + 2*t, 65 + 2*t
        a(f"""v_mul_f32 v{s_}, 0x3b000000, v{s_}
        v_mul_f32 v{q_}, 0x3b000000, v{q_}
        v_fma_f32 v{q_}, -v{s_}, v{s_}, v{q_}
        v_max_f32 v{q_}, 0, v{q_}
        v_cvt_pk_bf16_f32 v{s_}, v{s_}, v{q_}
        v_lshlrev_b32 v{70+4*t}, 16, v{s_}
        v_lshlrev_b32 v{71+4*t}, 16, v{s_}
        v_and_b32 v{q_}, 0xffff0000, v{s_}
        v_add_f32 v{q_}, 0x3727c5ac, v{q_}
        v_cvt_pk_bf16_f32 v{q_}, v{q_}, v{q_}
        v_and_b32 v{q_}, 0xffff0000, v{q_}
        v_sqrt_f32 v{q_}, v{q_}""")
    for t in range(2):
        q_ = 65 + 2*t
        a(f"""v_cvt_pk_bf16_f32 v{q_}, v{q_}, v{q_}
        v_and_b32 v{q_}, 0xffff0000, v{q_}
        v_rcp_f32 v{68+4*t}, v{q_}
        v_rcp_f32 v{69+4*t}, v{q_}""")
    a("s_waitcnt lgkmcnt(0)")
    TT = 96
    if OPT.get("e1m"): mark(2)
    for t in range(2): a(f"v_mul_f32 v{128+2*t}, 0xbfb8aa3b, v{68+4*t}\nv_mul_f32 v{129+2*t}, 0xbfb8aa3b, v{68+4*t}")
    a("v_mov_b32 v132, 1.0\nv_mov_b32 v133, 1.0")
    groups = [(0, 1), (2, 3)] if fh == 0 else [(0, 1), (2,)]
    for gi, grp in enumerate(groups):
        prs = [(sl, t, h) for sl in grp for t in range(2) for h in range(2)]
        def AC(sl, t, h): return GA + (sl*2+t)*4 + 2*h
        def T_(i): return TT + 16*gi + 2*i
        for i, (sl, t, h) in enumerate(prs):
            ac = AC(sl, t, h)
            a(f"v_pk_fma_f32 v[{ac}:{ac+1}], v[{CSR+4*sl+2*h}:{CSR+4*sl+2*h+1}], v[{70+4*t}:{71+4*t}], v[{ac}:{ac+1}] neg_lo:[0,1,0] neg_hi:[0,1,0]")
        for i, (sl, t, h) in enumerate(prs):
            ac = AC(sl, t, h)
            a(f"v_pk_mul_f32 v[{T_(i)}:{T_(i)+1}], v[{ac}:{ac+1}], v[{128+2*t}:{129+2*t}]")
        for i, (sl, t, h) in enumerate(prs):
            ac = AC(sl, t, h)
            a(f"v_exp_f32 v{T_(i)}, v{T_(i)}\nv_exp_f32 v{T_(i)+1}, v{T_(i)+1}\nv_pk_mul_f32 v[{ac}:{ac+1}], v[{ac}:{ac+1}], v[{68+4*t}:{69+4*t}]")
        for i in range(len(prs)): a(f"v_pk_add_f32 v[{T_(i)}:{T_(i)+1}], v[{T_(i)}:{T_(i)+1}], v[132:133]")
        for i in range(len(prs)): a(f"v_rcp_f32 v{T_(i)}, v{T_(i)}\nv_rcp_f32 v{T_(i)+1}, v{T_(i)+1}")
        a("s_nop 0")
        for i, (sl, t, h) in enumerate(prs):
            ac = AC(sl, t, h)
            a(f"v_pk_mul_f32 v[{ac}:{ac+1}], v[{ac}:{ac+1}], v[{T_(i)}:{T_(i)+1}]")
        for t in range(2):
            o = TT + 16*gi + 4*t
            for j, sl in enumerate(grp):
                ac = AC(sl, t, 0)
                a(f"v_cvt_pk_bf16_f32 v{o+2*j}, v{ac}, v{ac+1}\nv_cvt_pk_bf16_f32 v{o+2*j+1}, v{ac+2}, v{ac+3}")
            if len(grp) == 2: a(f"buffer_store_dwordx4 v[{o}:{o+3}], v{5 if t == 0 else 12}, {WS}, s74 offen offset:{1024*(gi + 2*fh)} sc1")
            else: a(f"buffer_store_dwordx2 v[{o}:{o+1}], v{5 if t == 0 else 12}, {WS}, s75 offen sc1")

    return wi
WI = gemm1(0); a("s_branch L_g1_done")
a.label("L_g1_b"); gemm1(1)
a.label("L_g1_done")
if OPT.get("e1m"): mark(3)
A3 = 16; HF = [64, 96]
a(f"""s_lshl_b32 s73, s84, 1
s_lshr_b32 s72, s79, 1
s_add_u32 s73, s73, s72
s_lshl_b32 s73, s73, 4
s_add_u32 s73, s73, s85
s_lshl_b32 s73, s73, 2
s_and_b32 s72, s79, 1
s_lshl_b32 s72, s72, 1
s_add_u32 s73, s73, s72
s_add_u32 s73, s73, s78
s_lshl_b32 s73, s73, 7
s_add_u32 s73, s73, {WS_F3}
s_lshl_b32 s90, s84, 1
s_add_u32 s90, s90, s94
s_lshl_b32 s89, s90, 13
s_add_u32 s89, s89, {WS_F3}
s_lshl_b32 s90, s90, 2
s_mul_i32 s91, s86, 14
s_add_u32 s91, s91, s87
s_lshl_b32 s91, s91, 10
s_add_u32 s91, s91, {WS_HP}""")
for u in range(4):
    a(f"""s_add_u32 s72, s86, {u}
    s_and_b32 s72, s72, 3
    s_add_u32 s72, s72, s90
    s_mul_i32 s72, s72, 57344
    s_add_u32 s{40+u}, s72, s91""")
a(f"""s_lshl_b32 s92, s86, 13
s_lshl_b32 s72, s87, 12
s_add_u32 s93, s92, s72
v_add_u32 v10, s92, v5
s_add_u32 s90, s90, s86
s_lshr_b32 s95, s90, 1
s_lshl_b32 s95, s95, 15
s_and_b32 s72, s90, 1
s_lshl_b32 s72, s72, 5
s_add_u32 s95, s95, s72
s_lshr_b32 s72, s85, 1
s_lshl_b32 s72, s72, 1
s_add_u32 s72, s72, s87
s_lshl_b32 s72, s72, 11
s_add_u32 s95, s95, s72
s_add_u32 s95, s95, {WS_HT}
v_lshlrev_b32 v11, 9, v3
v_lshl_add_u32 v11, v2, 1, v11
v_add_u32 v12, 65536, v10
v_add_u32 v13, 0x20000, v10
s_waitcnt vmcnt(0)""")
flag_store("s73")
for x in w2_loads(0, 14)[WI:]: a(x)
mark(11)
if STOP <= 2: a("s_branch L_fin")
for e in range(4):
    a(f"buffer_load_short_d16 v{128+e}, v11, {WS}, s95 offen offset:{128*e} sc1\nbuffer_load_short_d16_hi v{132+e}, v11, {WS}, s95 offen offset:{128*e+64} sc1")
for i in range(32): a(f"v_mov_b32 v{A3+i}, 0")
lnp = a.new("Lnp3")
a(f"s_cmp_lg_u32 s28, 7\ns_cbranch_scc1 {lnp}")
polln("s89", 1)
a.label(lnp)
a("s_barrier")
mark(12)
def stage_dma(s):
    return [f"s_add_u32 m0, s93, {(s % 5)*32768 + u*1024}\ns_add_u32 s72, s{40+u}, {2048*s}\nbuffer_load_dwordx4 v5, {WS}, s72 offen{LD} lds" for u in range(4)]
for s in range(5):
    for x in stage_dma(s): a(x)
for s in range(7):
    issued = min(7, max(5, s + 4))
    a(f"s_waitcnt vmcnt({4*(issued - s - 1)})\ns_barrier")
    if s >= 1 and s + 4 <= 6:
        for x in stage_dma(s + 4): a(x)
    sl = s % 5
    base = 10 + [0, 0, 2, 2, 3][sl]; off0 = [0, 32768, 0, 32768, 0][sl]
    hf = HF[s & 1]
    for j in range(8): a(f"ds_read_b128 v[{hf+4*j}:{hf+4*j+3}], v{base} offset:{off0 + 1024*j}")
    for k2 in range(2):
        kk = 2*s + k2; b = w2reg(kk)
        for u in range(4):
            a(f"s_waitcnt lgkmcnt({7 - (k2*4+u)})")
            for t in range(2):
                ac = A3 + (u*2+t)*4
                a(f"v_mfma_f32_16x16x32_bf16 v[{ac}:{ac+3}], v[{b+4*t}:{b+4*t+3}], v[{hf+16*k2+4*u}:{hf+16*k2+4*u+3}], v[{ac}:{ac+3}]")
mark(13)
a("s_barrier")
for u in range(1, 4):
    a(f"""s_add_u32 s72, s86, {u}
    s_and_b32 s72, s72, 3
    s_lshl_b32 s73, s87, 2
    s_add_u32 s72, s72, s73
    s_mul_i32 s72, s72, 6144
    s_add_u32 s72, s72, {(u-1)*2048}
    v_add_u32 v{10+u}, s72, v5""")
a("""s_lshl_b32 s73, s87, 2
s_add_u32 s72, s86, s73
s_mul_i32 s72, s72, 6144
v_add_u32 v10, s72, v5""")
for u in range(1, 4):
    for t in range(2):
        ac = A3 + (u*2+t)*4
        a(f"ds_write_b128 v{10+u}, v[{ac}:{ac+3}] offset:{1024*t}")
a("""s_lshl_b32 s72, s90, 14
s_lshr_b32 s73, s85, 1
s_lshl_b32 s73, s73, 7
s_add_u32 s72, s72, s73
s_lshl_b32 s73, s87, 6
s_add_u32 s72, s72, s73
v_lshlrev_b32 v9, 10, v2
v_lshl_add_u32 v9, v3, 4, v9""")
for e in range(4): a(f"v_lshlrev_b32 v{96+e}, 16, v{128+e}\nv_and_b32 v{100+e}, 0xffff0000, v{132+e}")
a("s_waitcnt lgkmcnt(0)\ns_barrier")
for j in range(6): a(f"ds_read_b128 v[{64+4*j}:{67+4*j}], v10 offset:{1024*j}")
for t in range(2):
    ac = A3 + t*4
    for h in range(2): a(f"v_pk_add_f32 v[{ac+2*h}:{ac+2*h+1}], v[{ac+2*h}:{ac+2*h+1}], v[{96+4*t+2*h}:{97+4*t+2*h}]")
a("s_waitcnt lgkmcnt(0)")
for t in range(2):
    ac = A3 + t*4
    for h in range(2):
        a(f"v_pk_add_f32 v[{ac+2*h}:{ac+2*h+1}], v[{ac+2*h}:{ac+2*h+1}], v[{64+4*t+2*h}:{65+4*t+2*h}]")
        a(f"v_pk_add_f32 v[{72+4*t+2*h}:{73+4*t+2*h}], v[{72+4*t+2*h}:{73+4*t+2*h}], v[{80+4*t+2*h}:{81+4*t+2*h}]")
for t in range(2):
    ac = A3 + t*4
    for h in range(2): a(f"v_pk_add_f32 v[{ac+2*h}:{ac+2*h+1}], v[{ac+2*h}:{ac+2*h+1}], v[{72+4*t+2*h}:{73+4*t+2*h}]")
for r in range(4): a(f"v_cvt_pk_bf16_f32 v{104+r}, v{A3+r}, v{A3+4+r}")
a(f"buffer_store_dwordx4 v[104:107], v9, {OUT}, s72 offen" + ["", " nt", " sc1", " sc0 sc1"][OPT.get("ost", 0)])
a.label("L_fin")
if OPT.get("dbg"):
    a(f"""s_waitcnt vmcnt(0)
    s_memrealtime s[98:99]
    s_waitcnt lgkmcnt(0)
    s_and_b32 s72, s2, 31
    s_or_b32 s72, s72, s28
    s_cmp_lg_u32 s72, 0
    s_cbranch_scc1 L_end
    s_not_b32 s96, s96
    v_mov_b32 v16, s96
    v_mov_b32 v17, s98
    v_mov_b32 v4, 16
    s_mov_b64 exec, 1
    buffer_atomic_umax v16, v4, {DBG}, 0 offen
    buffer_atomic_umax v17, v4, {DBG}, 0 offen offset:4
    s_mov_b64 exec, -1""")
if STAMP:
    a(f"""s_mov_b64 exec, -1
    s_waitcnt vmcnt(0) lgkmcnt(0)
    s_memrealtime s[98:99]
    s_waitcnt lgkmcnt(0)
    v_writelane_b32 v15, s96, 0
    v_writelane_b32 v15, s98, 15
    s_lshl_b32 s72, s2, 9
    s_lshl_b32 s73, s28, 6
    s_add_u32 s72, s72, s73
    s_add_u32 s72, s72, {WS_STAMP}
    v_lshlrev_b32 v4, 2, v1
    s_mov_b64 exec, 0xffff
    buffer_store_dword v15, v4, {WS}, s72 offen
    s_add_u32 s72, s72, {0x100000 - 64}
    s_mov_b32 exec_lo, 0xffff0000
    buffer_store_dword v15, v4, {WS}, s72 offen""")
a.label("L_end")
a("s_endpgm")
a.raw(f""".section .rodata,"a"
.p2align 6
.amdhsa_kernel {NAME}
  .amdhsa_next_free_vgpr 256
  .amdhsa_next_free_sgpr 102
  .amdhsa_accum_offset 256
  .amdhsa_group_segment_fixed_size 0
  .amdhsa_kernarg_size 96
  .amdhsa_user_sgpr_count 2
  .amdhsa_user_sgpr_kernarg_segment_ptr 1
  .amdhsa_system_sgpr_workgroup_id_x 1
.end_amdhsa_kernel""")
HEADER = open("sequential_preLN__ssm_conv_h3__dense_activation_silu__prompt.s.ref").read().split("; Override launch")[0]
print(HEADER + f"; @launch grid=(256,1,1) block=(512,1,1) lds={LDS_BYTES}\n" + '.amdgcn_target "amdgcn-amd-amdhsa--gfx950"\n.text\n' + a.text())
```

```python
import sys
STAMP = "stamp" in sys.argv[1:]
STOP = 99
OPT = {"nt": 1, "fast": 0}
for x in sys.argv[1:]:
    if x.startswith("stop="): STOP = int(x[5:])
    elif "=" in x: k, v = x.split("="); OPT[k] = int(v)
NT = " nt" if OPT["nt"] else ""

WS_KVT = 0
WS_XD  = 2 << 20
WS_ST  = 4 << 20
WS_HT  = 6 << 20
WS_W2P = 10 << 20
WS_HP  = 12 << 20
WS_F1  = 20 << 20
WS_FX  = WS_F1 + 0x20000
WS_FC  = WS_F1 + 0x30000
WS_F2  = WS_F1 + 0x40000
WS_F3  = WS_F1 + 0x80000
WS_STAMP = 0x4000000
WS_BYTES = 268435456
OOB = 0x7FF00000
SPIN = 40000

W1_EARLY = 0
L_RED = 28672
L_XS = L_RED + 65536
L_ST = L_XS + 8192
L_U = [114688, 114688 + 4608]
L_KC = [123904, 123904 + 16640]
KC_STRIDE = 4160
L_CNT = 157184
L_MODE = 157188
L_HR = 114688
L_CS = 0
L_SX = 1024
LDS_BYTES = 163840
NAME = "sequential_preLN__ssm_conv_h3__dense_activation_silu__prompt_kernel"

class A:
    def __init__(s): s.l = []; s.uid = 0
    def __call__(s, txt):
        for ln in txt.strip("\n").split("\n"):
            if ln.strip(): s.l.append(("    " + ln.strip()) if not ln.strip().endswith(":") else ln.strip())
    def label(s, n): s.l.append(n + ":")
    def raw(s, t): s.l.append(t)
    def new(s, p="L"): s.uid += 1; return f"{p}_{s.uid}"
    def text(s): return "\n".join(s.l) + "\n"
a = A()
def srd(d, b, n):
    a(f"s_mov_b32 s{d}, s{b}\ns_mov_b32 s{d+1}, s{b+1}\ns_mov_b32 s{d+2}, {n}\ns_mov_b32 s{d+3}, 0x00020000")
def mark(i):
    if STAMP: a(f"s_memrealtime s[98:99]\ns_memtime s[100:101]\ns_waitcnt lgkmcnt(0)\nv_writelane_b32 v15, s98, {i}\nv_writelane_b32 v15, s100, {16+i}")
X, K, V, SK, SSM, W1, W2, OUT, DBG, WS = [f"s[{32+4*i}:{35+4*i}]" for i in range(10)]

def tag_load():
    a(f"v_mov_b32 v4, 0\nbuffer_load_dwordx2 v[6:7], v4, {DBG}, 0 offen sc1")
def tag_check():
    l0, l1 = a.new("Ltag"), a.new("Ltagd")
    a(f"s_mov_b32 s72, {SPIN}")
    a.label(l0)
    a(f"""v_readfirstlane_b32 s73, v6
    s_cmp_lg_u32 s73, 0
    s_cbranch_scc1 {l1}
    s_sub_u32 s72, s72, 1
    s_cmp_eq_u32 s72, 0
    s_cbranch_scc1 {l1}
    v_mov_b32 v4, 0
    buffer_load_dwordx2 v[6:7], v4, {DBG}, 0 offen sc1
    s_waitcnt vmcnt(0)
    s_branch {l0}""")
    a.label(l1)
def flag_store(soff):
    a(f"""v_mov_b32 v4, 0
    s_mov_b64 exec, 1
    buffer_store_dwordx2 v[6:7], v4, {WS}, {soff} offen sc1
    s_mov_b64 exec, -1""")
def polln(sbase, n, vt=184, preissued=False, nowait=0):
    M = ["s[4:5]", "s[6:7]", "s[8:9]", "s[16:17]"]
    l0, l1, l2 = a.new("Lpn"), a.new("Lpnd"), a.new("Lpnc")
    for i in range(n): a(f"s_mov_b64 {M[i]}, -1")
    a(f"s_mov_b32 s72, {SPIN}")
    if preissued: a(f"s_branch {l2}")
    a.label(l0)
    for i in range(n):
        sk = a.new("Lsk")
        a(f"s_mov_b64 exec, {M[i]}\ns_add_u32 s77, {sbase}, {8192*i}\ns_cbranch_execz {sk}\nbuffer_load_dwordx2 v[{vt+2*i}:{vt+2*i+1}], v14, {WS}, s77 offen sc1")
        a.label(sk)
    a("s_mov_b64 exec, -1")
    a.label(l2)
    a("s_waitcnt vmcnt(0)")
    for i in range(n):
        a(f"v_cmp_ne_u64 vcc, v[{vt+2*i}:{vt+2*i+1}], v[6:7]\ns_and_b64 {M[i]}, {M[i]}, vcc")
    a(f"s_mov_b64 s[10:11], {M[0]}")
    for i in range(1, n): a(f"s_or_b64 s[10:11], s[10:11], {M[i]}")
    a(f"""s_sub_u32 s72, s72, 1
    s_cmp_eq_u32 s72, 0
    s_cbranch_scc1 {l1}
    s_cmp_eq_u64 s[10:11], 0
    s_cbranch_scc1 {l1}""")
    if OPT.get("slp", 0): a(f"s_sleep {OPT['slp']}")
    a(f"s_branch {l0}")
    a.label(l1)
def polln_pre(sbase, n, vt=184):
    for i in range(n): a(f"s_add_u32 s77, {sbase}, {8192*i}\nbuffer_load_dwordx2 v[{vt+2*i}:{vt+2*i+1}], v14, {WS}, s77 offen sc1")

def mode_read(vt):
    a(f"v_mov_b32 v{vt}, {L_MODE}\nds_read_b32 v{vt}, v{vt}")
def mode_get(vt):
    a(f"s_waitcnt lgkmcnt(0)\nv_readfirstlane_b32 s3, v{vt}")
def dual(stores):
    lf, ld = a.new("Lfast"), a.new("Ldual")
    a(f"s_cmp_eq_u32 s3, 1\ns_cbranch_scc1 {lf}")
    for x in stores: a(x + (" sc1" if x.startswith("buffer_store") else ""))
    a(f"s_branch {ld}")
    a.label(lf)
    for x in stores: a(x)
    a.label(ld)
W2A, W2B = 192, 136
def w2reg(kk): return W2A + 8*kk if kk < 8 else W2B + 8*(kk-8)
def w2_loads(k0, k1):
    L = []
    for kk in range(k0, k1):
        b = w2reg(kk)
        for t in range(2):
            L.append(f"s_add_u32 s74, s31, {(kk>>1)*4096}\nbuffer_load_dwordx4 v[{b+4*t}:{b+4*t+3}], v5, {WS}, s74 offen offset:{(kk&1)*2048 + t*1024}" + ("" if OPT.get("plain", 1) else " sc1"))
    return L
def w1_pattern(vd, sp):
    a(f"s_lshl_b32 s77, {sp}, 6\nv_add_u32 v{vd}, s77, v1\nv_mul_u32_u24 v4, 4682, v{vd}\nv_lshrrev_b32 v4, 16, v4\nv_lshlrev_b32 v{vd}, 4, v{vd}\ns_movk_i32 s77, 3360\nv_mad_u32_u24 v{vd}, v4, s77, v{vd}")

def kc_build():
    lnf = a.new("Lnofix")
    a(f"""s_lshl_b32 s72, s79, 10
    s_add_u32 s72, s72, s80
    v_add_u32 v40, s72, v5
    ds_write_b128 v40, v[16:19] offset:32
    v_alignbit_b32 v24, v17, v16, 16
    v_alignbit_b32 v25, v18, v17, 16
    v_alignbit_b32 v26, v19, v18, 16
    v_alignbit_b32 v27, v20, v19, 16
    v_mov_b32 v28, v17
    v_mov_b32 v29, v18
    v_mov_b32 v30, v19
    v_mov_b32 v31, v20
    ds_write_b128 v40, v[24:27] offset:{32+KC_STRIDE}
    v_mov_b32 v32, v25
    v_mov_b32 v33, v26
    v_mov_b32 v34, v27
    v_alignbit_b32 v35, v21, v20, 16
    ds_write_b128 v40, v[28:31] offset:{32+2*KC_STRIDE}
    ds_write_b128 v40, v[32:35] offset:{32+3*KC_STRIDE}
    s_cmp_lg_u32 s79, 0
    s_cbranch_scc1 {lnf}
    s_mov_b64 exec, 1
    v_lshlrev_b32 v37, 16, v16
    v_mov_b32 v36, 0
    v_mov_b32 v38, 0
    v_mov_b32 v39, v16
    v_mov_b32 v42, v37
    v_mov_b32 v43, v24
    ds_write_b64 v40, v[36:37] offset:{24+KC_STRIDE}
    ds_write_b64 v40, v[38:39] offset:{24+2*KC_STRIDE}
    ds_write_b64 v40, v[42:43] offset:{24+3*KC_STRIDE}
    s_mov_b64 exec, -1""")
    a.label(lnf)
def ssm_load():
    a(f"buffer_load_dwordx4 v[16:19], v5, {SSM}, s81 offen{NT}\nbuffer_load_dwordx2 v[20:21], v5, {SSM}, s81 offen offset:16{NT}")
def zero_pads():
    lnz = a.new("Lnz")
    a(f"""s_cmp_lg_u32 s79, 0
    s_cbranch_scc1 {lnz}
    v_mov_b32 v44, 0
    v_mov_b32 v45, 0
    v_mov_b32 v46, 0
    v_mov_b32 v47, 0
    s_mov_b32 exec_hi, 0
    v_add_u32 v43, s82, v5
    ds_write_b128 v43, v[44:47]
    s_mov_b64 exec, 0xff
    v_lshrrev_b32 v42, 1, v1
    v_mul_u32_u24 v42, {KC_STRIDE}, v42
    v_and_b32 v4, 1, v1
    v_lshl_add_u32 v42, v4, 4, v42
    v_add_u32 v42, s80, v42
    ds_write_b128 v42, v[44:47]
    v_mov_b32 v42, {L_CNT}
    ds_write_b64 v42, v[44:45]
    s_mov_b64 exec, -1""")
    a.label(lnz)

a.raw(f".globl {NAME}\n.p2align 8\n.type {NAME},@function\n{NAME}:")
a("""s_cmp_ge_u32 s2, 256
s_cbranch_scc1 L_end
s_load_dwordx16 s[4:19], s[0:1], 0
s_load_dwordx8 s[20:27], s[0:1], 64""")
if STAMP: a("v_mov_b32 v15, 0\ns_memrealtime s[96:97]")
if OPT.get("dbg"): a("s_memrealtime s[96:97]")
a(f"""v_lshrrev_b32 v4, 6, v0
v_and_b32 v1, 63, v0
v_readfirstlane_b32 s28, v4
v_and_b32 v2, 15, v0
v_bfe_u32 v3, v0, 4, 2
v_lshlrev_b32 v5, 4, v1
v_lshlrev_b32 v14, 7, v1
s_and_b32 s29, s2, 7
s_lshr_b32 s30, s2, 3
v_and_b32 v10, 31, v0
v_bfe_u32 v11, v0, 5, 3
s_lshl_b32 s72, s30, 16
s_lshl_b32 s73, s29, 7
s_add_u32 s72, s72, s73
v_lshlrev_b32 v12, 13, v11
v_lshl_add_u32 v12, v10, 2, v12
v_add_u32 v12, s72, v12
s_movk_i32 s74, 4096
s_lshr_b32 s78, s28, 2
s_and_b32 s79, s28, 3
s_mul_i32 s80, s78, {L_KC[1]-L_KC[0]}
s_add_u32 s80, s80, {L_KC[0]}
s_mul_i32 s82, s78, {L_U[1]-L_U[0]}
s_add_u32 s82, s82, {L_U[0]}
s_lshl_b32 s83, s29, 5
s_add_u32 s83, s83, s30
s_lshl_b32 s81, s83, 1
s_add_u32 s81, s81, s78
s_lshl_b32 s81, s81, 12
s_lshl_b32 s72, s79, 10
s_add_u32 s81, s81, s72
s_cmp_ge_u32 s28, 4
s_cbranch_scc1 L_aux""")
LD = "" if OPT.get("plain", 1) else " sc1"
a(f"""v_subrev_u32 v13, 3072, v12
v_mov_b32 v4, {OOB}
v_cmp_gt_i32 vcc, 0, v13
s_lshl_b32 s75, s29, 9
v_lshlrev_b32 v24, 4, v10
v_cndmask_b32 v13, v13, v4, vcc
s_waitcnt lgkmcnt(0)""")
if OPT.get("p0"): a("s_setprio 2")
srd(36, 6, 2097152); srd(64, 24, 256)
lnt = a.new("Lnotag")
a(f"""s_or_b32 s72, s2, s28
s_cmp_lg_u32 s72, 0
s_cbranch_scc1 {lnt}
s_memrealtime s[72:73]
s_waitcnt lgkmcnt(0)
s_or_b32 s72, s72, 1
v_mov_b32 v6, s72
v_mov_b32 v7, s73
v_mov_b32 v4, 0
s_mov_b64 exec, 1
buffer_store_dwordx2 v[6:7], v4, {DBG}, 0 offen sc1
s_mov_b64 exec, -1""")
a.label(lnt)
KR, VR = 48, 60
for r in range(3): a(f"buffer_load_dword v{KR+r}, v13, {K}, 0 offen offset:{1024*r}{NT}")
for r in range(8): a(f"buffer_load_dword v{KR+3+r}, v12, {K}, {'0' if r<4 else 's74'} offen offset:{1024*(r%4)}{NT}")
srd(44, 10, 4096)
a(f"buffer_load_dwordx4 v[76:79], v24, {SK}, s75 offen")
srd(40, 8, 2097152)
for r in range(8): a(f"buffer_load_dword v{VR+r}, v12, {V}, {'0' if r<4 else 's74'} offen offset:{1024*(r%4)}{NT}")
srd(48, 12, 2097152); srd(68, 26, WS_BYTES)
ssm_load()
srd(52, 18, 1835008); srd(60, 22, 2097152); srd(56, 20, 1835008)
zero_pads()
a(f"""v_and_b32 v4, 7, v10
v_xor_b32 v4, v4, v11
v_lshlrev_b32 v22, 8, v10
v_lshl_add_u32 v22, v4, 4, v22
v_add_u32 v22, {L_RED}, v22
v_lshrrev_b32 v23, 3, v1
v_lshrrev_b32 v4, 4, v1
v_and_b32 v13, 7, v1
v_xor_b32 v4, v4, v13
v_lshlrev_b32 v4, 4, v4
v_lshl_add_u32 v4, v23, 7, v4
v_lshlrev_b32 v13, 4, v13
v_lshl_add_u32 v13, v23, 12, v13
s_lshl_b32 s72, s28, 11
s_add_u32 s72, s72, {L_RED}
v_add_u32 v23, s72, v4
v_xor_b32 v12, 64, v23
s_lshl_b32 s72, s29, 18
s_lshl_b32 s73, s30, 7
s_add_u32 s90, s72, s73
s_lshl_b32 s72, s28, 16
s_add_u32 s90, s90, s72
s_add_u32 s90, s90, {WS_KVT}
s_add_u32 s91, s90, 32768
s_getreg_b32 s95, hwreg(HW_REG_XCC_ID)
s_and_b32 s95, s95, 0xff""")
mark(1)
if OPT.get("p0"): a("s_setprio 0")
a("s_waitcnt vmcnt(10)")
tag_load()
WPp = 80
for j in range(4):
    s0, s1 = 76 + (j >> 1), 78 + (j >> 1)
    if j & 1: a(f"v_and_b32 v{WPp+2*j}, 0xffff0000, v{s0}\nv_and_b32 v{WPp+1+2*j}, 0xffff0000, v{s1}")
    else:     a(f"v_lshlrev_b32 v{WPp+2*j}, 16, v{s0}\nv_lshlrev_b32 v{WPp+1+2*j}, 16, v{s1}")
KU = 88
for r in range(11): a(f"v_lshlrev_b32 v{KU+2*r}, 16, v{KR+r}\nv_and_b32 v{KU+2*r+1}, 0xffff0000, v{KR+r}")
O = 112
for st in range(4):
    for r in range(8):
        o = O + 2*r; ku = KU + 2*(r + st); w = WPp + 2*(3 - st)
        if st == 0: a(f"v_pk_mul_f32 v[{o}:{o+1}], v[{ku}:{ku+1}], v[{w}:{w+1}]")
        else: a(f"v_pk_fma_f32 v[{o}:{o+1}], v[{ku}:{ku+1}], v[{w}:{w+1}], v[{o}:{o+1}]")
a("s_waitcnt vmcnt(3)")
for r in range(8):
    a(f"v_lshlrev_b32 v{KU+2*r}, 16, v{VR+r}\nv_and_b32 v{KU+2*r+1}, 0xffff0000, v{VR+r}")
for r in range(8):
    o = O + 2*r
    a(f"v_pk_mul_f32 v[{o}:{o+1}], v[{o}:{o+1}], v[{KU+2*r}:{KU+2*r+1}]")
for c in range(2):
    for q in range(4):
        a(f"v_cvt_pk_bf16_f32 v{128+4*c+q}, v{O+2*(7-2*q)+c}, v{O+2*(6-2*q)+c}")
a(f"""ds_write_b128 v22, v[128:131]
ds_write_b128 v22, v[132:135] offset:128
s_waitcnt lgkmcnt(0)
s_barrier
ds_read_b128 v[128:131], v23
ds_read_b128 v[132:135], v12 offset:1024
v_mov_b32 v8, s95
v_mov_b32 v9, 0
s_waitcnt lgkmcnt(1)
buffer_store_dwordx4 v[128:131], v13, {WS}, s90 offen sc1
s_waitcnt lgkmcnt(0)
buffer_store_dwordx4 v[132:135], v13, {WS}, s91 offen sc1
s_waitcnt vmcnt(3)""")
kc_build()
a(f"""s_lshl_b32 s89, s83, 7
s_add_u32 s89, s89, {WS_F1}
v_mov_b32 v24, {L_MODE}
v_mov_b32 v25, 1
s_waitcnt vmcnt(0)
s_mov_b64 exec, 1
ds_add_rtn_u32 v25, v24, v25
s_mov_b64 exec, -1""")
tag_check()
lf1 = a.new("Lnf1")
a(f"""s_waitcnt lgkmcnt(0)
v_readfirstlane_b32 s72, v25
s_cmp_lg_u32 s72, 3
s_cbranch_scc1 {lf1}""")
flag_store("s89")
a.label(lf1)
mark(2)
a(f"s_cmp_lg_u32 s28, 0\ns_cbranch_scc1 L_bg")
lp, lpd = a.new("Lf1"), a.new("Lf1d")
a(f"""s_lshl_b32 s73, s29, 12
s_add_u32 s73, s73, {WS_F1}
s_mov_b32 s72, {SPIN}
s_mov_b32 exec_hi, 0
{lp}:
buffer_load_dwordx2 v[184:185], v14, {WS}, s73 offen sc1
s_waitcnt vmcnt(0)
v_cmp_ne_u64 vcc, v[184:185], v[6:7]
s_sub_u32 s72, s72, 1
s_cmp_eq_u32 s72, 0
s_cbranch_scc1 {lpd}
s_and_b64 exec, exec, vcc
s_cbranch_scc1 {lp}
{lpd}:
s_mov_b64 exec, -1""")
mark(3)
a(f"s_lshl_b32 s73, s83, 13\ns_add_u32 s73, s73, {WS_KVT}")
for c in range(2):
    a(f"s_mov_b32 m0, {L_U[c]+512}\ns_nop 0")
    for q in range(4): a(f"buffer_load_dwordx4 v5, {WS}, s73 offen offset:{1024*q}{LD} lds")
    if c == 0: a("s_add_u32 s73, s73, 4096")
if OPT.get("fx0", 0):
    a(f"s_mov_b32 s73, {WS_FX}")
    polln("s73", 4, nowait=8)
    a(f"s_lshl_b32 s73, s83, 13\ns_add_u32 s73, s73, {WS_XD}\ns_mov_b32 m0, {L_XS}\ns_nop 0")
    for q in range(4): a(f"buffer_load_dwordx4 v5, {WS}, s73 offen offset:{1024*q}{LD} lds")
    a(f"s_add_u32 s73, s73, 4096\ns_mov_b32 m0, {L_XS+4096}\ns_nop 0")
    for q in range(4): a(f"buffer_load_dwordx4 v5, {WS}, s73 offen offset:{1024*q}{LD} lds")
    a(f"s_mov_b32 s73, {WS_ST}\ns_mov_b32 m0, {L_ST}\ns_nop 0")
    for q in range(4): a(f"buffer_load_dwordx4 v5, {WS}, s73 offen offset:{1024*q}{LD} lds")
    a(f"s_mov_b32 s73, {WS_ST+4096}\ns_mov_b32 m0, {L_ST+4096}\ns_nop 0")
    for q in range(4): a(f"buffer_load_dwordx4 v5, {WS}, s73 offen offset:{1024*q}{LD} lds")

    a("s_waitcnt vmcnt(16)\ns_branch L_p0_join")
else:
    a("s_waitcnt vmcnt(0)\ns_branch L_p0_join")
a.label("L_bg")
if OPT.get("pke", 0):
    a("s_cmp_eq_u32 s28, 3\ns_cbranch_scc1 L_p0_join")
    PKL, PKO = 192, 216
    a(f"""v_lshrrev_b32 v208, 5, v1
    v_and_b32 v209, 31, v1
    v_lshlrev_b32 v212, 12, v208
    v_lshl_add_u32 v212, v209, 2, v212
    v_lshrrev_b32 v213, 4, v209
    v_mul_u32_u24 v213, {56*2048}, v213
    v_and_b32 v209, 15, v209
    v_lshl_add_u32 v213, v209, 4, v213
    v_lshl_add_u32 v213, v208, 8, v213
    v_mov_b32 v214, {OOB}
    v_mov_b32 v215, {OOB}
    s_mov_b32 s95, 0
    """)
    a("s_mul_i32 s89, s2, 3\ns_add_u32 s89, s89, s28\ns_sub_u32 s89, s89, 1")
    lx = a.new("Lpkx")
    for u in range(2):
        if u == 1:
            a(f"s_add_u32 s89, s89, 1\ns_add_u32 s72, s2, 768\ns_cmp_eq_u32 s28, 1\ns_cselect_b32 s89, s72, s89\ns_cmp_ge_u32 s89, 896\ns_cbranch_scc1 {lx}\ns_mov_b32 s95, 1")
        a(f"""s_mul_i32 s73, s89, 2341
        s_lshr_b32 s73, s73, 18
        s_mul_i32 s72, s73, 112
        s_sub_u32 s72, s89, s72
        s_and_b32 s77, s72, 1
        s_lshr_b32 s72, s72, 1
        s_lshl_b32 s90, s72, 15
        s_lshl_b32 s91, s73, 7
        s_add_u32 s90, s90, s91
        s_lshl_b32 s91, s77, 13
        s_add_u32 s90, s90, s91""")
        for i in range(8):
            if i == 4: a("s_add_u32 s90, s90, 16384")
            a(f"buffer_load_dword v{PKL+8*u+i}, v212, {W2}, s90 offen offset:{(i&3)*1024}{NT}")
        a(f"""s_mul_i32 s73, s73, 112
        s_add_u32 s73, s73, s72
        s_lshl_b32 s73, s73, 11
        s_lshl_b32 s77, s77, 9
        s_add_u32 s73, s73, s77
        v_add_u32 v{214+u}, s73, v213""")
    a.label(lx)
    a(f"""s_mov_b32 s75, 0x05040100
    s_mov_b32 s76, 0x07060302
    s_mov_b32 s90, {WS_W2P}
    s_mov_b32 s91, {WS_W2P+1024}
    s_waitcnt vmcnt(0)""")
    for u in range(2):
        if u == 1: a(f"s_cmp_eq_u32 s95, 0\ns_cbranch_scc1 L_p0_join")
        for c in range(2):
            for q in range(4):
                a(f"v_perm_b32 v{PKO+8*u+4*c+q}, v{PKL+8*u+2*q+1}, v{PKL+8*u+2*q}, s{75+c}")
        a(f"buffer_store_dwordx4 v[{PKO+8*u}:{PKO+3+8*u}], v{214+u}, {WS}, s90 offen sc1")
        a(f"buffer_store_dwordx4 v[{PKO+4+8*u}:{PKO+7+8*u}], v{214+u}, {WS}, s91 offen sc1")

a("s_branch L_p0_join")
a.label("L_aux")
a(f"""v_lshrrev_b32 v24, 3, v1
v_lshlrev_b32 v24, 10, v24
v_and_b32 v4, 7, v1
v_lshl_add_u32 v24, v4, 4, v24
s_lshl_b32 s72, s2, 13
s_waitcnt lgkmcnt(0)""")
srd(32, 4, 2097152)
XR, XS = 48, 64
for r in range(8): a(f"buffer_load_dword v{XR+r}, v12, {X}, {'0' if r<4 else 's74'} offen offset:{1024*(r%4)}{NT}")
srd(48, 12, 2097152)
ssm_load()
ls = a.new("Lnst")
a(f"s_cmp_lg_u32 s28, 4\ns_cbranch_scc1 {ls}")
for i in range(8): a(f"buffer_load_dwordx4 v[{XS+4*i}:{XS+4*i+3}], v24, {X}, s72 offen offset:{128*i}{NT}")
a.label(ls)
srd(56, 20, 1835008); srd(52, 18, 1835008); srd(64, 24, 256); srd(68, 26, WS_BYTES); srd(60, 22, 2097152)
zero_pads()
XSTG = L_RED + 8192
a(f"""v_and_b32 v4, 7, v10
v_lshlrev_b32 v13, 1, v11
v_xor_b32 v4, v4, v13
v_lshlrev_b32 v22, 8, v10
v_lshl_add_u32 v22, v4, 4, v22
v_add_u32 v22, {XSTG}, v22
v_xor_b32 v12, 16, v22
v_lshrrev_b32 v23, 4, v1
v_and_b32 v13, 15, v1
v_xor_b32 v4, v23, v13
v_lshlrev_b32 v4, 4, v4
v_lshl_add_u32 v4, v23, 8, v4
v_lshlrev_b32 v13, 4, v13
v_lshl_add_u32 v13, v23, 13, v13
s_lshl_b32 s72, s79, 11
s_add_u32 s72, s72, {XSTG}
v_add_u32 v23, s72, v4
v_xor_b32 v11, 64, v23
s_lshl_b32 s72, s29, 18
s_lshl_b32 s73, s30, 8
s_add_u32 s90, s72, s73
s_lshl_b32 s72, s79, 16
s_add_u32 s90, s90, s72
s_add_u32 s90, s90, {WS_XD}
s_add_u32 s91, s90, 32768
s_mov_b32 s75, 0x3f803f80""")
mark(1)
a(f"""s_cmp_eq_u32 s28, 4
s_cbranch_scc1 L_w4a
s_waitcnt vmcnt(2)
s_branch L_w4b
L_w4a:
s_waitcnt vmcnt(10)
L_w4b:""")
tag_load()
a(f"""ds_write_b128 v22, v[{XR}:{XR+3}]
ds_write_b128 v12, v[{XR+4}:{XR+7}]
s_waitcnt lgkmcnt(0)
s_barrier
ds_read_b128 v[128:131], v23
ds_read_b128 v[132:135], v11 offset:1024
s_waitcnt lgkmcnt(1)
buffer_store_dwordx4 v[128:131], v13, {WS}, s90 offen sc1
s_waitcnt lgkmcnt(0)
buffer_store_dwordx4 v[132:135], v13, {WS}, s91 offen sc1
s_waitcnt vmcnt(3)
s_cmp_lg_u32 s28, 4
s_cbranch_scc1 L_aux_pub""")
for i in range(4): a(f"v_mov_b32 v{100+i}, 0")
for i in range(32): a(f"v_dot2_f32_bf16 v{100+(i&3)}, v{XS+i}, s75, v{100+(i&3)}")
a("s_nop 2\nv_add_f32 v100, v100, v101\nv_add_f32 v102, v102, v103\nv_add_f32 v100, v100, v102")
def red8(v):
    for m in ("quad_perm:[1,0,3,2]", "quad_perm:[2,3,0,1]", "row_half_mirror"):
        a(f"s_nop 1\nv_add_f32_dpp v{v}, v{v}, v{v} {m} row_mask:0xf bank_mask:0xf")
red8(100)
a("v_mul_f32 v100, 0x3b000000, v100\nv_mov_b32 v101, v100")
for i in range(4): a(f"v_mov_b32 v{102+i}, 0")
for i in range(32):
    t = 106 + 2*(i & 3); ac = 102 + 2*(i & 1)
    a(f"v_lshlrev_b32 v{t}, 16, v{XS+i}\nv_and_b32 v{t+1}, 0xffff0000, v{XS+i}")
    a(f"v_pk_add_f32 v[{t}:{t+1}], v[{t}:{t+1}], v[100:101] neg_lo:[0,1] neg_hi:[0,1]")
    a(f"v_pk_fma_f32 v[{ac}:{ac+1}], v[{t}:{t+1}], v[{t}:{t+1}], v[{ac}:{ac+1}]")
a("v_add_f32 v102, v102, v103\nv_add_f32 v104, v104, v105\nv_add_f32 v102, v102, v104")
red8(102)
a(f"""v_mul_f32 v102, 0x3b000000, v102
v_cvt_pk_bf16_f32 v104, v100, v102
v_and_b32 v105, 0xffff0000, v104
v_add_f32 v105, 0x3727c5ac, v105
v_cvt_pk_bf16_f32 v105, v105, v105
v_and_b32 v105, 0xffff0000, v105
v_sqrt_f32 v105, v105
s_nop 0
v_cvt_pk_bf16_f32 v105, v104, v105
v_and_b32 v104, 0xffff, v104
v_and_b32 v105, 0xffff0000, v105
v_or_b32 v104, v104, v105
v_lshrrev_b32 v24, 3, v1
v_lshlrev_b32 v24, 2, v24
s_lshl_b32 s72, s2, 5
s_add_u32 s72, s72, {WS_ST}
s_mov_b32 exec_lo, 0x01010101
s_mov_b32 exec_hi, 0x01010101
buffer_store_dword v104, v24, {WS}, s72 offen sc1
s_mov_b64 exec, -1""")
a.label("L_aux_pub")
kc_build()
a("s_waitcnt vmcnt(0)")
tag_check()
lnf = a.new("Lnfx")
a(f"""v_mov_b32 v24, {L_CNT}
v_mov_b32 v25, 1
s_mov_b64 exec, 1
ds_add_rtn_u32 v25, v24, v25
s_mov_b64 exec, -1
s_waitcnt lgkmcnt(0)
v_readfirstlane_b32 s72, v25
s_cmp_lg_u32 s72, 3
s_cbranch_scc1 {lnf}
s_lshl_b32 s73, s2, 7
s_add_u32 s73, s73, {WS_FX}""")
flag_store("s73")
a.label(lnf)
mark(2)

a.label("L_p0_join")
ACC = 16; AF = [48, 112]; BF = [80, 144]
a(f"""s_lshr_b32 s84, s30, 3
s_lshr_b32 s72, s29, 1
s_lshl_b32 s72, s72, 2
s_add_u32 s84, s84, s72
s_and_b32 s85, s30, 7
s_and_b32 s72, s29, 1
s_lshl_b32 s72, s72, 3
s_add_u32 s85, s85, s72
v_mov_b32 v214, {OOB}
v_mov_b32 v215, {OOB}
v_mov_b32 v234, {OOB}
s_mul_i32 s88, s85, 224
s_and_b32 s94, s85, 1
s_lshr_b32 s86, s28, 1
s_and_b32 s87, s28, 1
s_lshr_b32 s72, s85, 1
s_lshl_b32 s72, s72, 1
s_add_u32 s72, s72, s87
s_mul_i32 s31, s72, 56
s_mul_i32 s72, s86, 14
s_add_u32 s31, s31, s72
s_lshl_b32 s31, s31, 11
s_add_u32 s31, s31, {WS_W2P}
v_add_u32 v10, 1, v2
v_and_b32 v11, 3, v10
v_mul_u32_u24 v11, {KC_STRIDE}, v11
v_lshrrev_b32 v10, 2, v10
v_lshl_add_u32 v10, v10, 3, v11
v_lshlrev_b32 v11, 4, v3
v_sub_u32 v10, v10, v11
s_lshl_b32 s72, s79, 7
s_add_u32 s73, s80, s72
s_add_u32 s73, s73, 48
v_add_u32 v10, s73, v10
v_lshl_add_u32 v11, v2, 5, v11
s_add_u32 s73, s82, {480-64}
s_sub_u32 s73, s73, s72
v_add_u32 v11, s73, v11
v_lshlrev_b32 v13, 6, v2
v_lshl_add_u32 v13, v3, 4, v13
s_lshl_b32 s72, s28, 10
s_add_u32 s72, s72, {L_XS}
v_add_u32 v13, s72, v13
s_lshl_b32 s72, s83, 2
s_add_u32 s14, s14, s72
s_addc_u32 s15, s15, 0
s_load_dword s93, s[14:15], 0""")
a("s_waitcnt lgkmcnt(0)")
for i in range(32): a(f"v_mov_b32 v{ACC+i}, 0")
if STOP <= 0: a("s_branch L_fin")
a("s_barrier")
mark(4)
a("s_cmp_gt_u32 s28, 3\ns_cbranch_scc1 L_conv_t\ns_cmp_eq_u32 s28, 3\ns_cbranch_scc1 L_conv_w3")
if not OPT.get("pke", 0):
    a("s_cmp_eq_u32 s28, 0\ns_cbranch_scc1 L_conv_go")
    PKL, PKO = 192, 216
    a(f"""v_lshrrev_b32 v208, 5, v1
    v_and_b32 v209, 31, v1
    v_lshlrev_b32 v212, 12, v208
    v_lshl_add_u32 v212, v209, 2, v212
    v_lshrrev_b32 v213, 4, v209
    v_mul_u32_u24 v213, {56*2048}, v213
    v_and_b32 v209, 15, v209
    v_lshl_add_u32 v213, v209, 4, v213
    v_lshl_add_u32 v213, v208, 8, v213
    v_mov_b32 v214, {OOB}
    v_mov_b32 v215, {OOB}
    s_mov_b32 s95, 0
    """)
    a("s_mul_i32 s89, s2, 3\ns_add_u32 s89, s89, s28\ns_sub_u32 s89, s89, 1")
    lx = a.new("Lpkx")
    for u in range(2):
        if u == 1:
            a(f"s_add_u32 s89, s89, 1\ns_add_u32 s72, s2, 768\ns_cmp_eq_u32 s28, 1\ns_cselect_b32 s89, s72, s89\ns_cmp_ge_u32 s89, 896\ns_cbranch_scc1 {lx}\ns_mov_b32 s95, 1")
        a(f"""s_mul_i32 s73, s89, 2341
        s_lshr_b32 s73, s73, 18
        s_mul_i32 s72, s73, 112
        s_sub_u32 s72, s89, s72
        s_and_b32 s77, s72, 1
        s_lshr_b32 s72, s72, 1
        s_lshl_b32 s90, s72, 15
        s_lshl_b32 s91, s73, 7
        s_add_u32 s90, s90, s91
        s_lshl_b32 s91, s77, 13
        s_add_u32 s90, s90, s91""")
        for i in range(8):
            if i == 4: a("s_add_u32 s90, s90, 16384")
            a(f"buffer_load_dword v{PKL+8*u+i}, v212, {W2}, s90 offen offset:{(i&3)*1024}{NT}")
        a(f"""s_mul_i32 s73, s73, 112
        s_add_u32 s73, s73, s72
        s_lshl_b32 s73, s73, 11
        s_lshl_b32 s77, s77, 9
        s_add_u32 s73, s73, s77
        v_add_u32 v{214+u}, s73, v213""")
    a.label(lx)

a("s_branch L_conv_go")
a.label("L_conv_w3")
if not OPT.get("fx0", 0):
    a(f"s_mov_b32 s73, {WS_FX}")
    polln("s73", 4)
    a(f"s_lshl_b32 s73, s83, 13\ns_add_u32 s73, s73, {WS_XD}\ns_mov_b32 m0, {L_XS}\ns_nop 0")
    for q in range(4): a(f"buffer_load_dwordx4 v5, {WS}, s73 offen offset:{1024*q}{LD} lds")
    a(f"s_add_u32 s73, s73, 4096\ns_mov_b32 m0, {L_XS+4096}\ns_nop 0")
    for q in range(4): a(f"buffer_load_dwordx4 v5, {WS}, s73 offen offset:{1024*q}{LD} lds")
    a(f"s_mov_b32 s73, {WS_ST}\ns_mov_b32 m0, {L_ST}\ns_nop 0")
    for q in range(4): a(f"buffer_load_dwordx4 v5, {WS}, s73 offen offset:{1024*q}{LD} lds")
    a(f"s_mov_b32 s73, {WS_ST+4096}\ns_mov_b32 m0, {L_ST+4096}\ns_nop 0")
    for q in range(4): a(f"buffer_load_dwordx4 v5, {WS}, s73 offen offset:{1024*q}{LD} lds")

a("s_branch L_conv_go")
a.label("L_conv_t")
a(f"""s_mul_i32 s89, s30, 57344
s_mul_i32 s72, s79, 14336
s_add_u32 s89, s89, s72
s_and_b32 s72, s29, 1
s_mul_i32 s72, s72, 1792
s_add_u32 s89, s89, s72
v_mul_u32_u24 v234, 3584, v3
v_min_u32 v235, 13, v2
v_lshl_add_u32 v234, v235, 7, v234
""")
a.label("L_conv_go")
def reads(ph, T):
    return [f"ds_read_b64 v[{AF[ph]+4*T}:{AF[ph]+4*T+1}], v10 offset:{512*T+64*ph}",
            f"ds_read_b64 v[{AF[ph]+4*T+2}:{AF[ph]+4*T+3}], v10 offset:{512*T+64*ph+8}",
            f"ds_read_b128 v[{BF[ph]+4*T}:{BF[ph]+4*T+3}], v11 offset:{512*T+64*(1-ph)}"]
allreads = [r for ph in range(2) for T in range(8) for r in reads(ph, T)]
st = {"i": 0}
def issue(k):
    for _ in range(k):
        if st["i"] < len(allreads): a(allreads[st["i"]]); st["i"] += 1
issue(15)
for ph in range(2):
    for T in range(8):
        need = (ph * 8 + T + 1) * 3
        TP = {(0, 0): (4, 0), (0, 5): (5, 0), (1, 0): (6, 0), (1, 5): (7, 0)}
        if (ph, T) in TP:
            w_, r_ = TP[(ph, T)]; lk = a.new("Ltk")
            a(f"s_cmp_lg_u32 s28, {w_}\ns_cbranch_scc1 {lk}\ns_add_u32 s72, s89, {8192*r_}\nbuffer_load_dword v{232+r_}, v234, {W1}, s72 offen\n{lk}:")
        a(f"s_waitcnt lgkmcnt({st['i'] - need})")
        for i in range(T + 1):
            a(f"v_mfma_f32_16x16x32_bf16 v[{ACC+4*T}:{ACC+4*T+3}], v[{AF[ph]+4*i}:{AF[ph]+4*i+3}], v[{BF[ph]+4*(T-i)}:{BF[ph]+4*(T-i)+3}], v[{ACC+4*T}:{ACC+4*T+3}]")
            if i < 3 and st["i"] - need < 15: issue(1)
if not OPT.get("pke", 0):
    a("s_sub_u32 s72, s28, 1\ns_cmp_gt_u32 s72, 1\ns_cbranch_scc1 L_conv_red")
    a(f"""s_mov_b32 s75, 0x05040100
    s_mov_b32 s76, 0x07060302
    s_mov_b32 s90, {WS_W2P}
    s_mov_b32 s91, {WS_W2P+1024}
    s_waitcnt vmcnt(0)""")
    for u in range(2):
        if u == 1: a(f"s_cmp_eq_u32 s95, 0\ns_cbranch_scc1 L_conv_red")
        for c in range(2):
            for q in range(4):
                a(f"v_perm_b32 v{PKO+8*u+4*c+q}, v{PKL+8*u+2*q+1}, v{PKL+8*u+2*q}, s{75+c}")
        a(f"buffer_store_dwordx4 v[{PKO+8*u}:{PKO+3+8*u}], v{214+u}, {WS}, s90 offen sc1")
        a(f"buffer_store_dwordx4 v[{PKO+4+8*u}:{PKO+7+8*u}], v{214+u}, {WS}, s91 offen sc1")

a.label("L_conv_red")
mark(5)

a(f"""s_lshl_b32 s72, s28, 13
s_add_u32 s72, s72, {L_RED}
v_add_u32 v184, s72, v5""")
for T in range(8):
    if T == 7: a("s_nop 5")
    a(f"ds_write_b128 v184, v[{ACC+4*T}:{ACC+4*T+3}] offset:{1024*T}")
a(f"""s_lshl_b32 s72, s28, 10
s_add_u32 s72, s72, {L_RED}
v_add_u32 v186, s72, v5
v_lshlrev_b32 v185, 5, v2
v_lshrrev_b32 v4, 1, v3
v_lshl_add_u32 v185, v4, 4, v185
v_and_b32 v4, 1, v3
v_lshlrev_b32 v4, 3, v4
v_sub_u32 v185, v185, v4
s_lshl_b32 s72, s28, 9
s_add_u32 s72, s72, {L_U[0]+512+8}
v_add_u32 v185, s72, v185
ds_read_b64 v[176:177], v185
ds_read_b64 v[178:179], v185 offset:{L_U[1]-L_U[0]}
s_lshl_b32 s76, s93, 16
s_and_b32 s77, s93, 0xffff0000
v_lshrrev_b32 v187, 1, v2
v_lshlrev_b32 v187, 15, v187
v_lshl_add_u32 v187, v4, 3, v187
v_lshrrev_b32 v4, 1, v3
v_lshl_add_u32 v187, v4, 4, v187
v_and_b32 v4, 1, v2
v_lshl_add_u32 v187, v4, 5, v187
s_lshl_b32 s90, s83, 7
s_lshl_b32 s73, s28, 18
s_add_u32 s90, s90, s73
s_add_u32 s90, s90, {WS_HT}
s_lshl_b32 s73, s28, 8
s_add_u32 s73, s73, s83
s_lshl_b32 s91, s73, 7
s_add_u32 s91, s91, {WS_F2}
s_cmp_gt_u32 s28, 3
s_cbranch_scc1 L_nvw
s_waitcnt vmcnt(0)
L_nvw:
s_waitcnt lgkmcnt(0)
s_barrier""")
mark(6)
P = 48; KV, XP, LN, Y, STT = 120, 128, 136, 144, 152
a(f"ds_read_b128 v[116:119], v13 offset:{L_ST-L_XS}\nds_read_b128 v[112:115], v13")
for w in range(8): a(f"ds_read_b128 v[{P+4*w}:{P+4*w+3}], v186 offset:{8192*w}")
for c in range(2):
    d0, d1 = 176 + 2*c, 177 + 2*c
    a(f"v_lshlrev_b32 v{KV+6+c}, 16, v{d0}\nv_and_b32 v{KV+4+c}, 0xffff0000, v{d0}\nv_lshlrev_b32 v{KV+2+c}, 16, v{d1}\nv_and_b32 v{KV+c}, 0xffff0000, v{d1}")
a("s_waitcnt lgkmcnt(8)")
for r in range(4): a(f"v_and_b32 v{STT+r}, 0xffff0000, v{116+r}")
for r in range(4): a(f"v_rcp_f32 v{STT+r}, v{STT+r}")
for r in range(4): a(f"v_lshlrev_b32 v{STT+4+r}, 16, v{116+r}\nv_lshlrev_b32 v{XP+2*r}, 16, v{112+r}\nv_and_b32 v{XP+1+2*r}, 0xffff0000, v{112+r}")
for r in range(4):
    for c in range(2): a(f"v_sub_f32 v{LN+2*r+c}, v{XP+2*r+c}, v{STT+4+r}")
for r in range(4):
    for c in range(2): a(f"v_mul_f32 v{LN+2*r+c}, v{LN+2*r+c}, v{STT+r}")
a("s_waitcnt lgkmcnt(0)")
for c in range(2):
    b = P + 16*c
    for h in range(2):
        a(f"v_pk_add_f32 v[{b+2*h}:{b+2*h+1}], v[{b+2*h}:{b+2*h+1}], v[{b+4+2*h}:{b+5+2*h}]")
        a(f"v_pk_add_f32 v[{b+8+2*h}:{b+9+2*h}], v[{b+8+2*h}:{b+9+2*h}], v[{b+12+2*h}:{b+13+2*h}]")
    for r in range(4): a(f"v_add_f32 v{Y+2*r+c}, v{b+r}, v{b+8+r}")
for r in range(4): a(f"v_pk_fma_f32 v[{Y+2*r}:{Y+1+2*r}], v[{KV+2*r}:{KV+1+2*r}], s[76:77], v[{Y+2*r}:{Y+1+2*r}]")
for r in range(4): a(f"v_pk_fma_f32 v[{Y+2*r}:{Y+1+2*r}], v[{LN+2*r}:{LN+1+2*r}], v[{Y+2*r}:{Y+1+2*r}], v[{XP+2*r}:{XP+1+2*r}]")
a(f"""v_cvt_pk_bf16_f32 v160, v{Y}, v{Y+2}
v_cvt_pk_bf16_f32 v161, v{Y+4}, v{Y+6}
v_cvt_pk_bf16_f32 v162, v{Y+1}, v{Y+3}
v_cvt_pk_bf16_f32 v163, v{Y+5}, v{Y+7}
s_nop 1
v_permlane16_swap_b32 v160, v162
v_permlane16_swap_b32 v161, v163
s_nop 1
buffer_store_dwordx4 v[160:163], v187, {WS}, s90 offen sc1
s_waitcnt vmcnt(0)""")
flag_store("s91")
mark(7)
if STOP <= 1: a("s_branch L_fin")
a("s_barrier")
lw7, lw7d = a.new("Lw7"), a.new("Lw7d")
a(f"s_cmp_eq_u32 s28, 7\ns_cbranch_scc1 {lw7}")
KPRE = OPT.get("kpre", 8)
w1_pattern(133, "s28")
a("s_lshl_b32 s95, s28, 10")
def w1dma(ks): return f"s_add_u32 m0, s95, {ks*7168}\ns_add_u32 s72, s88, {ks*114688}\nbuffer_load_dwordx4 v133, {W1}, s72 offen lds"
for ks in range(KPRE): a(w1dma(ks))
a(f"s_branch {lw7d}")
a.label(lw7)
a(f"s_lshr_b32 s73, s84, 1\ns_lshl_b32 s73, s73, 15\ns_add_u32 s73, s73, {WS_F2}")
polln("s73", 4)
a.label(lw7d)
GA, ONE, CSH = 16, 56, 60
HFR = [64, 72]
WF = [80, 96]
a(f"""v_lshrrev_b32 v8, 1, v3
v_lshlrev_b32 v8, 4, v8
v_and_b32 v4, 1, v3
v_lshl_add_u32 v8, v4, 2, v8
v_lshrrev_b32 v4, 2, v2
v_add_u32 v8, v8, v4
v_and_b32 v4, 3, v2
v_lshlrev_b32 v4, 3, v4
v_and_b32 v9, 7, v8
v_lshl_add_u32 v9, v9, 5, v4
v_lshrrev_b32 v190, 1, v3
v_lshl_add_u32 v9, v190, 10, v9
v_lshrrev_b32 v190, 5, v1
v_lshlrev_b32 v190, 9, v190
v_bfe_u32 v191, v1, 1, 3
v_lshl_add_u32 v190, v191, 6, v190
v_bfe_u32 v191, v1, 4, 1
v_lshl_add_u32 v190, v191, 5, v190
v_and_b32 v191, 1, v1
v_lshl_add_u32 v190, v191, 4, v190
v_mul_u32_u24 v8, 224, v8
v_add_u32 v8, v8, v4
s_mul_i32 s92, s79, 12288
s_add_u32 s92, s92, {L_HR}
v_add_u32 v9, s92, v9
s_lshl_b32 s72, s94, 5
s_lshl_b32 s73, s78, 7
s_add_u32 s72, s72, s73
v_add_u32 v10, s72, v8
v_add_u32 v11, 57344, v10
s_mul_i32 s73, s94, 192
s_sub_u32 s73, 192, s73
v_add_u32 v12, s73, v8
v_add_u32 v13, 57344, v12
s_add_u32 s72, s28, s94
s_lshl_b32 s72, s72, 5
s_cmp_eq_u32 s28, 6
s_cselect_b32 s72, s73, s72
v_add_u32 v188, s72, v8
v_add_u32 v189, 57344, v188
s_lshl_b32 s90, s84, 3
s_lshl_b32 s72, s79, 1
s_add_u32 s90, s90, s72
s_lshl_b32 s91, s90, 14
s_add_u32 s91, s91, {WS_HT}""")
for i in range(40): a(f"v_mov_b32 v{GA+i}, 0")
for i in range(4): a(f"v_mov_b32 v{ONE+i}, 0x3f803f80")
a("s_waitcnt vmcnt(0)")
mark(8)
if OPT.get("prio"): a(f"s_cmp_{'lt' if OPT['prio'] == 1 else 'ge'}_u32 s28, 4\ns_cbranch_scc1 L_np\ns_setprio 1\nL_np:")
a("s_barrier")
mark(9)
def hdma(ks): return f"s_add_u32 m0, s92, {(ks % 6)*2048}\ns_add_u32 s74, s91, {ks*2048}\nbuffer_load_dwordx4 v190, {WS}, s74 offen{LD} lds\nbuffer_load_dwordx4 v190, {WS}, s74 offen offset:1024{LD} lds"
a(f"""s_lshl_b32 s73, s84, 17
s_and_b32 s72, s30, 7
s_lshl_b32 s72, s72, 14
s_add_u32 s73, s73, s72
s_and_b32 s72, s28, 1
s_lshl_b32 s72, s72, 13
s_add_u32 s73, s73, s72
s_add_u32 s73, s73, {WS_HT}
s_cmp_lt_u32 s28, 6
s_cbranch_scc1 L_noht
buffer_load_dword v135, v14, {WS}, s73 offen
L_noht:
s_mul_i32 s89, s30, 28672
s_lshl_b32 s72, s79, 13
s_min_u32 s72, s72, 20480
s_add_u32 s89, s89, s72
s_and_b32 s72, s29, 1
s_mul_i32 s72, s72, 917504
s_add_u32 s89, s89, s72
s_add_u32 s89, s89, {WS_W2P}""")
a("s_cmp_eq_u32 s78, 1\ns_cbranch_scc1 L_nohp")
for ks in range(6): a(hdma(ks))
a.label("L_nohp")
lcs = a.new("Lcs")
a(f"s_cmp_eq_u32 s28, 7\ns_cbranch_scc1 {lcs}")
CF = 80
def csrd(ks):
    for hq in range(2): a(f"ds_read_b64_tr_b16 v[{CF+4*(ks%7)+2*hq}:{CF+4*(ks%7)+2*hq+1}], v{188+(ks>>3)} offset:{(ks%8)*7168 + hq*1792}")
for ks in range(min(7, KPRE)): csrd(ks)
for ks in range(KPRE):
    a(f"s_waitcnt lgkmcnt({2*min(6, KPRE-1-ks)})")
    a(f"v_mfma_f32_16x16x32_bf16 v[{CSH}:{CSH+3}], v[{CF+4*(ks%7)}:{CF+4*(ks%7)+3}], v[{ONE}:{ONE+3}], {'0' if ks == 0 else f'v[{CSH}:{CSH+3}]'}")
    if ks + 7 < KPRE: csrd(ks + 7)
a.label(lcs)
a("s_cmp_eq_u32 s78, 1\ns_cbranch_scc1 L_g1_b")
WI0 = [0]
def gemm1(fh):
    ns = 4 if fh == 0 else 3
    def rdw(ks):
        o = []; hi = ks >= 8
        for sl in range(ns):
            for hq in range(2):
                six = (fh == 1 and sl == 2)
                base = (12 + hi) if six else (10 + hi)
                off = (ks - 8*hi)*7168 + hq*1792 + (0 if six else sl*32)
                r = WF[ks & 1] + 4*sl + 2*hq
                o.append(f"ds_read_b64_tr_b16 v[{r}:{r+1}], v{base} offset:{off}")
        return o
    def rdh(ks):
        o = []
        for t in range(2):
            for hq in range(2):
                r = HFR[ks & 1] + 4*t + 2*hq
                o.append(f"ds_read_b64_tr_b16 v[{r}:{r+1}], v9 offset:{(ks % 6)*2048 + t*256 + hq*512}")
        return o
    W2L = w2_loads(0, 14)
    vm = [x for k in range(6) for x in (("h0", k), ("h", k))] if fh == 0 else []
    def vmw(tag): return len(vm) - 1 - vm.index(tag)
    for x in rdw(0): a(x)
    if fh == 0: a(f"s_waitcnt vmcnt({vmw(('h', 1))})")
    a("s_barrier")
    for x in rdh(0): a(x)
    wi = 0
    for ks in range(16):
        fill = []
        if ks % 2 == 1 and ks < 15:
            if fh == 0: fill.append(("wait", ("h", ks + 2), None))
            if KPRE <= ks + 2 and KPRE < 16: fill.append(("wait", ("d", min(15, ks + 2)), None))
            fill.append(("x", None, "s_barrier"))
            for k2 in (ks + 5, ks + 6):
                if k2 < 16 and fh == 0: fill.append(("vm2", ("h", k2), hdma(k2)))
        if ks < 15: fill += [("x", None, x) for x in rdh(ks + 1) + rdw(ks + 1)]
        nd = (16 - KPRE + 3) // 4
        for k2 in range(KPRE + nd*ks, min(16, KPRE + nd*(ks+1))):
            lk = a.new("Lw1")
            fill.append(("vm", ("d", k2), (f"s_cmp_eq_u32 s28, 7\ns_cbranch_scc1 {lk}\n" if fh == 1 else "") + w1dma(k2) + (f"\n{lk}:" if fh == 1 else "")))
        if ks + 1 >= KPRE and ks < 15:
            for hq in range(2): fill.append(("x", None, f"ds_read_b64_tr_b16 v[{112+4*((ks+1)&1)+2*hq}:{113+4*((ks+1)&1)+2*hq}], v{188+((ks+1)>>3)} offset:{((ks+1)%8)*7168 + hq*1792}"))
        kt = OPT.get("kt", 1)
        if fh == 1 and kt <= ks < kt + 8 and (ks - kt) % 2 == 0:
            j = (ks - kt) // 2; lk = a.new("Ltg")
            fill.append(("vm", ("t", j), f"s_cmp_eq_u32 s79, {j & 3}\ns_cselect_b32 s72, s89, {OOB}\nbuffer_load_dword v134, v14, {WS}, s72 offen"))
        for _ in range(OPT.get("pk", 3)):
            if wi < OPT.get("nl", 18) and ks >= (OPT.get("k0", 10) if fh == 0 else OPT.get("k1", 10)): fill.append(("vm", ("w", wi), W2L[wi])); wi += 1
        mf = []
        for sl in range(ns):
            for t in range(2):
                ac = GA + (sl*2 + t)*4; h = HFR[ks & 1] + 4*t
                mf.append(f"v_mfma_f32_16x16x32_bf16 v[{ac}:{ac+3}], v[{WF[ks&1]+4*sl}:{WF[ks&1]+4*sl+3}], v[{h}:{h+3}], v[{ac}:{ac+3}]")
        if fh == 1:
            for t in range(2):
                h = HFR[ks & 1] + 4*t
                mf.append(f"v_mfma_f32_16x16x32_bf16 v[{40+4*t}:{43+4*t}], v[{h}:{h+3}], v[{h}:{h+3}], v[{40+4*t}:{43+4*t}]")
                mf.append(f"v_mfma_f32_16x16x32_bf16 v[{48+4*t}:{51+4*t}], v[{ONE}:{ONE+3}], v[{h}:{h+3}], v[{48+4*t}:{51+4*t}]")
        if ks >= KPRE: mf.append(f"v_mfma_f32_16x16x32_bf16 v[{CSH}:{CSH+3}], v[{112+4*(ks&1)}:{115+4*(ks&1)}], v[{ONE}:{ONE+3}], v[{CSH}:{CSH+3}]")
        a("s_waitcnt lgkmcnt(0)")
        if OPT.get("g1m") and ks in (0, 4, 8, 12): mark({0: 1, 4: 2, 8: 3, 12: 14}[ks])
        k = 0
        per = (len(fill) + len(mf) - 1) // len(mf)
        for m, x in enumerate(mf):
            a(x)
            tgt = min(len(fill), per*(m+1))
            while k < tgt:
                kind, tag, txt = fill[k]; k += 1
                if kind == "vm": a(txt); vm.append(tag)
                elif kind == "vm2": a(txt); vm.append(("h0", tag[1])); vm.append(tag)
                elif kind == "wait": a(f"s_waitcnt vmcnt({vmw(tag)})")
                else: a(txt)
    mark(10)
    WI0[0] = wi
    if not OPT.get("late", 0):
        for _ in range(28 - wi):
            a(W2L[wi]); wi += 1
    wi = 28
    a("s_barrier")
    if OPT.get("e1m"): mark(1)
    lc2 = a.new("Lc2")
    a(f"""v_lshlrev_b32 v10, 4, v3
    s_lshl_b32 s72, s28, 6
    v_add_u32 v4, s72, v10
    s_mov_b32 exec_lo, 0x00010001
    s_mov_b32 exec_hi, 0x00010001
    ds_write_b128 v4, v[{CSH}:{CSH+3}] offset:{L_CS}
    s_mov_b64 exec, -1
    s_lshl_b32 s72, s79, 8
    v_lshlrev_b32 v11, 3, v2
    v_add_u32 v11, s72, v11""")
    if fh == 1:
        a(f"""v_and_b32 v4, 3, v2
        v_cmp_eq_u32 s[72:73], 1, v4
        v_cmp_eq_u32 s[74:75], 2, v4
        v_cmp_eq_u32 s[76:77], 3, v4
        v_lshrrev_b32 v4, 2, v2
        v_cmp_eq_u32 vcc, v4, v3""")
        for t in range(2):
            g = 40 + 4*t
            a(f"""v_cndmask_b32_e64 v{g}, v{g}, v{g+1}, s[72:73]
            v_cndmask_b32_e64 v{g}, v{g}, v{g+2}, s[74:75]
            v_cndmask_b32_e64 v{g+1}, v{g}, v{g+3}, s[76:77]
            v_mov_b32 v{g}, v{48+4*t}""")
        a(f"""s_mov_b64 exec, vcc
        ds_write_b64 v11, v[40:41] offset:{L_SX}
        ds_write_b64 v11, v[44:45] offset:{L_SX+128}
        s_mov_b64 exec, -1""")
    CSR = 80
    a(f"""s_mul_i32 s72, s90, 57344
    s_add_u32 s72, s72, {WS_HP}
    s_mul_i32 s73, s85, 7
    s_add_u32 s74, s73, s94
    s_lshr_b32 s74, s74, 1
    s_lshl_b32 s74, s74, 10
    s_add_u32 s74, s74, s72
    s_mul_i32 s75, s94, 6
    s_sub_u32 s75, 6, s75
    s_add_u32 s75, s75, s73
    s_lshr_b32 s75, s75, 1
    s_lshl_b32 s75, s75, 10
    s_add_u32 s75, s75, s72
    s_lshl_b32 s76, s94, 9
    s_add_u32 s75, s75, s76
    v_add_u32 v12, 57344, v5
    v_lshlrev_b32 v13, 3, v1
    v_add_u32 v9, 57344, v13
    s_waitcnt lgkmcnt(0)
    s_barrier
    ds_read_b64 v[64:65], v11 offset:{L_SX}
    ds_read_b64 v[66:67], v11 offset:{L_SX+128}""")
    for sl in range(ns): a(f"ds_read_b128 v[{CSR+4*sl}:{CSR+4*sl+3}], v10 offset:{L_CS + 64*(sl + 4*fh)}")
    a(f"s_waitcnt lgkmcnt({ns})")
    for t in range(2):
        s_, q_ = 64 + 2*t, 65 + 2*t
        a(f"""v_mul_f32 v{s_}, 0x3b000000, v{s_}
        v_mul_f32 v{q_}, 0x3b000000, v{q_}
        v_fma_f32 v{q_}, -v{s_}, v{s_}, v{q_}
        v_max_f32 v{q_}, 0, v{q_}
        v_cvt_pk_bf16_f32 v{s_}, v{s_}, v{q_}
        v_lshlrev_b32 v{70+4*t}, 16, v{s_}
        v_lshlrev_b32 v{71+4*t}, 16, v{s_}
        v_and_b32 v{q_}, 0xffff0000, v{s_}
        v_add_f32 v{q_}, 0x3727c5ac, v{q_}
        v_cvt_pk_bf16_f32 v{q_}, v{q_}, v{q_}
        v_and_b32 v{q_}, 0xffff0000, v{q_}
        v_sqrt_f32 v{q_}, v{q_}""")
    for t in range(2):
        q_ = 65 + 2*t
        a(f"""v_cvt_pk_bf16_f32 v{q_}, v{q_}, v{q_}
        v_and_b32 v{q_}, 0xffff0000, v{q_}
        v_rcp_f32 v{68+4*t}, v{q_}
        v_rcp_f32 v{69+4*t}, v{q_}""")
    a("s_waitcnt lgkmcnt(0)")
    TT = 96
    if OPT.get("e1m"): mark(2)
    for t in range(2): a(f"v_mul_f32 v{128+2*t}, 0xbfb8aa3b, v{68+4*t}\nv_mul_f32 v{129+2*t}, 0xbfb8aa3b, v{68+4*t}")
    a("v_mov_b32 v132, 1.0\nv_mov_b32 v133, 1.0")
    groups = [(0, 1), (2, 3)] if fh == 0 else [(0, 1), (2,)]
    for gi, grp in enumerate(groups):
        prs = [(sl, t, h) for sl in grp for t in range(2) for h in range(2)]
        def AC(sl, t, h): return GA + (sl*2+t)*4 + 2*h
        def T_(i): return TT + 16*gi + 2*i
        for i, (sl, t, h) in enumerate(prs):
            ac = AC(sl, t, h)
            a(f"v_pk_fma_f32 v[{ac}:{ac+1}], v[{CSR+4*sl+2*h}:{CSR+4*sl+2*h+1}], v[{70+4*t}:{71+4*t}], v[{ac}:{ac+1}] neg_lo:[0,1,0] neg_hi:[0,1,0]")
        for i, (sl, t, h) in enumerate(prs):
            ac = AC(sl, t, h)
            a(f"v_pk_mul_f32 v[{T_(i)}:{T_(i)+1}], v[{ac}:{ac+1}], v[{128+2*t}:{129+2*t}]")
        for i, (sl, t, h) in enumerate(prs):
            ac = AC(sl, t, h)
            a(f"v_exp_f32 v{T_(i)}, v{T_(i)}\nv_exp_f32 v{T_(i)+1}, v{T_(i)+1}\nv_pk_mul_f32 v[{ac}:{ac+1}], v[{ac}:{ac+1}], v[{68+4*t}:{69+4*t}]")
        for i in range(len(prs)): a(f"v_pk_add_f32 v[{T_(i)}:{T_(i)+1}], v[{T_(i)}:{T_(i)+1}], v[132:133]")
        for i in range(len(prs)): a(f"v_rcp_f32 v{T_(i)}, v{T_(i)}\nv_rcp_f32 v{T_(i)+1}, v{T_(i)+1}")
        a("s_nop 0")
        for i, (sl, t, h) in enumerate(prs):
            ac = AC(sl, t, h)
            a(f"v_pk_mul_f32 v[{ac}:{ac+1}], v[{ac}:{ac+1}], v[{T_(i)}:{T_(i)+1}]")
        for t in range(2):
            o = TT + 16*gi + 4*t
            for j, sl in enumerate(grp):
                ac = AC(sl, t, 0)
                a(f"v_cvt_pk_bf16_f32 v{o+2*j}, v{ac}, v{ac+1}\nv_cvt_pk_bf16_f32 v{o+2*j+1}, v{ac+2}, v{ac+3}")
            if len(grp) == 2: a(f"buffer_store_dwordx4 v[{o}:{o+3}], v{5 if t == 0 else 12}, {WS}, s74 offen offset:{1024*(gi + 2*fh)} sc1")
            else: a(f"buffer_store_dwordx2 v[{o}:{o+1}], v{13 if t == 0 else 9}, {WS}, s75 offen sc1")

    return wi
WI = gemm1(0); a("s_branch L_g1_done")
a.label("L_g1_b"); gemm1(1)
a.label("L_g1_done")
if OPT.get("e1m"): mark(3)
A3 = 16; HF = [64, 96]
a(f"""s_lshl_b32 s73, s84, 1
s_lshr_b32 s72, s79, 1
s_add_u32 s73, s73, s72
s_lshl_b32 s73, s73, 4
s_add_u32 s73, s73, s85
s_lshl_b32 s73, s73, 2
s_and_b32 s72, s79, 1
s_lshl_b32 s72, s72, 1
s_add_u32 s73, s73, s72
s_add_u32 s73, s73, s78
s_lshl_b32 s73, s73, 7
s_add_u32 s73, s73, {WS_F3}
s_lshl_b32 s90, s84, 1
s_add_u32 s90, s90, s94
s_lshl_b32 s89, s90, 13
s_add_u32 s89, s89, {WS_F3}
s_lshl_b32 s90, s90, 2
s_mul_i32 s91, s86, 14
s_add_u32 s91, s91, s87
s_lshl_b32 s91, s91, 10
s_add_u32 s91, s91, {WS_HP}""")
for u in range(4):
    a(f"""s_add_u32 s72, s86, {u}
    s_and_b32 s72, s72, 3
    s_add_u32 s72, s72, s90
    s_mul_i32 s72, s72, 57344
    s_add_u32 s{40+u}, s72, s91""")
a(f"""s_lshl_b32 s92, s86, 13
s_lshl_b32 s72, s87, 12
s_add_u32 s93, s92, s72
v_add_u32 v10, s92, v5
s_add_u32 s90, s90, s86
s_lshr_b32 s95, s90, 1
s_lshl_b32 s95, s95, 15
s_and_b32 s72, s90, 1
s_lshl_b32 s72, s72, 5
s_add_u32 s95, s95, s72
s_lshr_b32 s72, s85, 1
s_lshl_b32 s72, s72, 1
s_add_u32 s72, s72, s87
s_lshl_b32 s72, s72, 11
s_add_u32 s95, s95, s72
s_add_u32 s95, s95, {WS_HT}
v_lshlrev_b32 v11, 9, v3
v_lshl_add_u32 v11, v2, 1, v11
v_add_u32 v12, 65536, v10
v_lshlrev_b32 v186, 3, v1
v_add_u32 v186, s92, v186
v_add_u32 v187, 65536, v186
v_add_u32 v188, 0x20000, v186""")
NLATE = (28 - WI0[0]) if OPT.get("late", 0) else 0
for x in w2_loads(0, 14)[28-NLATE:]: a(x)
a(f"s_waitcnt vmcnt({NLATE})\nv_add_u32 v13, 0x20000, v10")
flag_store("s73")
for x in w2_loads(0, 14)[WI:]: a(x)
mark(11)
if STOP <= 2: a("s_branch L_fin")
for e in range(4):
    a(f"buffer_load_short_d16 v{128+e}, v11, {WS}, s95 offen offset:{128*e} sc1\nbuffer_load_short_d16_hi v{132+e}, v11, {WS}, s95 offen offset:{128*e+64} sc1")
for i in range(32): a(f"v_mov_b32 v{A3+i}, 0")
lnp = a.new("Lnp3")
a(f"s_cmp_lg_u32 s28, 7\ns_cbranch_scc1 {lnp}")
polln("s89", 1)
a.label(lnp)
a("s_barrier")
mark(12)
def stage_dma(s):
    return [f"s_add_u32 m0, s93, {(s % 5)*32768 + u*1024}\ns_add_u32 s72, s{40+u}, {2048*s}\nbuffer_load_dwordx4 v5, {WS}, s72 offen{LD} lds" for u in range(4)]
for s in range(5):
    for x in stage_dma(s): a(x)
for s in range(7):
    issued = min(7, max(5, s + 4))
    a(f"s_waitcnt vmcnt({4*(issued - s - 1)})\ns_barrier")
    if s >= 1 and s + 4 <= 6:
        for x in stage_dma(s + 4): a(x)
    sl = s % 5
    base = 10 + [0, 0, 2, 2, 3][sl]; off0 = [0, 32768, 0, 32768, 0][sl]
    hf = HF[s & 1]
    cnt = []
    for j in range(8):
        if (2*s + j // 4) in (3, 10):
            b8 = {10: 186, 12: 187, 13: 188}[base]
            a(f"ds_read_b64 v[{hf+4*j}:{hf+4*j+1}], v{b8} offset:{off0 + 1024*j}\nds_read_b64 v[{hf+4*j+2}:{hf+4*j+3}], v{b8} offset:{off0 + 1024*j + 512}"); cnt.append(2)
        else:
            a(f"ds_read_b128 v[{hf+4*j}:{hf+4*j+3}], v{base} offset:{off0 + 1024*j}"); cnt.append(1)
    for k2 in range(2):
        kk = 2*s + k2; b = w2reg(kk)
        for u in range(4):
            a(f"s_waitcnt lgkmcnt({sum(cnt[k2*4+u+1:])})")
            for t in range(2):
                ac = A3 + (u*2+t)*4
                a(f"v_mfma_f32_16x16x32_bf16 v[{ac}:{ac+3}], v[{b+4*t}:{b+4*t+3}], v[{hf+16*k2+4*u}:{hf+16*k2+4*u+3}], v[{ac}:{ac+3}]")
mark(13)
a("s_barrier")
for u in range(1, 4):
    a(f"""s_add_u32 s72, s86, {u}
    s_and_b32 s72, s72, 3
    s_lshl_b32 s73, s87, 2
    s_add_u32 s72, s72, s73
    s_mul_i32 s72, s72, 6144
    s_add_u32 s72, s72, {(u-1)*2048}
    v_add_u32 v{10+u}, s72, v5""")
a("""s_lshl_b32 s73, s87, 2
s_add_u32 s72, s86, s73
s_mul_i32 s72, s72, 6144
v_add_u32 v10, s72, v5""")
for u in range(1, 4):
    for t in range(2):
        ac = A3 + (u*2+t)*4
        a(f"ds_write_b128 v{10+u}, v[{ac}:{ac+3}] offset:{1024*t}")
a("""s_lshl_b32 s72, s90, 14
s_lshr_b32 s73, s85, 1
s_lshl_b32 s73, s73, 7
s_add_u32 s72, s72, s73
s_lshl_b32 s73, s87, 6
s_add_u32 s72, s72, s73
v_lshlrev_b32 v9, 10, v2
v_lshl_add_u32 v9, v3, 4, v9""")
for e in range(4): a(f"v_lshlrev_b32 v{96+e}, 16, v{128+e}\nv_and_b32 v{100+e}, 0xffff0000, v{132+e}")
a("s_waitcnt lgkmcnt(0)\ns_barrier")
for j in range(6): a(f"ds_read_b128 v[{64+4*j}:{67+4*j}], v10 offset:{1024*j}")
for t in range(2):
    ac = A3 + t*4
    for h in range(2): a(f"v_pk_add_f32 v[{ac+2*h}:{ac+2*h+1}], v[{ac+2*h}:{ac+2*h+1}], v[{96+4*t+2*h}:{97+4*t+2*h}]")
a("s_waitcnt lgkmcnt(0)")
for t in range(2):
    ac = A3 + t*4
    for h in range(2):
        a(f"v_pk_add_f32 v[{ac+2*h}:{ac+2*h+1}], v[{ac+2*h}:{ac+2*h+1}], v[{64+4*t+2*h}:{65+4*t+2*h}]")
        a(f"v_pk_add_f32 v[{72+4*t+2*h}:{73+4*t+2*h}], v[{72+4*t+2*h}:{73+4*t+2*h}], v[{80+4*t+2*h}:{81+4*t+2*h}]")
for t in range(2):
    ac = A3 + t*4
    for h in range(2): a(f"v_pk_add_f32 v[{ac+2*h}:{ac+2*h+1}], v[{ac+2*h}:{ac+2*h+1}], v[{72+4*t+2*h}:{73+4*t+2*h}]")
for r in range(4): a(f"v_cvt_pk_bf16_f32 v{104+r}, v{A3+r}, v{A3+4+r}")
a(f"buffer_store_dwordx4 v[104:107], v9, {OUT}, s72 offen" + ["", " nt", " sc1", " sc0 sc1"][OPT.get("ost", 0)])
a.label("L_fin")
if OPT.get("dbg"):
    a(f"""s_waitcnt vmcnt(0)
    s_memrealtime s[98:99]
    s_waitcnt lgkmcnt(0)
    s_and_b32 s72, s2, 31
    s_or_b32 s72, s72, s28
    s_cmp_lg_u32 s72, 0
    s_cbranch_scc1 L_end
    s_not_b32 s96, s96
    v_mov_b32 v16, s96
    v_mov_b32 v17, s98
    v_mov_b32 v4, 16
    s_mov_b64 exec, 1
    buffer_atomic_umax v16, v4, {DBG}, 0 offen
    buffer_atomic_umax v17, v4, {DBG}, 0 offen offset:4
    s_mov_b64 exec, -1""")
if STAMP:
    a(f"""s_mov_b64 exec, -1
    s_waitcnt vmcnt(0) lgkmcnt(0)
    s_memrealtime s[98:99]
    s_waitcnt lgkmcnt(0)
    v_writelane_b32 v15, s96, 0
    v_writelane_b32 v15, s98, 15
    s_lshl_b32 s72, s2, 9
    s_lshl_b32 s73, s28, 6
    s_add_u32 s72, s72, s73
    s_add_u32 s72, s72, {WS_STAMP}
    v_lshlrev_b32 v4, 2, v1
    s_mov_b64 exec, 0xffff
    buffer_store_dword v15, v4, {WS}, s72 offen
    s_add_u32 s72, s72, {0x100000 - 64}
    s_mov_b32 exec_lo, 0xffff0000
    buffer_store_dword v15, v4, {WS}, s72 offen""")
a.label("L_end")
a("s_endpgm")
a.raw(f""".section .rodata,"a"
.p2align 6
.amdhsa_kernel {NAME}
  .amdhsa_next_free_vgpr 256
  .amdhsa_next_free_sgpr 102
  .amdhsa_accum_offset 256
  .amdhsa_group_segment_fixed_size 0
  .amdhsa_kernarg_size 96
  .amdhsa_user_sgpr_count 2
  .amdhsa_user_sgpr_kernarg_segment_ptr 1
  .amdhsa_system_sgpr_workgroup_id_x 1
.end_amdhsa_kernel""")
HEADER = open("sequential_preLN__ssm_conv_h3__dense_activation_silu__prompt.s.ref").read().split("; Override launch")[0]
print(HEADER + f"; @launch grid=(256,1,1) block=(512,1,1) lds={LDS_BYTES}\n" + '.amdgcn_target "amdgcn-amd-amdhsa--gfx950"\n.text\n' + a.text())
```

```python
import sys
STAMP = "stamp" in sys.argv[1:]
STOP = 99
OPT = {"nt": 1, "fast": 0}
for x in sys.argv[1:]:
    if x.startswith("stop="): STOP = int(x[5:])
    elif "=" in x: k, v = x.split("="); OPT[k] = int(v)
NT = " nt" if OPT["nt"] else ""

WS_KVT = 0
WS_XD  = 2 << 20
WS_ST  = 4 << 20
WS_HT  = 6 << 20
WS_W2P = 10 << 20
WS_HP  = 12 << 20
WS_F1  = 20 << 20
WS_FX  = WS_F1 + 0x20000
WS_FC  = WS_F1 + 0x30000
WS_F2  = WS_F1 + 0x40000
WS_F3  = WS_F1 + 0x80000
WS_STAMP = 0x4000000
WS_BYTES = 268435456
OOB = 0x7FF00000
SPIN = 40000

W1_EARLY = 0
L_RED = 28672
L_XS = L_RED + 65536
L_ST = L_XS + 8192
L_U = [114688, 114688 + 4608]
L_KC = [123904, 123904 + 16640]
KC_STRIDE = 4160
L_CNT = 157184
L_MODE = 157188
L_HR = 114688
L_CS = 0
L_SX = 1024
LDS_BYTES = 163840
NAME = "sequential_preLN__ssm_conv_h3__dense_activation_silu__prompt_kernel"

class A:
    def __init__(s): s.l = []; s.uid = 0
    def __call__(s, txt):
        for ln in txt.strip("\n").split("\n"):
            if ln.strip(): s.l.append(("    " + ln.strip()) if not ln.strip().endswith(":") else ln.strip())
    def label(s, n): s.l.append(n + ":")
    def raw(s, t): s.l.append(t)
    def new(s, p="L"): s.uid += 1; return f"{p}_{s.uid}"
    def text(s): return "\n".join(s.l) + "\n"
a = A()
def srd(d, b, n):
    a(f"s_mov_b32 s{d}, s{b}\ns_mov_b32 s{d+1}, s{b+1}\ns_mov_b32 s{d+2}, {n}\ns_mov_b32 s{d+3}, 0x00020000")
def mark(i):
    if STAMP: a(f"s_memrealtime s[98:99]\ns_memtime s[100:101]\ns_waitcnt lgkmcnt(0)\nv_writelane_b32 v15, s98, {i}\nv_writelane_b32 v15, s100, {16+i}")
X, K, V, SK, SSM, W1, W2, OUT, DBG, WS = [f"s[{32+4*i}:{35+4*i}]" for i in range(10)]

def tag_load():
    a(f"v_mov_b32 v4, 0\nbuffer_load_dwordx2 v[6:7], v4, {DBG}, 0 offen sc1")
def tag_check():
    l0, l1 = a.new("Ltag"), a.new("Ltagd")
    a(f"s_mov_b32 s72, {SPIN}")
    a.label(l0)
    a(f"""v_readfirstlane_b32 s73, v6
    s_cmp_lg_u32 s73, 0
    s_cbranch_scc1 {l1}
    s_sub_u32 s72, s72, 1
    s_cmp_eq_u32 s72, 0
    s_cbranch_scc1 {l1}
    v_mov_b32 v4, 0
    buffer_load_dwordx2 v[6:7], v4, {DBG}, 0 offen sc1
    s_waitcnt vmcnt(0)
    s_branch {l0}""")
    a.label(l1)
def flag_store(soff):
    a(f"""v_mov_b32 v4, 0
    s_mov_b64 exec, 1
    buffer_store_dwordx2 v[6:7], v4, {WS}, {soff} offen sc1
    s_mov_b64 exec, -1""")
def polln(sbase, n, vt=184, preissued=False, nowait=0):
    M = ["s[4:5]", "s[6:7]", "s[8:9]", "s[16:17]"]
    l0, l1, l2 = a.new("Lpn"), a.new("Lpnd"), a.new("Lpnc")
    for i in range(n): a(f"s_mov_b64 {M[i]}, -1")
    a(f"s_mov_b32 s72, {SPIN}")
    if preissued: a(f"s_branch {l2}")
    a.label(l0)
    for i in range(n):
        sk = a.new("Lsk")
        a(f"s_mov_b64 exec, {M[i]}\ns_add_u32 s77, {sbase}, {8192*i}\ns_cbranch_execz {sk}\nbuffer_load_dwordx2 v[{vt+2*i}:{vt+2*i+1}], v14, {WS}, s77 offen sc1")
        a.label(sk)
    a("s_mov_b64 exec, -1")
    a.label(l2)
    a("s_waitcnt vmcnt(0)")
    for i in range(n):
        a(f"v_cmp_ne_u64 vcc, v[{vt+2*i}:{vt+2*i+1}], v[6:7]\ns_and_b64 {M[i]}, {M[i]}, vcc")
    a(f"s_mov_b64 s[10:11], {M[0]}")
    for i in range(1, n): a(f"s_or_b64 s[10:11], s[10:11], {M[i]}")
    a(f"""s_sub_u32 s72, s72, 1
    s_cmp_eq_u32 s72, 0
    s_cbranch_scc1 {l1}
    s_cmp_eq_u64 s[10:11], 0
    s_cbranch_scc1 {l1}""")
    if OPT.get("slp", 0): a(f"s_sleep {OPT['slp']}")
    a(f"s_branch {l0}")
    a.label(l1)
def polln_pre(sbase, n, vt=184):
    for i in range(n): a(f"s_add_u32 s77, {sbase}, {8192*i}\nbuffer_load_dwordx2 v[{vt+2*i}:{vt+2*i+1}], v14, {WS}, s77 offen sc1")

def mode_read(vt):
    a(f"v_mov_b32 v{vt}, {L_MODE}\nds_read_b32 v{vt}, v{vt}")
def mode_get(vt):
    a(f"s_waitcnt lgkmcnt(0)\nv_readfirstlane_b32 s3, v{vt}")
def dual(stores):
    lf, ld = a.new("Lfast"), a.new("Ldual")
    a(f"s_cmp_eq_u32 s3, 1\ns_cbranch_scc1 {lf}")
    for x in stores: a(x + (" sc1" if x.startswith("buffer_store") else ""))
    a(f"s_branch {ld}")
    a.label(lf)
    for x in stores: a(x)
    a.label(ld)
W2A, W2B = 192, 136
def w2reg(kk): return W2A + 8*kk if kk < 8 else W2B + 8*(kk-8)
def w2_loads(k0, k1):
    L = []
    for kk in range(k0, k1):
        b = w2reg(kk)
        for t in range(2):
            L.append(f"s_add_u32 s74, s31, {(kk>>1)*4096}\nbuffer_load_dwordx4 v[{b+4*t}:{b+4*t+3}], v5, {WS}, s74 offen offset:{(kk&1)*2048 + t*1024}" + ("" if OPT.get("plain", 1) else " sc1"))
    return L
def w1_pattern(vd, sp):
    a(f"s_lshl_b32 s77, {sp}, 6\nv_add_u32 v{vd}, s77, v1\nv_mul_u32_u24 v4, 4682, v{vd}\nv_lshrrev_b32 v4, 16, v4\nv_lshlrev_b32 v{vd}, 4, v{vd}\ns_movk_i32 s77, 3360\nv_mad_u32_u24 v{vd}, v4, s77, v{vd}")

def kc_build():
    lnf = a.new("Lnofix")
    a(f"""s_lshl_b32 s72, s79, 10
    s_add_u32 s72, s72, s80
    v_add_u32 v40, s72, v5
    ds_write_b128 v40, v[16:19] offset:32
    v_alignbit_b32 v24, v17, v16, 16
    v_alignbit_b32 v25, v18, v17, 16
    v_alignbit_b32 v26, v19, v18, 16
    v_alignbit_b32 v27, v20, v19, 16
    v_mov_b32 v28, v17
    v_mov_b32 v29, v18
    v_mov_b32 v30, v19
    v_mov_b32 v31, v20
    ds_write_b128 v40, v[24:27] offset:{32+KC_STRIDE}
    v_mov_b32 v32, v25
    v_mov_b32 v33, v26
    v_mov_b32 v34, v27
    v_alignbit_b32 v35, v21, v20, 16
    ds_write_b128 v40, v[28:31] offset:{32+2*KC_STRIDE}
    ds_write_b128 v40, v[32:35] offset:{32+3*KC_STRIDE}
    s_cmp_lg_u32 s79, 0
    s_cbranch_scc1 {lnf}
    s_mov_b64 exec, 1
    v_lshlrev_b32 v37, 16, v16
    v_mov_b32 v36, 0
    v_mov_b32 v38, 0
    v_mov_b32 v39, v16
    v_mov_b32 v42, v37
    v_mov_b32 v43, v24
    ds_write_b64 v40, v[36:37] offset:{24+KC_STRIDE}
    ds_write_b64 v40, v[38:39] offset:{24+2*KC_STRIDE}
    ds_write_b64 v40, v[42:43] offset:{24+3*KC_STRIDE}
    s_mov_b64 exec, -1""")
    a.label(lnf)
def ssm_load():
    a(f"buffer_load_dwordx4 v[16:19], v5, {SSM}, s81 offen{NT}\nbuffer_load_dwordx2 v[20:21], v5, {SSM}, s81 offen offset:16{NT}")
def zero_pads():
    lnz = a.new("Lnz")
    a(f"""s_cmp_lg_u32 s79, 0
    s_cbranch_scc1 {lnz}
    v_mov_b32 v44, 0
    v_mov_b32 v45, 0
    v_mov_b32 v46, 0
    v_mov_b32 v47, 0
    s_mov_b32 exec_hi, 0
    v_add_u32 v43, s82, v5
    ds_write_b128 v43, v[44:47]
    s_mov_b64 exec, 0xff
    v_lshrrev_b32 v42, 1, v1
    v_mul_u32_u24 v42, {KC_STRIDE}, v42
    v_and_b32 v4, 1, v1
    v_lshl_add_u32 v42, v4, 4, v42
    v_add_u32 v42, s80, v42
    ds_write_b128 v42, v[44:47]
    v_mov_b32 v42, {L_CNT}
    ds_write_b64 v42, v[44:45]
    s_mov_b64 exec, -1""")
    a.label(lnz)

a.raw(f".globl {NAME}\n.p2align 8\n.type {NAME},@function\n{NAME}:")
a("""s_cmp_ge_u32 s2, 256
s_cbranch_scc1 L_end
s_load_dwordx16 s[4:19], s[0:1], 0
s_load_dwordx8 s[20:27], s[0:1], 64""")
if STAMP: a("v_mov_b32 v15, 0\ns_memrealtime s[96:97]")
if OPT.get("dbg"): a("s_memrealtime s[96:97]")
a(f"""v_lshrrev_b32 v4, 6, v0
v_and_b32 v1, 63, v0
v_readfirstlane_b32 s28, v4
v_and_b32 v2, 15, v0
v_bfe_u32 v3, v0, 4, 2
v_lshlrev_b32 v5, 4, v1
v_lshlrev_b32 v14, 7, v1
s_and_b32 s29, s2, 7
s_lshr_b32 s30, s2, 3
v_and_b32 v10, 31, v0
v_bfe_u32 v11, v0, 5, 3
s_lshl_b32 s72, s30, 16
s_lshl_b32 s73, s29, 7
s_add_u32 s72, s72, s73
v_lshlrev_b32 v12, 13, v11
v_lshl_add_u32 v12, v10, 2, v12
v_add_u32 v12, s72, v12
s_movk_i32 s74, 4096
s_lshr_b32 s78, s28, 2
s_and_b32 s79, s28, 3
s_mul_i32 s80, s78, {L_KC[1]-L_KC[0]}
s_add_u32 s80, s80, {L_KC[0]}
s_mul_i32 s82, s78, {L_U[1]-L_U[0]}
s_add_u32 s82, s82, {L_U[0]}
s_lshl_b32 s83, s29, 5
s_add_u32 s83, s83, s30
s_lshl_b32 s81, s83, 1
s_add_u32 s81, s81, s78
s_lshl_b32 s81, s81, 12
s_lshl_b32 s72, s79, 10
s_add_u32 s81, s81, s72
s_cmp_ge_u32 s28, 4
s_cbranch_scc1 L_aux""")
LD = "" if OPT.get("plain", 1) else " sc1"
a(f"""v_subrev_u32 v13, 3072, v12
v_mov_b32 v4, {OOB}
v_cmp_gt_i32 vcc, 0, v13
s_lshl_b32 s75, s29, 9
v_lshlrev_b32 v24, 4, v10
v_cndmask_b32 v13, v13, v4, vcc
s_waitcnt lgkmcnt(0)""")
if OPT.get("p0"): a("s_setprio 2")
srd(36, 6, 2097152); srd(64, 24, 256)
lnt = a.new("Lnotag")
a(f"""s_or_b32 s72, s2, s28
s_cmp_lg_u32 s72, 0
s_cbranch_scc1 {lnt}
s_memrealtime s[72:73]
s_waitcnt lgkmcnt(0)
s_or_b32 s72, s72, 1
v_mov_b32 v6, s72
v_mov_b32 v7, s73
v_mov_b32 v4, 0
s_mov_b64 exec, 1
buffer_store_dwordx2 v[6:7], v4, {DBG}, 0 offen sc1
s_mov_b64 exec, -1""")
a.label(lnt)
KR, VR = 48, 60
for r in range(3): a(f"buffer_load_dword v{KR+r}, v13, {K}, 0 offen offset:{1024*r}{NT}")
for r in range(8): a(f"buffer_load_dword v{KR+3+r}, v12, {K}, {'0' if r<4 else 's74'} offen offset:{1024*(r%4)}{NT}")
srd(44, 10, 4096)
a(f"buffer_load_dwordx4 v[76:79], v24, {SK}, s75 offen")
srd(40, 8, 2097152)
for r in range(8): a(f"buffer_load_dword v{VR+r}, v12, {V}, {'0' if r<4 else 's74'} offen offset:{1024*(r%4)}{NT}")
srd(48, 12, 2097152); srd(68, 26, WS_BYTES)
ssm_load()
srd(52, 18, 1835008); srd(60, 22, 2097152); srd(56, 20, 1835008)
zero_pads()
a(f"""v_and_b32 v4, 7, v10
v_xor_b32 v4, v4, v11
v_lshlrev_b32 v22, 8, v10
v_lshl_add_u32 v22, v4, 4, v22
v_add_u32 v22, {L_RED}, v22
v_lshrrev_b32 v23, 3, v1
v_lshrrev_b32 v4, 4, v1
v_and_b32 v13, 7, v1
v_xor_b32 v4, v4, v13
v_lshlrev_b32 v4, 4, v4
v_lshl_add_u32 v4, v23, 7, v4
v_lshlrev_b32 v13, 4, v13
v_lshl_add_u32 v13, v23, 12, v13
s_lshl_b32 s72, s28, 11
s_add_u32 s72, s72, {L_RED}
v_add_u32 v23, s72, v4
v_xor_b32 v12, 64, v23
s_lshl_b32 s72, s29, 18
s_lshl_b32 s73, s30, 7
s_add_u32 s90, s72, s73
s_lshl_b32 s72, s28, 16
s_add_u32 s90, s90, s72
s_add_u32 s90, s90, {WS_KVT}
s_add_u32 s91, s90, 32768
s_getreg_b32 s95, hwreg(HW_REG_XCC_ID)
s_and_b32 s95, s95, 0xff""")
mark(1)
if OPT.get("p0"): a("s_setprio 0")
a("s_waitcnt vmcnt(10)")
tag_load()
WPp = 80
for j in range(4):
    s0, s1 = 76 + (j >> 1), 78 + (j >> 1)
    if j & 1: a(f"v_and_b32 v{WPp+2*j}, 0xffff0000, v{s0}\nv_and_b32 v{WPp+1+2*j}, 0xffff0000, v{s1}")
    else:     a(f"v_lshlrev_b32 v{WPp+2*j}, 16, v{s0}\nv_lshlrev_b32 v{WPp+1+2*j}, 16, v{s1}")
KU = 88
for r in range(11): a(f"v_lshlrev_b32 v{KU+2*r}, 16, v{KR+r}\nv_and_b32 v{KU+2*r+1}, 0xffff0000, v{KR+r}")
O = 112
for st in range(4):
    for r in range(8):
        o = O + 2*r; ku = KU + 2*(r + st); w = WPp + 2*(3 - st)
        if st == 0: a(f"v_pk_mul_f32 v[{o}:{o+1}], v[{ku}:{ku+1}], v[{w}:{w+1}]")
        else: a(f"v_pk_fma_f32 v[{o}:{o+1}], v[{ku}:{ku+1}], v[{w}:{w+1}], v[{o}:{o+1}]")
a("s_waitcnt vmcnt(3)")
for r in range(8):
    a(f"v_lshlrev_b32 v{KU+2*r}, 16, v{VR+r}\nv_and_b32 v{KU+2*r+1}, 0xffff0000, v{VR+r}")
for r in range(8):
    o = O + 2*r
    a(f"v_pk_mul_f32 v[{o}:{o+1}], v[{o}:{o+1}], v[{KU+2*r}:{KU+2*r+1}]")
for c in range(2):
    for q in range(4):
        a(f"v_cvt_pk_bf16_f32 v{128+4*c+q}, v{O+2*(7-2*q)+c}, v{O+2*(6-2*q)+c}")
a(f"""ds_write_b128 v22, v[128:131]
ds_write_b128 v22, v[132:135] offset:128
s_waitcnt lgkmcnt(0)
s_barrier
ds_read_b128 v[128:131], v23
ds_read_b128 v[132:135], v12 offset:1024
v_mov_b32 v8, s95
v_mov_b32 v9, 0
s_waitcnt lgkmcnt(1)
buffer_store_dwordx4 v[128:131], v13, {WS}, s90 offen sc1
s_waitcnt lgkmcnt(0)
buffer_store_dwordx4 v[132:135], v13, {WS}, s91 offen sc1
s_waitcnt vmcnt(3)""")
kc_build()
a(f"""s_lshl_b32 s89, s83, 7
s_add_u32 s89, s89, {WS_F1}
v_mov_b32 v24, {L_MODE}
v_mov_b32 v25, 1
s_waitcnt vmcnt(0)
s_mov_b64 exec, 1
ds_add_rtn_u32 v25, v24, v25
s_mov_b64 exec, -1""")
tag_check()
lf1 = a.new("Lnf1")
a(f"""s_waitcnt lgkmcnt(0)
v_readfirstlane_b32 s72, v25
s_cmp_lg_u32 s72, 3
s_cbranch_scc1 {lf1}""")
flag_store("s89")
a.label(lf1)
mark(2)
a(f"s_cmp_lg_u32 s28, 0\ns_cbranch_scc1 L_bg")
lp, lpd = a.new("Lf1"), a.new("Lf1d")
a(f"""s_lshl_b32 s73, s29, 12
s_add_u32 s73, s73, {WS_F1}
s_mov_b32 s72, {SPIN}
s_mov_b32 exec_hi, 0
{lp}:
buffer_load_dwordx2 v[184:185], v14, {WS}, s73 offen sc1
s_waitcnt vmcnt(0)
v_cmp_ne_u64 vcc, v[184:185], v[6:7]
s_sub_u32 s72, s72, 1
s_cmp_eq_u32 s72, 0
s_cbranch_scc1 {lpd}
s_and_b64 exec, exec, vcc
s_cbranch_scc1 {lp}
{lpd}:
s_mov_b64 exec, -1""")
mark(3)
a(f"s_lshl_b32 s73, s83, 13\ns_add_u32 s73, s73, {WS_KVT}")
for c in range(2):
    a(f"s_mov_b32 m0, {L_U[c]+512}\ns_nop 0")
    for q in range(4): a(f"buffer_load_dwordx4 v5, {WS}, s73 offen offset:{1024*q}{LD} lds")
    if c == 0: a("s_add_u32 s73, s73, 4096")
if OPT.get("fx0", 0):
    a(f"s_mov_b32 s73, {WS_FX}")
    polln("s73", 4, nowait=8)
    a(f"s_lshl_b32 s73, s83, 13\ns_add_u32 s73, s73, {WS_XD}\ns_mov_b32 m0, {L_XS}\ns_nop 0")
    for q in range(4): a(f"buffer_load_dwordx4 v5, {WS}, s73 offen offset:{1024*q}{LD} lds")
    a(f"s_add_u32 s73, s73, 4096\ns_mov_b32 m0, {L_XS+4096}\ns_nop 0")
    for q in range(4): a(f"buffer_load_dwordx4 v5, {WS}, s73 offen offset:{1024*q}{LD} lds")
    a(f"s_mov_b32 s73, {WS_ST}\ns_mov_b32 m0, {L_ST}\ns_nop 0")
    for q in range(4): a(f"buffer_load_dwordx4 v5, {WS}, s73 offen offset:{1024*q}{LD} lds")
    a(f"s_mov_b32 s73, {WS_ST+4096}\ns_mov_b32 m0, {L_ST+4096}\ns_nop 0")
    for q in range(4): a(f"buffer_load_dwordx4 v5, {WS}, s73 offen offset:{1024*q}{LD} lds")

    a("s_waitcnt vmcnt(16)\ns_branch L_p0_join")
else:
    a("s_waitcnt vmcnt(0)\ns_branch L_p0_join")
a.label("L_bg")
if OPT.get("pke", 0):
    a("s_cmp_eq_u32 s28, 3\ns_cbranch_scc1 L_p0_join")
    PKL, PKO = 192, 216
    a(f"""v_lshrrev_b32 v208, 5, v1
    v_and_b32 v209, 31, v1
    v_lshlrev_b32 v212, 12, v208
    v_lshl_add_u32 v212, v209, 2, v212
    v_lshrrev_b32 v213, 4, v209
    v_mul_u32_u24 v213, {56*2048}, v213
    v_and_b32 v209, 15, v209
    v_lshl_add_u32 v213, v209, 4, v213
    v_lshl_add_u32 v213, v208, 8, v213
    v_mov_b32 v214, {OOB}
    v_mov_b32 v215, {OOB}
    s_mov_b32 s95, 0
    """)
    a("s_mul_i32 s89, s2, 3\ns_add_u32 s89, s89, s28\ns_sub_u32 s89, s89, 1")
    lx = a.new("Lpkx")
    for u in range(2):
        if u == 1:
            a(f"s_add_u32 s89, s89, 1\ns_add_u32 s72, s2, 768\ns_cmp_eq_u32 s28, 1\ns_cselect_b32 s89, s72, s89\ns_cmp_ge_u32 s89, 896\ns_cbranch_scc1 {lx}\ns_mov_b32 s95, 1")
        a(f"""s_mul_i32 s73, s89, 2341
        s_lshr_b32 s73, s73, 18
        s_mul_i32 s72, s73, 112
        s_sub_u32 s72, s89, s72
        s_and_b32 s77, s72, 1
        s_lshr_b32 s72, s72, 1
        s_lshl_b32 s90, s72, 15
        s_lshl_b32 s91, s73, 7
        s_add_u32 s90, s90, s91
        s_lshl_b32 s91, s77, 13
        s_add_u32 s90, s90, s91""")
        for i in range(8):
            if i == 4: a("s_add_u32 s90, s90, 16384")
            a(f"buffer_load_dword v{PKL+8*u+i}, v212, {W2}, s90 offen offset:{(i&3)*1024}{NT}")
        a(f"""s_mul_i32 s73, s73, 112
        s_add_u32 s73, s73, s72
        s_lshl_b32 s73, s73, 11
        s_lshl_b32 s77, s77, 9
        s_add_u32 s73, s73, s77
        v_add_u32 v{214+u}, s73, v213""")
    a.label(lx)
    a(f"""s_mov_b32 s75, 0x05040100
    s_mov_b32 s76, 0x07060302
    s_mov_b32 s90, {WS_W2P}
    s_mov_b32 s91, {WS_W2P+1024}
    s_waitcnt vmcnt(0)""")
    for u in range(2):
        if u == 1: a(f"s_cmp_eq_u32 s95, 0\ns_cbranch_scc1 L_p0_join")
        for c in range(2):
            for q in range(4):
                a(f"v_perm_b32 v{PKO+8*u+4*c+q}, v{PKL+8*u+2*q+1}, v{PKL+8*u+2*q}, s{75+c}")
        a(f"buffer_store_dwordx4 v[{PKO+8*u}:{PKO+3+8*u}], v{214+u}, {WS}, s90 offen sc1")
        a(f"buffer_store_dwordx4 v[{PKO+4+8*u}:{PKO+7+8*u}], v{214+u}, {WS}, s91 offen sc1")

a("s_branch L_p0_join")
a.label("L_aux")
a(f"""v_lshrrev_b32 v24, 3, v1
v_lshlrev_b32 v24, 10, v24
v_and_b32 v4, 7, v1
v_lshl_add_u32 v24, v4, 4, v24
s_lshl_b32 s72, s2, 13
s_waitcnt lgkmcnt(0)""")
srd(32, 4, 2097152)
XR, XS = 48, 64
for r in range(8): a(f"buffer_load_dword v{XR+r}, v12, {X}, {'0' if r<4 else 's74'} offen offset:{1024*(r%4)}{NT}")
srd(48, 12, 2097152)
ssm_load()
ls = a.new("Lnst")
a(f"s_cmp_lg_u32 s28, 4\ns_cbranch_scc1 {ls}")
for i in range(8): a(f"buffer_load_dwordx4 v[{XS+4*i}:{XS+4*i+3}], v24, {X}, s72 offen offset:{128*i}{NT}")
a.label(ls)
srd(56, 20, 1835008); srd(52, 18, 1835008); srd(64, 24, 256); srd(68, 26, WS_BYTES); srd(60, 22, 2097152)
zero_pads()
XSTG = L_RED + 8192
a(f"""v_and_b32 v4, 7, v10
v_lshlrev_b32 v13, 1, v11
v_xor_b32 v4, v4, v13
v_lshlrev_b32 v22, 8, v10
v_lshl_add_u32 v22, v4, 4, v22
v_add_u32 v22, {XSTG}, v22
v_xor_b32 v12, 16, v22
v_lshrrev_b32 v23, 4, v1
v_and_b32 v13, 15, v1
v_xor_b32 v4, v23, v13
v_lshlrev_b32 v4, 4, v4
v_lshl_add_u32 v4, v23, 8, v4
v_lshlrev_b32 v13, 4, v13
v_lshl_add_u32 v13, v23, 13, v13
s_lshl_b32 s72, s79, 11
s_add_u32 s72, s72, {XSTG}
v_add_u32 v23, s72, v4
v_xor_b32 v11, 64, v23
s_lshl_b32 s72, s29, 18
s_lshl_b32 s73, s30, 8
s_add_u32 s90, s72, s73
s_lshl_b32 s72, s79, 16
s_add_u32 s90, s90, s72
s_add_u32 s90, s90, {WS_XD}
s_add_u32 s91, s90, 32768
s_mov_b32 s75, 0x3f803f80""")
mark(1)
a(f"""s_cmp_eq_u32 s28, 4
s_cbranch_scc1 L_w4a
s_waitcnt vmcnt(2)
s_branch L_w4b
L_w4a:
s_waitcnt vmcnt(10)
L_w4b:""")
tag_load()
a(f"""ds_write_b128 v22, v[{XR}:{XR+3}]
ds_write_b128 v12, v[{XR+4}:{XR+7}]
s_waitcnt lgkmcnt(0)
s_barrier
ds_read_b128 v[128:131], v23
ds_read_b128 v[132:135], v11 offset:1024
s_waitcnt lgkmcnt(1)
buffer_store_dwordx4 v[128:131], v13, {WS}, s90 offen sc1
s_waitcnt lgkmcnt(0)
buffer_store_dwordx4 v[132:135], v13, {WS}, s91 offen sc1
s_waitcnt vmcnt(3)
s_cmp_lg_u32 s28, 4
s_cbranch_scc1 L_aux_pub""")
for i in range(4): a(f"v_mov_b32 v{100+i}, 0")
for i in range(32): a(f"v_dot2_f32_bf16 v{100+(i&3)}, v{XS+i}, s75, v{100+(i&3)}")
a("s_nop 2\nv_add_f32 v100, v100, v101\nv_add_f32 v102, v102, v103\nv_add_f32 v100, v100, v102")
def red8(v):
    for m in ("quad_perm:[1,0,3,2]", "quad_perm:[2,3,0,1]", "row_half_mirror"):
        a(f"s_nop 1\nv_add_f32_dpp v{v}, v{v}, v{v} {m} row_mask:0xf bank_mask:0xf")
red8(100)
a("v_mul_f32 v100, 0x3b000000, v100\nv_mov_b32 v101, v100")
for i in range(4): a(f"v_mov_b32 v{102+i}, 0")
for i in range(32):
    t = 106 + 2*(i & 3); ac = 102 + 2*(i & 1)
    a(f"v_lshlrev_b32 v{t}, 16, v{XS+i}\nv_and_b32 v{t+1}, 0xffff0000, v{XS+i}")
    a(f"v_pk_add_f32 v[{t}:{t+1}], v[{t}:{t+1}], v[100:101] neg_lo:[0,1] neg_hi:[0,1]")
    a(f"v_pk_fma_f32 v[{ac}:{ac+1}], v[{t}:{t+1}], v[{t}:{t+1}], v[{ac}:{ac+1}]")
a("v_add_f32 v102, v102, v103\nv_add_f32 v104, v104, v105\nv_add_f32 v102, v102, v104")
red8(102)
a(f"""v_mul_f32 v102, 0x3b000000, v102
v_cvt_pk_bf16_f32 v104, v100, v102
v_and_b32 v105, 0xffff0000, v104
v_add_f32 v105, 0x3727c5ac, v105
v_cvt_pk_bf16_f32 v105, v105, v105
v_and_b32 v105, 0xffff0000, v105
v_sqrt_f32 v105, v105
s_nop 0
v_cvt_pk_bf16_f32 v105, v104, v105
v_and_b32 v104, 0xffff, v104
v_and_b32 v105, 0xffff0000, v105
v_or_b32 v104, v104, v105
v_lshrrev_b32 v24, 3, v1
v_lshlrev_b32 v24, 2, v24
s_lshl_b32 s72, s2, 5
s_add_u32 s72, s72, {WS_ST}
s_mov_b32 exec_lo, 0x01010101
s_mov_b32 exec_hi, 0x01010101
buffer_store_dword v104, v24, {WS}, s72 offen sc1
s_mov_b64 exec, -1""")
a.label("L_aux_pub")
kc_build()
a("s_waitcnt vmcnt(0)")
tag_check()
lnf = a.new("Lnfx")
a(f"""v_mov_b32 v24, {L_CNT}
v_mov_b32 v25, 1
s_mov_b64 exec, 1
ds_add_rtn_u32 v25, v24, v25
s_mov_b64 exec, -1
s_waitcnt lgkmcnt(0)
v_readfirstlane_b32 s72, v25
s_cmp_lg_u32 s72, 3
s_cbranch_scc1 {lnf}
s_lshl_b32 s73, s2, 7
s_add_u32 s73, s73, {WS_FX}""")
flag_store("s73")
a.label(lnf)
mark(2)

a.label("L_p0_join")
ACC = 16; AF = [48, 112]; BF = [80, 144]
a(f"""s_lshr_b32 s84, s30, 3
s_lshr_b32 s72, s29, 1
s_lshl_b32 s72, s72, 2
s_add_u32 s84, s84, s72
s_and_b32 s85, s30, 7
s_and_b32 s72, s29, 1
s_lshl_b32 s72, s72, 3
s_add_u32 s85, s85, s72
v_mov_b32 v214, {OOB}
v_mov_b32 v215, {OOB}
v_mov_b32 v234, {OOB}
s_mul_i32 s88, s85, 224
s_and_b32 s94, s85, 1
s_lshr_b32 s86, s28, 1
s_and_b32 s87, s28, 1
s_lshr_b32 s72, s85, 1
s_lshl_b32 s72, s72, 1
s_add_u32 s72, s72, s87
s_mul_i32 s31, s72, 56
s_mul_i32 s72, s86, 14
s_add_u32 s31, s31, s72
s_lshl_b32 s31, s31, 11
s_add_u32 s31, s31, {WS_W2P}
v_add_u32 v10, 1, v2
v_and_b32 v11, 3, v10
v_mul_u32_u24 v11, {KC_STRIDE}, v11
v_lshrrev_b32 v10, 2, v10
v_lshl_add_u32 v10, v10, 3, v11
v_lshlrev_b32 v11, 4, v3
v_sub_u32 v10, v10, v11
s_lshl_b32 s72, s79, 7
s_add_u32 s73, s80, s72
s_add_u32 s73, s73, 48
v_add_u32 v10, s73, v10
v_lshl_add_u32 v11, v2, 5, v11
s_add_u32 s73, s82, {480-64}
s_sub_u32 s73, s73, s72
v_add_u32 v11, s73, v11
v_lshlrev_b32 v13, 6, v2
v_lshl_add_u32 v13, v3, 4, v13
s_lshl_b32 s72, s28, 10
s_add_u32 s72, s72, {L_XS}
v_add_u32 v13, s72, v13
s_lshl_b32 s72, s83, 2
s_add_u32 s14, s14, s72
s_addc_u32 s15, s15, 0
s_load_dword s93, s[14:15], 0""")
a("s_waitcnt lgkmcnt(0)")
for i in range(32): a(f"v_mov_b32 v{ACC+i}, 0")
if STOP <= 0: a("s_branch L_fin")
a("s_barrier")
mark(4)
def conv_body(w3):
    def reads(ph, T):
        return [f"ds_read_b64 v[{AF[ph]+4*T}:{AF[ph]+4*T+1}], v10 offset:{512*T+64*ph}",
                f"ds_read_b64 v[{AF[ph]+4*T+2}:{AF[ph]+4*T+3}], v10 offset:{512*T+64*ph+8}",
                f"ds_read_b128 v[{BF[ph]+4*T}:{BF[ph]+4*T+3}], v11 offset:{512*T+64*(1-ph)}"]
    allreads = [r for ph in range(2) for T in range(8) for r in reads(ph, T)]
    st = {"i": 0}
    def issue(k):
        for _ in range(k):
            if st["i"] < len(allreads): a(allreads[st["i"]]); st["i"] += 1
    issue(15)
    for ph in range(2):
        for T in range(8):
            if w3 and (ph, T) == (OPT.get("fxp", 0), OPT.get("fxt", 6)):
                polln("s73", 4, preissued=True)
                a(f"s_lshl_b32 s73, s83, 13\ns_add_u32 s73, s73, {WS_XD}\ns_mov_b32 m0, {L_XS}\ns_nop 0")
                for q in range(4): a(f"buffer_load_dwordx4 v5, {WS}, s73 offen offset:{1024*q}{LD} lds")
                a(f"s_add_u32 s73, s73, 4096\ns_mov_b32 m0, {L_XS+4096}\ns_nop 0")
                for q in range(4): a(f"buffer_load_dwordx4 v5, {WS}, s73 offen offset:{1024*q}{LD} lds")
                a(f"s_mov_b32 s73, {WS_ST}\ns_mov_b32 m0, {L_ST}\ns_nop 0")
                for q in range(4): a(f"buffer_load_dwordx4 v5, {WS}, s73 offen offset:{1024*q}{LD} lds")
                a(f"s_mov_b32 s73, {WS_ST+4096}\ns_mov_b32 m0, {L_ST+4096}\ns_nop 0")
                for q in range(4): a(f"buffer_load_dwordx4 v5, {WS}, s73 offen offset:{1024*q}{LD} lds")
            need = (ph * 8 + T + 1) * 3
            TP = {(0, 0): (4, 0), (0, 5): (5, 0), (1, 0): (6, 0), (0, 2): (2, 0)}
            if (ph, T) in TP and not w3:
                w_, r_ = TP[(ph, T)]; lk = a.new("Ltk")
                a(f"s_cmp_lg_u32 s28, {w_}\ns_cbranch_scc1 {lk}\ns_add_u32 s72, s89, {8192*r_}\nbuffer_load_dword v{232+r_}, v234, {W1}, s72 offen\n{lk}:")
            a(f"s_waitcnt lgkmcnt({st['i'] - need})")
            for i in range(T + 1):
                a(f"v_mfma_f32_16x16x32_bf16 v[{ACC+4*T}:{ACC+4*T+3}], v[{AF[ph]+4*i}:{AF[ph]+4*i+3}], v[{BF[ph]+4*(T-i)}:{BF[ph]+4*(T-i)+3}], v[{ACC+4*T}:{ACC+4*T+3}]")
                if i < 3 and st["i"] - need < 15: issue(1)

a("s_cmp_eq_u32 s28, 3\ns_cbranch_scc1 L_conv_w3")
if not OPT.get("pke", 0):
    a("s_add_u32 s72, s28, 1\ns_and_b32 s72, s72, 7\ns_cmp_gt_u32 s72, 1\ns_cbranch_scc1 L_conv_t")
    PKL, PKO = 192, 216
    a(f"""v_lshrrev_b32 v208, 5, v1
    v_and_b32 v209, 31, v1
    v_lshlrev_b32 v212, 12, v208
    v_lshl_add_u32 v212, v209, 2, v212
    v_lshrrev_b32 v213, 4, v209
    v_mul_u32_u24 v213, {56*2048}, v213
    v_and_b32 v209, 15, v209
    v_lshl_add_u32 v213, v209, 4, v213
    v_lshl_add_u32 v213, v208, 8, v213
    v_mov_b32 v214, {OOB}
    v_mov_b32 v215, {OOB}
    s_mov_b32 s95, 0
    """)
    a("s_mul_i32 s89, s2, 3\ns_lshr_b32 s72, s28, 2\ns_add_u32 s89, s89, s72")
    lx = a.new("Lpkx")
    for u in range(2):
        if u == 1:
            a(f"s_add_u32 s89, s89, 1\ns_add_u32 s72, s2, 768\ns_cmp_eq_u32 s28, 0\ns_cselect_b32 s89, s72, s89\ns_cmp_ge_u32 s89, 896\ns_cbranch_scc1 {lx}\ns_mov_b32 s95, 1")
        a(f"""s_mul_i32 s73, s89, 2341
        s_lshr_b32 s73, s73, 18
        s_mul_i32 s72, s73, 112
        s_sub_u32 s72, s89, s72
        s_and_b32 s77, s72, 1
        s_lshr_b32 s72, s72, 1
        s_lshl_b32 s90, s72, 15
        s_lshl_b32 s91, s73, 7
        s_add_u32 s90, s90, s91
        s_lshl_b32 s91, s77, 13
        s_add_u32 s90, s90, s91""")
        for i in range(8):
            if i == 4: a("s_add_u32 s90, s90, 16384")
            a(f"buffer_load_dword v{PKL+8*u+i}, v212, {W2}, s90 offen offset:{(i&3)*1024}{NT}")
        a(f"""s_mul_i32 s73, s73, 112
        s_add_u32 s73, s73, s72
        s_lshl_b32 s73, s73, 11
        s_lshl_b32 s77, s77, 9
        s_add_u32 s73, s73, s77
        v_add_u32 v{214+u}, s73, v213""")
    a.label(lx)

a("s_branch L_conv_t")
a.label("L_conv_w3")
a(f"s_mov_b32 s73, {WS_FX}")
polln_pre("s73", 4)
conv_body(True)
a("s_branch L_conv_red")
a.label("L_conv_t")
a(f"""s_mul_i32 s89, s30, 57344
s_cmp_eq_u32 s28, 2
s_cselect_b32 s73, 3, s79
s_mul_i32 s72, s73, 14336
s_add_u32 s89, s89, s72
s_and_b32 s72, s29, 1
s_mul_i32 s72, s72, 1792
s_add_u32 s89, s89, s72
v_mul_u32_u24 v234, 3584, v3
v_min_u32 v235, 13, v2
v_lshl_add_u32 v234, v235, 7, v234
""")
a.label("L_conv_go")
conv_body(False)
if not OPT.get("pke", 0):
    a("s_add_u32 s72, s28, 1\ns_and_b32 s72, s72, 7\ns_cmp_gt_u32 s72, 1\ns_cbranch_scc1 L_conv_red")
    a(f"""s_mov_b32 s75, 0x05040100
    s_mov_b32 s76, 0x07060302
    s_mov_b32 s90, {WS_W2P}
    s_mov_b32 s91, {WS_W2P+1024}
    s_waitcnt vmcnt(0)""")
    for u in range(2):
        if u == 1: a(f"s_cmp_eq_u32 s95, 0\ns_cbranch_scc1 L_conv_red")
        for c in range(2):
            for q in range(4):
                a(f"v_perm_b32 v{PKO+8*u+4*c+q}, v{PKL+8*u+2*q+1}, v{PKL+8*u+2*q}, s{75+c}")
        a(f"buffer_store_dwordx4 v[{PKO+8*u}:{PKO+3+8*u}], v{214+u}, {WS}, s90 offen sc1")
        a(f"buffer_store_dwordx4 v[{PKO+4+8*u}:{PKO+7+8*u}], v{214+u}, {WS}, s91 offen sc1")

a.label("L_conv_red")
mark(5)

a(f"""s_lshl_b32 s72, s28, 13
s_add_u32 s72, s72, {L_RED}
v_add_u32 v184, s72, v5""")
for T in range(8):
    if T == 7: a("s_nop 5")
    a(f"ds_write_b128 v184, v[{ACC+4*T}:{ACC+4*T+3}] offset:{1024*T}")
a(f"""s_lshl_b32 s72, s28, 10
s_add_u32 s72, s72, {L_RED}
v_add_u32 v186, s72, v5
v_lshlrev_b32 v185, 5, v2
v_lshrrev_b32 v4, 1, v3
v_lshl_add_u32 v185, v4, 4, v185
v_and_b32 v4, 1, v3
v_lshlrev_b32 v4, 3, v4
v_sub_u32 v185, v185, v4
s_lshl_b32 s72, s28, 9
s_add_u32 s72, s72, {L_U[0]+512+8}
v_add_u32 v185, s72, v185
ds_read_b64 v[176:177], v185
ds_read_b64 v[178:179], v185 offset:{L_U[1]-L_U[0]}
s_lshl_b32 s76, s93, 16
s_and_b32 s77, s93, 0xffff0000
v_lshrrev_b32 v187, 1, v2
v_lshlrev_b32 v187, 15, v187
v_lshl_add_u32 v187, v4, 3, v187
v_lshrrev_b32 v4, 1, v3
v_lshl_add_u32 v187, v4, 4, v187
v_and_b32 v4, 1, v2
v_lshl_add_u32 v187, v4, 5, v187
s_lshl_b32 s90, s83, 7
s_lshl_b32 s73, s28, 18
s_add_u32 s90, s90, s73
s_add_u32 s90, s90, {WS_HT}
s_lshl_b32 s73, s28, 8
s_add_u32 s73, s73, s83
s_lshl_b32 s91, s73, 7
s_add_u32 s91, s91, {WS_F2}
s_lshr_b32 s72, 0x89, s28
s_and_b32 s72, s72, 1
s_cbranch_scc0 L_nvw
s_waitcnt vmcnt(0)
L_nvw:
s_waitcnt lgkmcnt(0)""")
if OPT.get("rm"): mark(14)
a("s_barrier")
mark(6)
P = 48; KV, XP, LN, Y, STT = 120, 128, 136, 144, 152
a(f"ds_read_b128 v[116:119], v13 offset:{L_ST-L_XS}\nds_read_b128 v[112:115], v13")
for w in range(8): a(f"ds_read_b128 v[{P+4*w}:{P+4*w+3}], v186 offset:{8192*w}")
for c in range(2):
    d0, d1 = 176 + 2*c, 177 + 2*c
    a(f"v_lshlrev_b32 v{KV+6+c}, 16, v{d0}\nv_and_b32 v{KV+4+c}, 0xffff0000, v{d0}\nv_lshlrev_b32 v{KV+2+c}, 16, v{d1}\nv_and_b32 v{KV+c}, 0xffff0000, v{d1}")
a("s_waitcnt lgkmcnt(8)")
for r in range(4): a(f"v_and_b32 v{STT+r}, 0xffff0000, v{116+r}")
for r in range(4): a(f"v_rcp_f32 v{STT+r}, v{STT+r}")
for r in range(4): a(f"v_lshlrev_b32 v{STT+4+r}, 16, v{116+r}\nv_lshlrev_b32 v{XP+2*r}, 16, v{112+r}\nv_and_b32 v{XP+1+2*r}, 0xffff0000, v{112+r}")
for r in range(4):
    for c in range(2): a(f"v_sub_f32 v{LN+2*r+c}, v{XP+2*r+c}, v{STT+4+r}")
for r in range(4):
    for c in range(2): a(f"v_mul_f32 v{LN+2*r+c}, v{LN+2*r+c}, v{STT+r}")
a("s_waitcnt lgkmcnt(0)")
for c in range(2):
    b = P + 16*c
    for h in range(2):
        a(f"v_pk_add_f32 v[{b+2*h}:{b+2*h+1}], v[{b+2*h}:{b+2*h+1}], v[{b+4+2*h}:{b+5+2*h}]")
        a(f"v_pk_add_f32 v[{b+8+2*h}:{b+9+2*h}], v[{b+8+2*h}:{b+9+2*h}], v[{b+12+2*h}:{b+13+2*h}]")
    for r in range(4): a(f"v_add_f32 v{Y+2*r+c}, v{b+r}, v{b+8+r}")
for r in range(4): a(f"v_pk_fma_f32 v[{Y+2*r}:{Y+1+2*r}], v[{KV+2*r}:{KV+1+2*r}], s[76:77], v[{Y+2*r}:{Y+1+2*r}]")
for r in range(4): a(f"v_pk_fma_f32 v[{Y+2*r}:{Y+1+2*r}], v[{LN+2*r}:{LN+1+2*r}], v[{Y+2*r}:{Y+1+2*r}], v[{XP+2*r}:{XP+1+2*r}]")
a(f"""v_cvt_pk_bf16_f32 v160, v{Y}, v{Y+2}
v_cvt_pk_bf16_f32 v161, v{Y+4}, v{Y+6}
v_cvt_pk_bf16_f32 v162, v{Y+1}, v{Y+3}
v_cvt_pk_bf16_f32 v163, v{Y+5}, v{Y+7}
s_nop 1
v_permlane16_swap_b32 v160, v162
v_permlane16_swap_b32 v161, v163
s_nop 1
buffer_store_dwordx4 v[160:163], v187, {WS}, s90 offen sc1
s_waitcnt vmcnt(0)""")
flag_store("s91")
mark(7)
if STOP <= 1: a("s_branch L_fin")
a("s_barrier")
lw7, lw7d = a.new("Lw7"), a.new("Lw7d")
a(f"s_cmp_eq_u32 s28, 7\ns_cbranch_scc1 {lw7}")
KPRE = OPT.get("kpre", 8)
w1_pattern(133, "s28")
a("s_lshl_b32 s95, s28, 10")
def w1dma(ks): return f"s_add_u32 m0, s95, {ks*7168}\ns_add_u32 s72, s88, {ks*114688}\nbuffer_load_dwordx4 v133, {W1}, s72 offen lds"
for ks in range(KPRE): a(w1dma(ks))
a(f"s_branch {lw7d}")
a.label(lw7)
a(f"s_lshr_b32 s73, s84, 1\ns_lshl_b32 s73, s73, 15\ns_add_u32 s73, s73, {WS_F2}")
polln("s73", 4)
a.label(lw7d)
GA, ONE, CSH = 16, 56, 60
HFR = [64, 72]
WF = [80, 96]
a(f"""v_lshrrev_b32 v8, 1, v3
v_lshlrev_b32 v8, 4, v8
v_and_b32 v4, 1, v3
v_lshl_add_u32 v8, v4, 2, v8
v_lshrrev_b32 v4, 2, v2
v_add_u32 v8, v8, v4
v_and_b32 v4, 3, v2
v_lshlrev_b32 v4, 3, v4
v_and_b32 v9, 7, v8
v_lshl_add_u32 v9, v9, 5, v4
v_lshrrev_b32 v190, 1, v3
v_lshl_add_u32 v9, v190, 10, v9
v_lshrrev_b32 v190, 5, v1
v_lshlrev_b32 v190, 9, v190
v_bfe_u32 v191, v1, 1, 3
v_lshl_add_u32 v190, v191, 6, v190
v_bfe_u32 v191, v1, 4, 1
v_lshl_add_u32 v190, v191, 5, v190
v_and_b32 v191, 1, v1
v_lshl_add_u32 v190, v191, 4, v190
v_mul_u32_u24 v8, 224, v8
v_add_u32 v8, v8, v4
s_mul_i32 s92, s79, 12288
s_add_u32 s92, s92, {L_HR}
v_add_u32 v9, s92, v9
s_lshl_b32 s72, s94, 5
s_lshl_b32 s73, s78, 7
s_add_u32 s72, s72, s73
v_add_u32 v10, s72, v8
v_add_u32 v11, 57344, v10
s_mul_i32 s73, s94, 192
s_sub_u32 s73, 192, s73
v_add_u32 v12, s73, v8
v_add_u32 v13, 57344, v12
s_add_u32 s72, s28, s94
s_lshl_b32 s72, s72, 5
s_cmp_eq_u32 s28, 6
s_cselect_b32 s72, s73, s72
v_add_u32 v188, s72, v8
v_add_u32 v189, 57344, v188
s_lshl_b32 s90, s84, 3
s_lshl_b32 s72, s79, 1
s_add_u32 s90, s90, s72
s_lshl_b32 s91, s90, 14
s_add_u32 s91, s91, {WS_HT}""")
for i in range(40): a(f"v_mov_b32 v{GA+i}, 0")
for i in range(4): a(f"v_mov_b32 v{ONE+i}, 0x3f803f80")
a("s_waitcnt vmcnt(0)")
mark(8)
if OPT.get("prio"): a(f"s_cmp_{'lt' if OPT['prio'] == 1 else 'ge'}_u32 s28, 4\ns_cbranch_scc1 L_np\ns_setprio 1\nL_np:")
a("s_barrier")
mark(9)
def hdma(ks): return f"s_add_u32 m0, s92, {(ks % 6)*2048}\ns_add_u32 s74, s91, {ks*2048}\nbuffer_load_dwordx4 v190, {WS}, s74 offen{LD} lds\nbuffer_load_dwordx4 v190, {WS}, s74 offen offset:1024{LD} lds"
a(f"""s_lshl_b32 s73, s84, 17
s_and_b32 s72, s30, 7
s_lshl_b32 s72, s72, 14
s_add_u32 s73, s73, s72
s_and_b32 s72, s28, 1
s_lshl_b32 s72, s72, 13
s_add_u32 s73, s73, s72
s_add_u32 s73, s73, {WS_HT}
s_cmp_lt_u32 s28, 6
s_cbranch_scc1 L_noht
buffer_load_dword v135, v14, {WS}, s73 offen
L_noht:
s_mul_i32 s89, s30, 28672
s_lshl_b32 s72, s79, 13
s_min_u32 s72, s72, 20480
s_add_u32 s89, s89, s72
s_and_b32 s72, s29, 1
s_mul_i32 s72, s72, 917504
s_add_u32 s89, s89, s72
s_add_u32 s89, s89, {WS_W2P}""")
a("s_cmp_eq_u32 s78, 1\ns_cbranch_scc1 L_nohp")
for ks in range(6): a(hdma(ks))
a.label("L_nohp")
lcs = a.new("Lcs")
a(f"s_cmp_eq_u32 s28, 7\ns_cbranch_scc1 {lcs}")
CF = 80
def csrd(ks):
    for hq in range(2): a(f"ds_read_b64_tr_b16 v[{CF+4*(ks%7)+2*hq}:{CF+4*(ks%7)+2*hq+1}], v{188+(ks>>3)} offset:{(ks%8)*7168 + hq*1792}")
for ks in range(min(7, KPRE)): csrd(ks)
for ks in range(KPRE):
    a(f"s_waitcnt lgkmcnt({2*min(6, KPRE-1-ks)})")
    a(f"v_mfma_f32_16x16x32_bf16 v[{CSH}:{CSH+3}], v[{CF+4*(ks%7)}:{CF+4*(ks%7)+3}], v[{ONE}:{ONE+3}], {'0' if ks == 0 else f'v[{CSH}:{CSH+3}]'}")
    if ks + 7 < KPRE: csrd(ks + 7)
a.label(lcs)
a("s_cmp_eq_u32 s78, 1\ns_cbranch_scc1 L_g1_b")
WI0 = [0]
def gemm1(fh):
    ns = 4 if fh == 0 else 3
    def rdw(ks):
        o = []; hi = ks >= 8
        for sl in range(ns):
            for hq in range(2):
                six = (fh == 1 and sl == 2)
                base = (12 + hi) if six else (10 + hi)
                off = (ks - 8*hi)*7168 + hq*1792 + (0 if six else sl*32)
                r = WF[ks & 1] + 4*sl + 2*hq
                o.append(f"ds_read_b64_tr_b16 v[{r}:{r+1}], v{base} offset:{off}")
        return o
    def rdh(ks):
        o = []
        for t in range(2):
            for hq in range(2):
                r = HFR[ks & 1] + 4*t + 2*hq
                o.append(f"ds_read_b64_tr_b16 v[{r}:{r+1}], v9 offset:{(ks % 6)*2048 + t*256 + hq*512}")
        return o
    W2L = w2_loads(0, 14)
    vm = [x for k in range(6) for x in (("h0", k), ("h", k))] if fh == 0 else []
    def vmw(tag): return len(vm) - 1 - vm.index(tag)
    for x in rdw(0): a(x)
    if fh == 0: a(f"s_waitcnt vmcnt({vmw(('h', 1))})")
    a("s_barrier")
    for x in rdh(0): a(x)
    wi = 0
    for ks in range(16):
        fill = []
        if ks % 2 == 1 and ks < 15:
            if fh == 0: fill.append(("wait", ("h", ks + 2), None))
            if KPRE <= ks + 2 and KPRE < 16: fill.append(("wait", ("d", min(15, ks + 2)), None))
            fill.append(("x", None, "s_barrier"))
            for k2 in (ks + 5, ks + 6):
                if k2 < 16 and fh == 0: fill.append(("vm2", ("h", k2), hdma(k2)))
        if ks < 15: fill += [("x", None, x) for x in rdh(ks + 1) + rdw(ks + 1)]
        nd = (16 - KPRE + 3) // 4
        for k2 in range(KPRE + nd*ks, min(16, KPRE + nd*(ks+1))):
            lk = a.new("Lw1")
            fill.append(("vm", ("d", k2), (f"s_cmp_eq_u32 s28, 7\ns_cbranch_scc1 {lk}\n" if fh == 1 else "") + w1dma(k2) + (f"\n{lk}:" if fh == 1 else "")))
        if ks + 1 >= KPRE and ks < 15:
            for hq in range(2): fill.append(("x", None, f"ds_read_b64_tr_b16 v[{112+4*((ks+1)&1)+2*hq}:{113+4*((ks+1)&1)+2*hq}], v{188+((ks+1)>>3)} offset:{((ks+1)%8)*7168 + hq*1792}"))
        kt = OPT.get("kt", 1)
        if fh == 1 and kt <= ks < kt + 8 and (ks - kt) % 2 == 0:
            j = (ks - kt) // 2; lk = a.new("Ltg")
            fill.append(("vm", ("t", j), f"s_cmp_eq_u32 s79, {j & 3}\ns_cselect_b32 s72, s89, {OOB}\nbuffer_load_dword v134, v14, {WS}, s72 offen"))
        for _ in range(OPT.get("pk", 3)):
            if wi < OPT.get("nl", 18) and ks >= (OPT.get("k0", 10) if fh == 0 else OPT.get("k1", 10)): fill.append(("vm", ("w", wi), W2L[wi])); wi += 1
        mf = []
        for sl in range(ns):
            for t in range(2):
                ac = GA + (sl*2 + t)*4; h = HFR[ks & 1] + 4*t
                mf.append(f"v_mfma_f32_16x16x32_bf16 v[{ac}:{ac+3}], v[{WF[ks&1]+4*sl}:{WF[ks&1]+4*sl+3}], v[{h}:{h+3}], v[{ac}:{ac+3}]")
        if fh == 1:
            for t in range(2):
                h = HFR[ks & 1] + 4*t
                mf.append(f"v_mfma_f32_16x16x32_bf16 v[{40+4*t}:{43+4*t}], v[{h}:{h+3}], v[{h}:{h+3}], v[{40+4*t}:{43+4*t}]")
                mf.append(f"v_mfma_f32_16x16x32_bf16 v[{48+4*t}:{51+4*t}], v[{ONE}:{ONE+3}], v[{h}:{h+3}], v[{48+4*t}:{51+4*t}]")
        if ks >= KPRE: mf.append(f"v_mfma_f32_16x16x32_bf16 v[{CSH}:{CSH+3}], v[{112+4*(ks&1)}:{115+4*(ks&1)}], v[{ONE}:{ONE+3}], v[{CSH}:{CSH+3}]")
        a("s_waitcnt lgkmcnt(0)")
        if OPT.get("g1m") and ks in (0, 4, 8, 12): mark({0: 1, 4: 2, 8: 3, 12: 14}[ks])
        k = 0
        per = (len(fill) + len(mf) - 1) // len(mf)
        for m, x in enumerate(mf):
            a(x)
            tgt = min(len(fill), per*(m+1))
            while k < tgt:
                kind, tag, txt = fill[k]; k += 1
                if kind == "vm": a(txt); vm.append(tag)
                elif kind == "vm2": a(txt); vm.append(("h0", tag[1])); vm.append(tag)
                elif kind == "wait": a(f"s_waitcnt vmcnt({vmw(tag)})")
                else: a(txt)
    mark(10)
    WI0[0] = wi
    if not OPT.get("late", 0):
        for _ in range(28 - wi):
            a(W2L[wi]); wi += 1
    wi = 28
    a("s_barrier")
    if OPT.get("e1m"): mark(1)
    lc2 = a.new("Lc2")
    a(f"""v_lshlrev_b32 v10, 4, v3
    s_lshl_b32 s72, s28, 6
    v_add_u32 v4, s72, v10
    s_mov_b32 exec_lo, 0x00010001
    s_mov_b32 exec_hi, 0x00010001
    ds_write_b128 v4, v[{CSH}:{CSH+3}] offset:{L_CS}
    s_mov_b64 exec, -1
    s_lshl_b32 s72, s79, 8
    v_lshlrev_b32 v11, 3, v2
    v_add_u32 v11, s72, v11""")
    if fh == 1:
        a(f"""v_and_b32 v4, 3, v2
        v_cmp_eq_u32 s[72:73], 1, v4
        v_cmp_eq_u32 s[74:75], 2, v4
        v_cmp_eq_u32 s[76:77], 3, v4
        v_lshrrev_b32 v4, 2, v2
        v_cmp_eq_u32 vcc, v4, v3""")
        for t in range(2):
            g = 40 + 4*t
            a(f"""v_cndmask_b32_e64 v{g}, v{g}, v{g+1}, s[72:73]
            v_cndmask_b32_e64 v{g}, v{g}, v{g+2}, s[74:75]
            v_cndmask_b32_e64 v{g+1}, v{g}, v{g+3}, s[76:77]
            v_mov_b32 v{g}, v{48+4*t}""")
        a(f"""s_mov_b64 exec, vcc
        ds_write_b64 v11, v[40:41] offset:{L_SX}
        ds_write_b64 v11, v[44:45] offset:{L_SX+128}
        s_mov_b64 exec, -1""")
    CSR = 80
    a(f"""s_mul_i32 s72, s90, 57344
    s_add_u32 s72, s72, {WS_HP}
    s_mul_i32 s73, s85, 7
    s_add_u32 s74, s73, s94
    s_lshr_b32 s74, s74, 1
    s_lshl_b32 s74, s74, 10
    s_add_u32 s74, s74, s72
    s_mul_i32 s75, s94, 6
    s_sub_u32 s75, 6, s75
    s_add_u32 s75, s75, s73
    s_lshr_b32 s75, s75, 1
    s_lshl_b32 s75, s75, 10
    s_add_u32 s75, s75, s72
    s_lshl_b32 s76, s94, 9
    s_add_u32 s75, s75, s76
    v_add_u32 v12, 57344, v5
    v_lshlrev_b32 v13, 3, v1
    v_add_u32 v9, 57344, v13
    s_waitcnt lgkmcnt(0)
    s_barrier
    ds_read_b64 v[64:65], v11 offset:{L_SX}
    ds_read_b64 v[66:67], v11 offset:{L_SX+128}""")
    for sl in range(ns): a(f"ds_read_b128 v[{CSR+4*sl}:{CSR+4*sl+3}], v10 offset:{L_CS + 64*(sl + 4*fh)}")
    a(f"s_waitcnt lgkmcnt({ns})")
    for t in range(2):
        s_, q_ = 64 + 2*t, 65 + 2*t
        a(f"""v_mul_f32 v{s_}, 0x3b000000, v{s_}
        v_mul_f32 v{q_}, 0x3b000000, v{q_}
        v_fma_f32 v{q_}, -v{s_}, v{s_}, v{q_}
        v_max_f32 v{q_}, 0, v{q_}
        v_cvt_pk_bf16_f32 v{s_}, v{s_}, v{q_}
        v_lshlrev_b32 v{70+4*t}, 16, v{s_}
        v_lshlrev_b32 v{71+4*t}, 16, v{s_}
        v_and_b32 v{q_}, 0xffff0000, v{s_}
        v_add_f32 v{q_}, 0x3727c5ac, v{q_}
        v_cvt_pk_bf16_f32 v{q_}, v{q_}, v{q_}
        v_and_b32 v{q_}, 0xffff0000, v{q_}
        v_sqrt_f32 v{q_}, v{q_}""")
    for t in range(2):
        q_ = 65 + 2*t
        a(f"""v_cvt_pk_bf16_f32 v{q_}, v{q_}, v{q_}
        v_and_b32 v{q_}, 0xffff0000, v{q_}
        v_rcp_f32 v{68+4*t}, v{q_}
        v_rcp_f32 v{69+4*t}, v{q_}""")
    a("s_waitcnt lgkmcnt(0)")
    TT = 96
    if OPT.get("e1m"): mark(2)
    for t in range(2): a(f"v_mul_f32 v{128+2*t}, 0xbfb8aa3b, v{68+4*t}\nv_mul_f32 v{129+2*t}, 0xbfb8aa3b, v{68+4*t}")
    a("v_mov_b32 v132, 1.0\nv_mov_b32 v133, 1.0")
    groups = [(0, 1), (2, 3)] if fh == 0 else [(0, 1), (2,)]
    for gi, grp in enumerate(groups):
        prs = [(sl, t, h) for sl in grp for t in range(2) for h in range(2)]
        def AC(sl, t, h): return GA + (sl*2+t)*4 + 2*h
        def T_(i): return TT + 16*gi + 2*i
        for i, (sl, t, h) in enumerate(prs):
            ac = AC(sl, t, h)
            a(f"v_pk_fma_f32 v[{ac}:{ac+1}], v[{CSR+4*sl+2*h}:{CSR+4*sl+2*h+1}], v[{70+4*t}:{71+4*t}], v[{ac}:{ac+1}] neg_lo:[0,1,0] neg_hi:[0,1,0]")
        for i, (sl, t, h) in enumerate(prs):
            ac = AC(sl, t, h)
            a(f"v_pk_mul_f32 v[{T_(i)}:{T_(i)+1}], v[{ac}:{ac+1}], v[{128+2*t}:{129+2*t}]")
        for i, (sl, t, h) in enumerate(prs):
            ac = AC(sl, t, h)
            a(f"v_exp_f32 v{T_(i)}, v{T_(i)}\nv_exp_f32 v{T_(i)+1}, v{T_(i)+1}\nv_pk_mul_f32 v[{ac}:{ac+1}], v[{ac}:{ac+1}], v[{68+4*t}:{69+4*t}]")
        for i in range(len(prs)): a(f"v_pk_add_f32 v[{T_(i)}:{T_(i)+1}], v[{T_(i)}:{T_(i)+1}], v[132:133]")
        for i in range(len(prs)): a(f"v_rcp_f32 v{T_(i)}, v{T_(i)}\nv_rcp_f32 v{T_(i)+1}, v{T_(i)+1}")
        a("s_nop 0")
        for i, (sl, t, h) in enumerate(prs):
            ac = AC(sl, t, h)
            a(f"v_pk_mul_f32 v[{ac}:{ac+1}], v[{ac}:{ac+1}], v[{T_(i)}:{T_(i)+1}]")
        for t in range(2):
            o = TT + 16*gi + 4*t
            for j, sl in enumerate(grp):
                ac = AC(sl, t, 0)
                a(f"v_cvt_pk_bf16_f32 v{o+2*j}, v{ac}, v{ac+1}\nv_cvt_pk_bf16_f32 v{o+2*j+1}, v{ac+2}, v{ac+3}")
            if len(grp) == 2: a(f"buffer_store_dwordx4 v[{o}:{o+3}], v{5 if t == 0 else 12}, {WS}, s74 offen offset:{1024*(gi + 2*fh)} sc1")
            else: a(f"buffer_store_dwordx2 v[{o}:{o+1}], v{13 if t == 0 else 9}, {WS}, s75 offen sc1")

    return wi
WI = gemm1(0); a("s_branch L_g1_done")
a.label("L_g1_b"); gemm1(1)
a.label("L_g1_done")
if OPT.get("e1m"): mark(3)
A3 = 16; HF = [64, 96]
a(f"""s_lshl_b32 s73, s84, 1
s_lshr_b32 s72, s79, 1
s_add_u32 s73, s73, s72
s_lshl_b32 s73, s73, 4
s_add_u32 s73, s73, s85
s_lshl_b32 s73, s73, 2
s_and_b32 s72, s79, 1
s_lshl_b32 s72, s72, 1
s_add_u32 s73, s73, s72
s_add_u32 s73, s73, s78
s_lshl_b32 s73, s73, 7
s_add_u32 s73, s73, {WS_F3}
s_lshl_b32 s90, s84, 1
s_add_u32 s90, s90, s94
s_lshl_b32 s89, s90, 13
s_add_u32 s89, s89, {WS_F3}
s_lshl_b32 s90, s90, 2
s_mul_i32 s91, s86, 14
s_add_u32 s91, s91, s87
s_lshl_b32 s91, s91, 10
s_add_u32 s91, s91, {WS_HP}""")
for u in range(4):
    a(f"""s_add_u32 s72, s86, {u}
    s_and_b32 s72, s72, 3
    s_add_u32 s72, s72, s90
    s_mul_i32 s72, s72, 57344
    s_add_u32 s{40+u}, s72, s91""")
a(f"""s_lshl_b32 s92, s86, 13
s_lshl_b32 s72, s87, 12
s_add_u32 s93, s92, s72
v_add_u32 v10, s92, v5
s_add_u32 s90, s90, s86
s_lshr_b32 s95, s90, 1
s_lshl_b32 s95, s95, 15
s_and_b32 s72, s90, 1
s_lshl_b32 s72, s72, 5
s_add_u32 s95, s95, s72
s_lshr_b32 s72, s85, 1
s_lshl_b32 s72, s72, 1
s_add_u32 s72, s72, s87
s_lshl_b32 s72, s72, 11
s_add_u32 s95, s95, s72
s_add_u32 s95, s95, {WS_HT}
v_lshlrev_b32 v11, 9, v3
v_lshl_add_u32 v11, v2, 1, v11
v_add_u32 v12, 65536, v10
v_lshlrev_b32 v186, 3, v1
v_add_u32 v186, s92, v186
v_add_u32 v187, 65536, v186
v_add_u32 v188, 0x20000, v186""")
NLATE = (28 - WI0[0]) if OPT.get("late", 0) else 0
for x in w2_loads(0, 14)[28-NLATE:]: a(x)
a(f"s_waitcnt vmcnt({NLATE})\nv_add_u32 v13, 0x20000, v10")
flag_store("s73")
for x in w2_loads(0, 14)[WI:]: a(x)
mark(11)
if STOP <= 2: a("s_branch L_fin")
for e in range(4):
    a(f"buffer_load_short_d16 v{128+e}, v11, {WS}, s95 offen offset:{128*e} sc1\nbuffer_load_short_d16_hi v{132+e}, v11, {WS}, s95 offen offset:{128*e+64} sc1")
for i in range(32): a(f"v_mov_b32 v{A3+i}, 0")
lnp = a.new("Lnp3")
a(f"s_cmp_lg_u32 s28, 7\ns_cbranch_scc1 {lnp}")
polln("s89", 1)
a.label(lnp)
a("s_barrier")
mark(12)
def stage_dma(s):
    return [f"s_add_u32 m0, s93, {(s % 5)*32768 + u*1024}\ns_add_u32 s72, s{40+u}, {2048*s}\nbuffer_load_dwordx4 v5, {WS}, s72 offen{LD} lds" for u in range(4)]
for s in range(5):
    for x in stage_dma(s): a(x)
for s in range(7):
    issued = min(7, max(5, s + 4))
    a(f"s_waitcnt vmcnt({4*(issued - s - 1)})\ns_barrier")
    if s >= 1 and s + 4 <= 6:
        for x in stage_dma(s + 4): a(x)
    sl = s % 5
    base = 10 + [0, 0, 2, 2, 3][sl]; off0 = [0, 32768, 0, 32768, 0][sl]
    hf = HF[s & 1]
    cnt = []
    for j in range(8):
        if (2*s + j // 4) in (3, 10):
            b8 = {10: 186, 12: 187, 13: 188}[base]
            a(f"ds_read_b64 v[{hf+4*j}:{hf+4*j+1}], v{b8} offset:{off0 + 1024*j}\nds_read_b64 v[{hf+4*j+2}:{hf+4*j+3}], v{b8} offset:{off0 + 1024*j + 512}"); cnt.append(2)
        else:
            a(f"ds_read_b128 v[{hf+4*j}:{hf+4*j+3}], v{base} offset:{off0 + 1024*j}"); cnt.append(1)
    for k2 in range(2):
        kk = 2*s + k2; b = w2reg(kk)
        for u in range(4):
            a(f"s_waitcnt lgkmcnt({sum(cnt[k2*4+u+1:])})")
            for t in range(2):
                ac = A3 + (u*2+t)*4
                a(f"v_mfma_f32_16x16x32_bf16 v[{ac}:{ac+3}], v[{b+4*t}:{b+4*t+3}], v[{hf+16*k2+4*u}:{hf+16*k2+4*u+3}], v[{ac}:{ac+3}]")
mark(13)
a("s_barrier")
for u in range(1, 4):
    a(f"""s_add_u32 s72, s86, {u}
    s_and_b32 s72, s72, 3
    s_lshl_b32 s73, s87, 2
    s_add_u32 s72, s72, s73
    s_mul_i32 s72, s72, 6144
    s_add_u32 s72, s72, {(u-1)*2048}
    v_add_u32 v{10+u}, s72, v5""")
a("""s_lshl_b32 s73, s87, 2
s_add_u32 s72, s86, s73
s_mul_i32 s72, s72, 6144
v_add_u32 v10, s72, v5""")
for u in range(1, 4):
    for t in range(2):
        ac = A3 + (u*2+t)*4
        a(f"ds_write_b128 v{10+u}, v[{ac}:{ac+3}] offset:{1024*t}")
a("""s_lshl_b32 s72, s90, 14
s_lshr_b32 s73, s85, 1
s_lshl_b32 s73, s73, 7
s_add_u32 s72, s72, s73
s_lshl_b32 s73, s87, 6
s_add_u32 s72, s72, s73
v_lshlrev_b32 v9, 10, v2
v_lshl_add_u32 v9, v3, 4, v9""")
for e in range(4): a(f"v_lshlrev_b32 v{96+e}, 16, v{128+e}\nv_and_b32 v{100+e}, 0xffff0000, v{132+e}")
a("s_waitcnt lgkmcnt(0)\ns_barrier")
for j in range(6): a(f"ds_read_b128 v[{64+4*j}:{67+4*j}], v10 offset:{1024*j}")
for t in range(2):
    ac = A3 + t*4
    for h in range(2): a(f"v_pk_add_f32 v[{ac+2*h}:{ac+2*h+1}], v[{ac+2*h}:{ac+2*h+1}], v[{96+4*t+2*h}:{97+4*t+2*h}]")
a("s_waitcnt lgkmcnt(0)")
for t in range(2):
    ac = A3 + t*4
    for h in range(2):
        a(f"v_pk_add_f32 v[{ac+2*h}:{ac+2*h+1}], v[{ac+2*h}:{ac+2*h+1}], v[{64+4*t+2*h}:{65+4*t+2*h}]")
        a(f"v_pk_add_f32 v[{72+4*t+2*h}:{73+4*t+2*h}], v[{72+4*t+2*h}:{73+4*t+2*h}], v[{80+4*t+2*h}:{81+4*t+2*h}]")
for t in range(2):
    ac = A3 + t*4
    for h in range(2): a(f"v_pk_add_f32 v[{ac+2*h}:{ac+2*h+1}], v[{ac+2*h}:{ac+2*h+1}], v[{72+4*t+2*h}:{73+4*t+2*h}]")
for r in range(4): a(f"v_cvt_pk_bf16_f32 v{104+r}, v{A3+r}, v{A3+4+r}")
a(f"buffer_store_dwordx4 v[104:107], v9, {OUT}, s72 offen" + ["", " nt", " sc1", " sc0 sc1"][OPT.get("ost", 0)])
a.label("L_fin")
if OPT.get("dbg"):
    a(f"""s_waitcnt vmcnt(0)
    s_memrealtime s[98:99]
    s_waitcnt lgkmcnt(0)
    s_and_b32 s72, s2, 31
    s_or_b32 s72, s72, s28
    s_cmp_lg_u32 s72, 0
    s_cbranch_scc1 L_end
    s_not_b32 s96, s96
    v_mov_b32 v16, s96
    v_mov_b32 v17, s98
    v_mov_b32 v4, 16
    s_mov_b64 exec, 1
    buffer_atomic_umax v16, v4, {DBG}, 0 offen
    buffer_atomic_umax v17, v4, {DBG}, 0 offen offset:4
    s_mov_b64 exec, -1""")
if STAMP:
    a(f"""s_mov_b64 exec, -1
    s_waitcnt vmcnt(0) lgkmcnt(0)
    s_memrealtime s[98:99]
    s_waitcnt lgkmcnt(0)
    v_writelane_b32 v15, s96, 0
    v_writelane_b32 v15, s98, 15
    s_lshl_b32 s72, s2, 9
    s_lshl_b32 s73, s28, 6
    s_add_u32 s72, s72, s73
    s_add_u32 s72, s72, {WS_STAMP}
    v_lshlrev_b32 v4, 2, v1
    s_mov_b64 exec, 0xffff
    buffer_store_dword v15, v4, {WS}, s72 offen
    s_add_u32 s72, s72, {0x100000 - 64}
    s_mov_b32 exec_lo, 0xffff0000
    buffer_store_dword v15, v4, {WS}, s72 offen""")
a.label("L_end")
a("s_endpgm")
a.raw(f""".section .rodata,"a"
.p2align 6
.amdhsa_kernel {NAME}
  .amdhsa_next_free_vgpr 256
  .amdhsa_next_free_sgpr 102
  .amdhsa_accum_offset 256
  .amdhsa_group_segment_fixed_size 0
  .amdhsa_kernarg_size 96
  .amdhsa_user_sgpr_count 2
  .amdhsa_user_sgpr_kernarg_segment_ptr 1
  .amdhsa_system_sgpr_workgroup_id_x 1
.end_amdhsa_kernel""")
HEADER = open("sequential_preLN__ssm_conv_h3__dense_activation_silu__prompt.s.ref").read().split("; Override launch")[0]
print(HEADER + f"; @launch grid=(256,1,1) block=(512,1,1) lds={LDS_BYTES}\n" + '.amdgcn_target "amdgcn-amd-amdhsa--gfx950"\n.text\n' + a.text())
```
